```python
import torch

def _softmax(x, axis=-1):
    return torch.softmax(x, dim=axis)
def _gelu(x):
    return torch.nn.functional.gelu(x, approximate="tanh")
def _silu(x):
    return torch.nn.functional.silu(x)
def _sigmoid(x):
    return torch.sigmoid(x)
def _layernorm(x, axis=-1, eps=1e-5):
    m = x.mean(dim=axis, keepdim=True)
    v = x.var(dim=axis, keepdim=True, unbiased=False)
    return (x - m) / torch.sqrt(v + eps)
def _scatter_add(tgt, idx, src, axis=0):
    return tgt.clone().index_add_(axis, idx, src)
def _segment_sum(src, seg, n):
    out = torch.zeros((n,) + src.shape[1:], dtype=src.dtype)
    return out.index_add_(0, seg, src)
def _pad(x, pw):
    flat = tuple(v for pair in reversed(pw) for v in pair)
    return torch.nn.functional.pad(x, flat)

kernel_name = 'parallel_sum__ssm_conv_s4d__dense_activation_relu__prompt'

def setup_inputs():

    _w = (lambda a: (lambda t: t.to(torch.bfloat16) if t.is_floating_point() else t)(torch.as_tensor(a)))
    def _A_setup():
        Bsz, L, D, N = 1, 2048, 640, 128
        return {
            "u": _w((lambda *s: torch.randn(*s, dtype=torch.bfloat16) * 0.05)(Bsz, L, D)),
            "log_A_real": _w((lambda *s: torch.randn(*s, dtype=torch.bfloat16) * 6.4)(D, N) * 0.5),
            "A_imag": _w((lambda *s: torch.randn(*s, dtype=torch.bfloat16) * 0.2)(D, N) * 3.14),
            "C_real": _w((lambda *s: torch.randn(*s, dtype=torch.bfloat16) * 0.8)(D, N) / N ** 0.5),
            "C_imag": _w((lambda *s: torch.randn(*s, dtype=torch.bfloat16) * 0.8)(D, N) / N ** 0.5),
            "log_dt": _w((lambda *s: torch.randn(*s, dtype=torch.bfloat16) * 0.2)(D) * 0.5 - 4.0),
            "D_skip": _w((lambda *s: torch.randn(*s, dtype=torch.bfloat16) * 0.2)(D)),
        }
    _A_in = _A_setup()

    def _B_setup():
        B, S, D, Dff = 1, 2048, 640, 1728
        return {
            "x": _w((lambda *s: torch.randn(*s, dtype=torch.bfloat16) * 0.05)(B, S, D)),
            "w1": _w((lambda *s: torch.randn(*s, dtype=torch.bfloat16) * 0.05)(D, Dff)),
            "w2": _w((lambda *s: torch.randn(*s, dtype=torch.bfloat16) * 0.05)(Dff, D)),
        }
    _B_in = _B_setup()

    return {
        "A_u": _A_in["u"],
        "A_log_A_real": _A_in["log_A_real"],
        "A_A_imag": _A_in["A_imag"],
        "A_C_real": _A_in["C_real"],
        "A_C_imag": _A_in["C_imag"],
        "A_log_dt": _A_in["log_dt"],
        "A_D_skip": _A_in["D_skip"],
        "B_x": _B_in["x"],
        "B_w1": _B_in["w1"],
        "B_w2": _B_in["w2"],
    }

def reference(A_u, A_log_A_real, A_A_imag, A_C_real, A_C_imag, A_log_dt, A_D_skip, B_x, B_w1, B_w2):
    def _A_ref(u, log_A_real, A_imag, C_real, C_imag, log_dt, D_skip):
        L = u.shape[1]
        dt = torch.exp(log_dt)
        A = -torch.exp(log_A_real) + 1j * A_imag
        C = (C_real + 1j * C_imag) * dt[:, None]
        pos = (lambda x, dt: x.to(dt))(torch.arange(L), log_dt.dtype)
        P = torch.exp((A * dt[:, None])[:, :, None] * pos[None, None, :])
        K = 2.0 * torch.einsum("dn,dnl->dl", C, P).real
        L2 = 2 * L
        u_t = (lambda x, *d: x.permute(*d))(u, 0, 2, 1)
        Kf = (lambda x, *a, **k: torch.fft.rfft(x.float(), *a, **k))(K, L2)
        Uf = (lambda x, *a, **k: torch.fft.rfft(x.float(), *a, **k))(u_t, L2)
        y = (lambda x, *a, **k: torch.fft.irfft(x, *a, **k).to(torch.bfloat16))(Uf * Kf[None, :, :], L2)[:, :, :L]
        y = (lambda x, *d: x.permute(*d))(y, 0, 2, 1)
        return y + u * D_skip[None, None, :]

    def _B_ref(x, w1, w2):
        h = torch.einsum("bsd,df->bsf", x, w1)
        zero = torch.zeros_like(h)
        h = torch.maximum(h, zero)
        return torch.einsum("bsf,fd->bsd", h, w2)

    x = A_u
    xn = _layernorm(x, axis=-1)
    return x + _A_ref(xn, A_log_A_real, A_A_imag, A_C_real, A_C_imag, A_log_dt, A_D_skip) + _B_ref(xn, B_w1, B_w2)
```

```python
WS_H     = 0
H_MT_STRIDE = 54*1024
WS_ST    = 0x700000
WS_AT    = 0x710000
WS_STAMP = 0xA00000
X_BYTES  = 2048*640*2
W_BYTES  = 640*1728*2
P_BYTES  = 640*128*2

class Asm:
    def __init__(s):
        s.l = []; s.uid = 0
    def __call__(s, t):
        for line in t.split("\n"):
            line = line.strip()
            if line: s.l.append("    " + line)
    def label(s, n): s.l.append(n + ":")
    def newlabel(s, p="L"):
        s.uid += 1; return "%s_%d" % (p, s.uid)
    def comment(s, t): s.l.append("    ; " + t)
    def text(s): return "\n".join(s.l) + "\n"

def vr(b, n=1):
    return "v%d" % b if n == 1 else "v[%d:%d]" % (b, b+n-1)
def sr(b, n=1):
    return "s%d" % b if n == 1 else "s[%d:%d]" % (b, b+n-1)

class VAlloc:
    def __init__(s, start=1, limit=256): s.n = start; s.limit = limit; s.hi = start
    def __call__(s, n=1, align=None):
        if align is None: align = 2 if n >= 2 else 1
        s.n = (s.n + align - 1)//align*align
        b = s.n; s.n += n; s.hi = max(s.hi, s.n)
        assert s.n <= s.limit, "out of vgprs"
        return b
    def mark(s): return s.n
    def release(s, m): s.n = m

S_WG   = 2
S_PTR  = 4
P_U, P_LOGA, P_AIM, P_CRE, P_CIM, P_LOGDT, P_DSK = 4, 6, 8, 10, 12, 14, 16
P_W1, P_W2, P_OUT, P_DBG = 20, 22, 24, 26
P_WS = 28
S_WAVE = 30
SRD_X  = 32
SRD_W  = 36
SRD_WS = 40
SRD_O  = 44
SRD_D  = 48
S_T = 52
SRD_W2 = 72

def load_args(a):
    a("s_load_dwordx16 s[4:19], s[0:1], 0")
    a("s_load_dwordx8 s[20:27], s[0:1], 64")
    a("s_load_dwordx2 s[28:29], s[0:1], 96")

def srd(a, d, p, nbytes):
    a("s_mov_b32 s%d, s%d" % (d, p))
    a("s_and_b32 s%d, s%d, 0xffff" % (d+1, p+1))
    a("s_mov_b32 s%d, 0x%x" % (d+2, nbytes))
    a("s_mov_b32 s%d, 0x20000" % (d+3))

def wave_id(a, vtmp):
    a("v_lshrrev_b32 %s, 6, v0" % vr(vtmp))
    a("v_and_b32 v0, 63, v0")
    a("v_readfirstlane_b32 s%d, %s" % (S_WAVE, vr(vtmp)))

def stamp(a, slot, st, vt, enable=True):
    if not enable: return
    a("s_memrealtime s[%d:%d]" % (st, st+1))
    a("s_lshl_b32 s%d, s%d, 3" % (st+2, S_WG))
    a("s_add_u32 s%d, s%d, s%d" % (st+2, st+2, S_WAVE))
    a("s_lshl_b32 s%d, s%d, 6" % (st+2, st+2))
    a("s_add_u32 s%d, s%d, 0x%x" % (st+2, st+2, WS_STAMP + slot*4))
    a("s_waitcnt lgkmcnt(0)")
    a("v_mov_b32 %s, s%d" % (vr(vt), st))
    a("v_mov_b32 %s, 0" % vr(vt+1))
    a("s_mov_b64 s[%d:%d], exec" % (st, st+1))
    a("s_mov_b64 exec, 1")
    a("buffer_store_dword %s, %s, s[%d:%d], s%d offen" % (vr(vt), vr(vt+1), SRD_WS, SRD_WS+3, st+2))
    a("s_mov_b64 exec, s[%d:%d]" % (st, st+1))

def kernel_desc(name, vgprs, sgprs=102):
    acc = (vgprs + 3)//4*4
    return """.amdhsa_kernel %s
  .amdhsa_next_free_vgpr %d
  .amdhsa_next_free_sgpr %d
  .amdhsa_accum_offset %d
  .amdhsa_group_segment_fixed_size 0
  .amdhsa_kernarg_size 104
  .amdhsa_user_sgpr_count 2
  .amdhsa_user_sgpr_kernarg_segment_ptr 1
  .amdhsa_system_sgpr_workgroup_id_x 1
  .amdhsa_float_denorm_mode_32 3
.end_amdhsa_kernel
""" % (name, vgprs, sgprs, acc)

def interleave(a, mfmas, fillers, per_gap=None):
    fi = 0
    n = len(mfmas)
    for i, m in enumerate(mfmas):
        a(m)
        remaining_gaps = n - i
        want = -(-(len(fillers) - fi)//remaining_gaps) if per_gap is None else per_gap
        cnt = 0
        while fi < len(fillers) and cnt < want:
            a(fillers[fi]); fi += 1; cnt += 1
    while fi < len(fillers):
        a(fillers[fi]); fi += 1

import struct
def f2u(x): return struct.unpack("<I", struct.pack("<f", x))[0]
```

```python
from gen_common import *
import math
PW = 15872
TOFF = 12800
REGB = 8448
UB = 8*PW
USTR = 4576
S_CW = 66
LOG2E = 1.4426950408889634
L2E_HI = f2u(LOG2E); L2E_LO = f2u(LOG2E - struct.unpack("<f", struct.pack("<f", LOG2E))[0])

def exp_bf16(a, dst, src, t0, t1, sH, sL, sN):
    a("v_mul_f32 %s, s%d, %s" % (vr(t0), sH, vr(src)))
    a("v_fma_f32 %s, %s, s%d, -%s" % (vr(t1), vr(src), sH, vr(t0)))
    a("v_fmac_f32 %s, s%d, %s" % (vr(t1), sL, vr(src)))
    a("v_exp_f32 %s, %s" % (vr(t0), vr(t0)))
    a("v_mul_f32 %s, s%d, %s" % (vr(t1), sN, vr(t1)))
    a("v_fma_f32 %s, %s, %s, %s" % (vr(t0), vr(t0), vr(t1), vr(t0)))
    a("v_cvt_pk_bf16_f32 %s, %s, %s" % (vr(t0), vr(t0), vr(t0)))
    a("v_lshlrev_b32 %s, 16, %s" % (vr(dst), vr(t0)))

def cmul(a, z, x, y, t):
    a("v_pk_mul_f32 %s, %s, %s op_sel_hi:[1,0]" % (vr(t,2), vr(x,2), vr(y,2)))
    a("v_pk_fma_f32 %s, %s, %s, %s op_sel:[1,1,0] op_sel_hi:[0,1,1] neg_lo:[1,0,0]" % (vr(z,2), vr(x,2), vr(y,2), vr(t,2)))

def conv_issue_loads(a, va, sc=""):
    R = {}
    R["par"] = [va() for _ in range(4)]
    R["x"] = [va(4, 4) for _ in range(4)]
    t = va(); R["t"] = t
    sD = S_T+8; R["sD"] = sD
    a("s_lshr_b32 s%d, s%d, 2" % (S_T, S_CW)); a("s_lshl_b32 s%d, s%d, 5" % (sD, S_T))
    a("s_and_b32 s%d, s%d, 3" % (S_T, S_CW)); a("s_lshl_b32 s%d, s%d, 2" % (S_T, S_T)); a("s_add_u32 s%d, s%d, s%d" % (sD, sD, S_T))
    a("s_lshl_b32 s%d, s%d, 1" % (S_T+1, sD))
    a("s_lshr_b32 s%d, s%d, 2" % (S_T, S_WAVE)); a("s_lshl_b32 s%d, s%d, 4" % (S_T, S_T)); a("s_add_u32 s%d, s%d, s%d" % (sD, sD, S_T))
    a("s_and_b32 s%d, s%d, 3" % (S_T, S_WAVE)); a("s_add_u32 s%d, s%d, s%d" % (sD, sD, S_T))
    a("s_lshl_b32 s%d, s%d, 8" % (S_T, sD))
    a("v_lshlrev_b32 %s, 2, v0" % vr(t))
    a("v_add_u32 %s, s%d, %s" % (vr(t), S_T, vr(t)))
    for i, p in enumerate((P_LOGA, P_AIM, P_CRE, P_CIM)):
        a("global_load_dword %s, %s, s[%d:%d]" % (vr(R["par"][i]), vr(t), p, p+1))
    a("s_lshr_b32 s%d, s%d, 1" % (S_T, sD))
    a("s_lshl_b32 s%d, s%d, 2" % (S_T, S_T))
    a("s_load_dword s%d, s[%d:%d], s%d" % (sD+1, P_LOGDT, P_LOGDT+1, S_T))
    a("s_load_dword s%d, s[%d:%d], s%d" % (sD+2, P_DSK, P_DSK+1, S_T))
    a("s_mul_i32 s%d, s%d, %d" % (S_T, S_WAVE, 256*1280))
    a("s_add_u32 s%d, s%d, s%d" % (S_T, S_T, S_T+1))
    a("v_mul_u32_u24 %s, 5120, v0" % vr(t))
    for i in range(4):
        for hh in range(2):
            a("buffer_load_dwordx2 %s, %s, s[%d:%d], s%d offen offset:%d" % (vr(R["x"][i]+2*hh, 2), vr(t), SRD_X, SRD_X+3, S_T, 1280*i + 32*hh))
    return R

def conv_kgen(a, va, R, vm_params):
    m = va.mark()
    sD = R["sD"]; sH, sL, sN, sB = S_T, S_T+1, S_T+2, S_T+3
    D = va(16, 4)
    fa = [va(4, 4) for _ in range(2)]; fb = [va(4, 4) for _ in range(2)]
    dt = va(); E1, E8, E256, Y, T = va(2), va(2), va(2), va(2), va(2)
    X = [va(2) for _ in range(8)]
    t0, t1, t2, t3 = va(), va(), va(), va()
    vW = va(); vR = va(); pk = [va() for _ in range(4)]
    a("s_mov_b32 s%d, 0x%08x" % (sH, L2E_HI)); a("s_mov_b32 s%d, 0x%08x" % (sL, L2E_LO)); a("s_mov_b32 s%d, 0x%08x" % (sN, f2u(math.log(2.0))))
    a("s_mul_i32 s%d, s%d, %d" % (sB, S_WAVE, PW))
    a("v_lshlrev_b32 %s, 2, v0" % vr(vW))
    a("v_add_u32 %s, s%d, %s" % (vr(vW), sB, vr(vW)))
    a("v_and_b32 %s, 31, v0" % vr(t0))
    a("v_mul_u32_u24 %s, 272, %s" % (vr(t0), vr(t0)))
    a("v_lshrrev_b32 %s, 5, v0" % vr(t1))
    a("v_lshl_add_u32 %s, %s, 4, %s" % (vr(t0), vr(t1), vr(t0)))
    a("v_add_u32 %s, s%d, %s" % (vr(vR), sB, vr(t0)))
    a("s_waitcnt lgkmcnt(0)")
    a("s_and_b32 s%d, s%d, 1" % (sB+1, sD))
    a("s_lshl_b32 s%d, s%d, 4" % (sB+1, sB+1))
    a("s_lshr_b32 s%d, s%d, s%d" % (sD+1, sD+1, sB+1)); a("s_lshl_b32 s%d, s%d, 16" % (sD+1, sD+1))
    a("s_lshr_b32 s%d, s%d, s%d" % (sD+2, sD+2, sB+1)); a("s_lshl_b32 s%d, s%d, 16" % (sD+2, sD+2))
    a("v_mov_b32 %s, s%d" % (vr(t2), sD+1))
    exp_bf16(a, dt, t2, t0, t1, sH, sL, sN)
    a("s_waitcnt vmcnt(%d)" % vm_params)
    cnt = [0]
    def put(row, z, neg):
        p = pk[cnt[0] % 4]; cnt[0] += 1
        a("v_cvt_pk_bf16_f32 %s, %s, %s%s" % (vr(p), vr(z), "-" if neg else "", vr(z+1)))
        a("ds_write_b32 %s, %s offset:%d" % (vr(vW), vr(p), row*272))
    for ps in range(2):
        def unp(dst, src):
            if ps == 0: a("v_lshlrev_b32 %s, 16, %s" % (vr(dst), vr(src)))
            else: a("v_and_b32 %s, 0xffff0000, %s" % (vr(dst), vr(src)))
        par = R["par"]
        unp(t2, par[0])
        exp_bf16(a, t2, t2, t0, t1, sH, sL, sN)
        a("v_mul_f32 %s, %s, %s" % (vr(t2), vr(t2), vr(dt)))
        a("v_mul_f32 %s, s%d, %s" % (vr(t2), sH, vr(t2)))
        unp(t3, par[1])
        a("v_mul_f32 %s, %s, %s" % (vr(t3), vr(t3), vr(dt)))
        a("v_mul_f32 %s, 0.15915494, %s" % (vr(t3), vr(t3)))
        for E, sc_ in ((E1, 1.0), (E8, 8.0), (E256, 256.0)):
            a("v_mul_f32 %s, 0x%08x, %s" % (vr(t0), f2u(-sc_), vr(t2)))
            a("v_mul_f32 %s, 0x%08x, %s" % (vr(t1), f2u(sc_), vr(t3)))
            a("v_exp_f32 %s, %s" % (vr(t0), vr(t0)))
            a("v_fract_f32 %s, %s" % (vr(t1), vr(t1)))
            a("v_cos_f32 %s, %s" % (vr(E), vr(t1)))
            a("v_sin_f32 %s, %s" % (vr(E+1), vr(t1)))
            a("s_nop 0")
            a("v_mul_f32 %s, %s, %s" % (vr(E), vr(E), vr(t0)))
            a("v_mul_f32 %s, %s, %s" % (vr(E+1), vr(E+1), vr(t0)))
        unp(X[0], par[2]); unp(X[0]+1, par[3])
        a("v_add_f32 %s, %s, %s" % (vr(t0), vr(dt), vr(dt)))
        a("v_mul_f32 %s, %s, %s" % (vr(X[0]), vr(X[0]), vr(t0)))
        a("v_mul_f32 %s, %s, %s" % (vr(X[0]+1), vr(X[0]+1), vr(t0)))
        if ps == 1: a("s_waitcnt lgkmcnt(0)")
        a("v_mov_b32 %s, 0x3f80" % vr(pk[3]))
        a("ds_write_b32 %s, %s offset:0" % (vr(vW), vr(pk[3])))
        put(1, E8, False)
        cmul(a, Y, E8, E8, T); put(2, Y, False)
        for q in range(3, 32):
            cmul(a, Y, Y, E8, T); put(q, Y, False)
        put(32, X[0], True)
        for i in range(1, 8):
            cmul(a, X[i], X[i-1], E1, T); put(32+i, X[i], True)
        for k, i in enumerate((0, 2, 4, 6)):
            cmul(a, X[i], X[i], E256, T); put(40+k, X[i], True)
        for k in range(2):
            for kk, i in enumerate((0, 4)):
                cmul(a, X[i], X[i], E256, T); put(44+2*k+kk, X[i], True)
        for k in range(5):
            cmul(a, X[0], X[0], E256, T); put(48+k, X[0], True)
        a("s_waitcnt lgkmcnt(0)")
        a("ds_read_b128 %s, %s offset:%d" % (vr(fa[0], 4), vr(vR), 32*272))
        a("ds_read_b128 %s, %s offset:%d" % (vr(fb[0], 4), vr(vR), 0))
        for s in range(8):
            b = s & 1
            if s < 7:
                a("ds_read_b128 %s, %s offset:%d" % (vr(fa[b^1], 4), vr(vR), 32*272 + 32*(s+1)))
                a("ds_read_b128 %s, %s offset:%d" % (vr(fb[b^1], 4), vr(vR), 32*(s+1)))
                a("s_waitcnt lgkmcnt(2)")
            else: a("s_waitcnt lgkmcnt(0)")
            c = "0" if (ps == 0 and s == 0) else vr(D, 16)
            a("v_mfma_f32_32x32x16_bf16 %s, %s, %s, %s" % (vr(D, 16), vr(fa[b], 4), vr(fb[b], 4), c))
    q, h = t0, t1
    a("v_and_b32 %s, 31, v0" % vr(q)); a("v_lshrrev_b32 %s, 5, v0" % vr(h))
    a("s_add_u32 s%d, s%d, %d" % (sB+1, sB, TOFF))
    a0, a1, a2, a3 = pk
    a("v_lshlrev_b32 %s, 5, %s" % (vr(a0), vr(q)))
    a("v_lshl_add_u32 %s, %s, 4, %s" % (vr(a0), vr(h), vr(a0)))
    a("v_add_u32 %s, s%d, %s" % (vr(a0), sB+1, vr(a0)))
    a("v_cmp_eq_u32 vcc, 0, %s" % vr(h))
    a("v_lshlrev_b32 %s, 4, %s" % (vr(t2), vr(q)))
    a("v_lshlrev_b32 %s, 3, %s" % (vr(t3), vr(q)))
    a("v_add_u32 %s, %d, %s" % (vr(t2), 256*4, vr(t2)))
    a("v_add_u32 %s, %d, %s" % (vr(t3), 384*4, vr(t3)))
    a("v_cndmask_b32 %s, %s, %s, vcc" % (vr(a1), vr(t3), vr(t2)))
    a("v_add_u32 %s, 8, %s" % (vr(t2), vr(t2)))
    a("v_add_u32 %s, 256, %s" % (vr(t3), vr(t3)))
    a("v_cndmask_b32 %s, %s, %s, vcc" % (vr(a2), vr(t3), vr(t2)))
    a("v_add_u32 %s, s%d, %s" % (vr(a1), sB+1, vr(a1)))
    a("v_add_u32 %s, s%d, %s" % (vr(a2), sB+1, vr(a2)))
    a("v_lshlrev_b32 %s, 2, %s" % (vr(a3), vr(q)))
    a("v_lshl_add_u32 %s, %s, 9, %s" % (vr(a3), vr(h), vr(a3)))
    a("v_add_u32 %s, s%d, %s" % (vr(a3), sB+1, vr(a3)))
    a("ds_write_b128 %s, %s" % (vr(a0), vr(D, 4)))
    a("ds_write_b64 %s, %s" % (vr(a1), vr(D+4, 2)))
    a("ds_write_b64 %s, %s" % (vr(a2), vr(D+6, 2)))
    for p in range(4): a("ds_write_b32 %s, %s offset:%d" % (vr(a3), vr(D+8+p), 2048 + 128*p))
    lo, qq = t0, t1
    a("v_and_b32 %s, 15, v0" % vr(lo)); a("v_lshrrev_b32 %s, 4, v0" % vr(qq))
    a("v_lshlrev_b32 %s, 6, %s" % (vr(a0), vr(lo)))
    a("v_lshl_add_u32 %s, %s, 4, %s" % (vr(a0), vr(qq), vr(a0)))
    a("v_add_u32 %s, s%d, %s" % (vr(a0), sB+1, vr(a0)))
    a("v_lshlrev_b32 %s, 5, %s" % (vr(a1), vr(lo)))
    a("v_lshl_add_u32 %s, %s, 3, %s" % (vr(a1), vr(qq), vr(a1)))
    a("v_add_u32 %s, s%d, %s" % (vr(a1), sB+1, vr(a1)))
    a("v_and_b32 %s, 31, v0" % vr(t2)); a("v_lshrrev_b32 %s, 5, v0" % vr(t3))
    a("v_lshlrev_b32 %s, 4, %s" % (vr(a2), vr(t2)))
    a("v_lshl_add_u32 %s, %s, 3, %s" % (vr(a2), vr(t3), vr(a2)))
    a("v_add_u32 %s, s%d, %s" % (vr(a2), sB+1, vr(a2)))
    a("v_lshlrev_b32 %s, 3, v0" % vr(a3))
    a("v_add_u32 %s, s%d, %s" % (vr(a3), sB+1, vr(a3)))
    a("v_mov_b32 %s, s%d" % (vr(vR), sB+1))
    r0 = D; r1 = D+8; r2 = D+12; r3 = fa[0]; rz = fa[1]
    a("s_waitcnt lgkmcnt(0)")
    a("ds_read_b128 %s, %s" % (vr(r0, 4), vr(a0)))
    a("ds_read_b128 %s, %s offset:16" % (vr(r0+4, 4), vr(a0)))
    a("ds_read_b64 %s, %s offset:1024" % (vr(r1, 2), vr(a1)))
    a("ds_read_b64 %s, %s offset:1032" % (vr(r1+2, 2), vr(a1)))
    a("ds_read_b64 %s, %s offset:1536" % (vr(r2, 2), vr(a2)))
    a("ds_read_b32 %s, %s offset:1544" % (vr(r2+2), vr(a2)))
    a("ds_read_b64 %s, %s offset:2048" % (vr(r3, 2), vr(a3)))
    a("ds_read_b32 %s, %s offset:2056" % (vr(r3+2), vr(a3)))
    a("ds_read_b128 %s, %s" % (vr(rz, 4), vr(vR)))
    a("v_mul_u32_u24 %s, %d, %s" % (vr(a0), 4*528, vr(qq)))
    a("v_lshl_add_u32 %s, %s, 3, %s" % (vr(a0), vr(lo), vr(a0)))
    a("v_add_u32 %s, s%d, %s" % (vr(a0), sB, vr(a0)))
    a("v_mul_u32_u24 %s, %d, %s" % (vr(a2), 8*528, vr(t3)))
    a("v_lshl_add_u32 %s, %s, 3, %s" % (vr(a2), vr(t2), vr(a2)))
    a("v_add_u32 %s, s%d, %s" % (vr(a2), sB, vr(a2)))
    a("v_lshlrev_b32 %s, 3, v0" % vr(a3))
    a("v_add_u32 %s, s%d, %s" % (vr(a3), sB, vr(a3)))
    a("v_mul_u32_u24 %s, 528, %s" % (vr(a1), vr(lo)))
    a("v_add_u32 %s, s%d, %s" % (vr(a1), sB, vr(a1)))
    a("v_cmp_eq_u32 vcc, 63, v0")
    a("s_waitcnt lgkmcnt(0)")
    a("v_cndmask_b32 %s, %s, %s, vcc" % (vr(r0+6), vr(r0+6), vr(r0+5)))
    a("v_cndmask_b32 %s, %s, %s, vcc" % (vr(r0+5), vr(r0+5), vr(r0+4)))
    a("v_cndmask_b32 %s, %s, %s, vcc" % (vr(r1+3), vr(r1+3), vr(r1+2)))
    W = X + [E1, E8, E256, Y]
    wc = [0]
    def win(adr, off, v3, v2, v1, v0_):
        p = W[wc[0] % len(W)]; wc[0] += 1
        a("v_cvt_pk_bf16_f32 %s, %s, %s" % (vr(p), vr(v3), vr(v2)))
        a("v_cvt_pk_bf16_f32 %s, %s, %s" % (vr(p+1), vr(v1), vr(v0_)))
        a("ds_write_b64 %s, %s offset:%d" % (vr(adr), vr(p, 2), off))
        return p
    for i in range(4): win(a0, i*528 + 8, r0+i+3, r0+i+2, r0+i+1, r0+i)
    K1 = [r1, r1, r1+1, r1+2, r1+2, r1+2, r1+3]
    for i in range(4): win(a0, i*528 + 8 + 128, K1[i+3], K1[i+2], K1[i+1], K1[i])
    K2 = [r2]*3 + [r2+1]*3 + [r2+2]*5
    for i in range(7):
        p = win(a2, i*528 + 8 + 256, K2[i+3], K2[i+2], K2[i+1], K2[i])
    a("ds_write_b64 %s, %s offset:%d" % (vr(a2), vr(p, 2), 7*528 + 8 + 256))
    K3 = [r3]*5 + [r3+1]*7 + [r3+2]*7
    for arr, ph in enumerate((0, 2, 3, 4, 5, 9, 10, 11)):
        win(a3, REGB + arr*544, K3[ph+3], K3[ph+2], K3[ph+1], K3[ph])
    win(a3, REGB + 8, r3+2, r3+2, r3+2, r3+2)
    p = T
    a("v_mov_b32 %s, 0" % vr(rz+3))
    a("v_cvt_pk_bf16_f32 %s, %s, %s" % (vr(t2), vr(rz), vr(rz+3)))
    a("v_cvt_pk_bf16_f32 %s, %s, %s" % (vr(t3), vr(rz+1), vr(rz)))
    a("v_cvt_pk_bf16_f32 %s, %s, %s" % (vr(rz+1), vr(rz+2), vr(rz+1)))
    a("v_cmp_eq_u32 vcc, 13, %s" % vr(lo)); a("s_nop 1")
    a("v_cndmask_b32 %s, 0, %s, vcc" % (vr(p), vr(t2)))
    a("v_cmp_eq_u32 vcc, 14, %s" % vr(lo)); a("s_nop 1")
    a("v_cndmask_b32 %s, %s, %s, vcc" % (vr(p), vr(p), vr(t3)))
    a("v_cmp_eq_u32 vcc, 15, %s" % vr(lo)); a("s_nop 1")
    a("v_cndmask_b32 %s, %s, %s, vcc" % (vr(p), vr(p), vr(rz+1)))
    a("v_cndmask_b32 %s, 0, %s, vcc" % (vr(p+1), vr(t2)))
    a("ds_write_b64 %s, %s" % (vr(a1), vr(p, 2)))
    va.release(m)

def conv_stats_load(a, va, R, sc=""):
    R["st"] = [va(4, 4) for _ in range(2)]
    t = R["t"]
    a("s_lshl_b32 s%d, s%d, 11" % (S_T, S_WAVE))
    a("s_add_u32 s%d, s%d, 0x%x" % (S_T, S_T, WS_ST))
    a("v_lshlrev_b32 %s, 5, v0" % vr(t))
    for i in range(2):
        a("buffer_load_dwordx4 %s, %s, s[%d:%d], s%d offen offset:%d %s" % (vr(R["st"][i], 4), vr(t), SRD_WS, SRD_WS+3, S_T, 16*i, sc))

def conv_make_u(a, va, R):
    m = va.mark()
    xn = [va(8, 2) for _ in range(4)]
    ms = [va(2) for _ in range(4)]
    T = [va(2) for _ in range(2)]; o = [va(2) for _ in range(2)]; adr = va(); z = va(2)
    for i in range(4):
        g = R["st"][i >> 1] + 2*(i & 1)
        a("v_and_b32 %s, 0xffff0000, %s" % (vr(ms[i]+1), vr(g)))
        a("v_rcp_f32 %s, %s" % (vr(ms[i]+1), vr(ms[i]+1)))
        a("v_lshlrev_b32 %s, 16, %s" % (vr(ms[i]), vr(g)))
    a("s_mul_i32 s%d, s%d, %d" % (S_T, S_WAVE, USTR))
    a("s_add_u32 s%d, s%d, %d" % (S_T, S_T, UB))
    a("v_lshlrev_b32 %s, 3, v0" % vr(adr))
    a("v_add_u32 %s, s%d, %s" % (vr(z), S_T, vr(adr)))
    a("v_mov_b32 %s, 0" % vr(o[0])); a("v_mov_b32 %s, 0" % vr(o[0]+1))
    a("s_mov_b32 exec_hi, 0x0fffffff")
    a("ds_write_b64 %s, %s" % (vr(z), vr(o[0], 2)))
    a("s_mov_b32 exec_hi, -1")
    a("s_lshl_b32 s%d, s%d, 9" % (S_T, S_WAVE))
    a("s_add_u32 s%d, s%d, %d" % (S_T, S_T, UB + 480))
    a("v_add_u32 %s, s%d, %s" % (vr(adr), S_T, vr(adr)))
    k = 0
    for jd in range(4):
        for i in range(4):
            t = T[k & 1]; k += 1
            x = R["x"][i] + jd
            a("v_lshlrev_b32 %s, 16, %s" % (vr(t), vr(x)))
            a("v_and_b32 %s, 0xffff0000, %s" % (vr(t+1), vr(x)))
            a("v_pk_add_f32 %s, %s, %s op_sel_hi:[1,0] neg_lo:[0,1] neg_hi:[0,1]" % (vr(t,2), vr(t,2), vr(ms[i],2)))
            a("v_cvt_pk_bf16_f32 %s, %s, %s" % (vr(t+1), vr(t), vr(t+1)))
            a("v_lshlrev_b32 %s, 16, %s" % (vr(t), vr(t+1)))
            a("v_and_b32 %s, 0xffff0000, %s" % (vr(t+1), vr(t+1)))
            a("v_pk_mul_f32 %s, %s, %s op_sel:[0,1] op_sel_hi:[1,1]" % (vr(xn[i]+2*jd, 2), vr(t,2), vr(ms[i],2)))
        for dd in range(2):
            d = 2*jd + dd; oo = o[dd]
            a("v_cvt_pk_bf16_f32 %s, %s, %s" % (vr(oo), vr(xn[0]+d), vr(xn[1]+d)))
            a("v_cvt_pk_bf16_f32 %s, %s, %s" % (vr(oo+1), vr(xn[2]+d), vr(xn[3]+d)))
            a("ds_write_b64 %s, %s offset:%d" % (vr(adr), vr(oo, 2), d*USTR))
    va.release(m)

def conv_main(a, va, R, sc=""):
    m = va.mark()
    sD = R["sD"]
    acc = [va(4, 4) for _ in range(8)]
    A = [[va(4, 4) for _ in range(8)] for _ in range(2)]
    B = [[va(4, 4) for _ in range(8)] for _ in range(2)]
    aA = [va(), va()]; aB = [va(), va()]; aX = [va(), va()]; aU = va(); aO = va()
    t0, t1, t2, t3, t4 = va(), va(), va(), va(), va()
    sB = S_T
    a("s_mul_i32 s%d, s%d, %d" % (sB, S_WAVE, PW))
    a("s_mov_b32 s%d, 0x44432100" % (sB+1))
    a("v_and_b32 %s, 15, v0" % vr(t0))
    a("v_lshrrev_b32 %s, 4, v0" % vr(t1))
    a("v_mov_b32 %s, 0x7654" % vr(t4))
    for e in range(2):
        a("v_lshlrev_b32 %s, 3, %s" % (vr(t2), vr(t1)))
        a("v_sub_u32 %s, %s, %s" % (vr(t2), vr(t0), vr(t2)))
        a("v_add_u32 %s, %d, %s" % (vr(t2), 13 - 4*e + 16, vr(t2)))
        a("v_lshrrev_b32 %s, 4, %s" % (vr(t3), vr(t2)))
        a("v_and_b32 %s, 15, %s" % (vr(t2), vr(t2)))
        a("v_mul_u32_u24 %s, 528, %s" % (vr(aA[e]), vr(t2)))
        a("v_lshl_add_u32 %s, %s, 3, %s" % (vr(aA[e]), vr(t3), vr(aA[e])))
        a("v_add_u32 %s, s%d, %s" % (vr(aA[e]), sB, vr(aA[e])))
        a("v_cmp_gt_u32 vcc, 8, %s" % vr(t2))
        a("v_mov_b32 %s, s%d" % (vr(aX[e]), sB+1))
        a("v_and_b32 %s, 7, %s" % (vr(aB[e]), vr(t2)))
        a("v_cndmask_b32 %s, %s, %s, vcc" % (vr(aX[e]), vr(t4), vr(aX[e])))
        a("v_lshlrev_b32 %s, 2, %s" % (vr(aB[e]), vr(aB[e])))
        a("v_bfe_u32 %s, %s, %s, 4" % (vr(aB[e]), vr(aX[e]), vr(aB[e])))
        a("v_mul_u32_u24 %s, 544, %s" % (vr(aB[e]), vr(aB[e])))
        a("v_cmp_lt_u32 vcc, 11, %s" % vr(t2))
        a("v_lshl_add_u32 %s, %s, 3, %s" % (vr(aB[e]), vr(t3), vr(aB[e])))
        a("v_add_u32 %s, s%d, %s" % (vr(aB[e]), sB, vr(aB[e])))
        a("v_cndmask_b32 %s, 0, 8, vcc" % vr(t2))
        a("v_add_u32 %s, %d, %s" % (vr(aB[e]), REGB - 8, vr(aB[e])))
        a("v_add_u32 %s, %s, %s" % (vr(aB[e]), vr(t2), vr(aB[e])))
        a("v_cmp_eq_u32 vcc, 0, %s" % vr(t3))
        a("v_add_u32 %s, 512, %s" % (vr(t2), vr(aA[e])))
        a("s_nop 0")
        a("v_cndmask_b32 %s, %s, %s, vcc" % (vr(aX[e]), vr(aB[e]), vr(t2)))
    a("s_mul_i32 s%d, s%d, %d" % (sB+1, S_WAVE, USTR))
    a("s_add_u32 s%d, s%d, %d" % (sB+1, sB+1, UB))
    a("v_lshlrev_b32 %s, 5, %s" % (vr(t2), vr(t0)))
    a("v_lshl_add_u32 %s, %s, 4, %s" % (vr(aU), vr(t1), vr(t2)))
    a("v_add_u32 %s, s%d, %s" % (vr(aU), sB+1, vr(aU)))
    a("v_lshl_add_u32 %s, %s, 3, %s" % (vr(aO), vr(t1), vr(t2)))
    a("v_add_u32 %s, s%d, %s" % (vr(aO), sB+1, vr(aO)))
    a("s_waitcnt lgkmcnt(0)")
    a("s_barrier")
    def loads(r):
        b = r & 1; L = []
        for i in range(8):
            t = 8*i + r
            L.append("ds_read_b128 %s, %s offset:%d" % (vr(B[b][i], 4), vr(aU), 512*i + 64*(7-r)))
            for e in range(2):
                if t <= 31: adr, off = aA[e], 16*t
                elif t == 32: adr, off = aX[e], 0
                else: adr, off = aB[e], 16*(t-32)
                L.append("ds_read_b64 %s, %s offset:%d" % (vr(A[b][i]+2*e, 2), vr(adr), off))
        return L
    for x in loads(0): a(x)
    for r in range(8):
        b = r & 1
        L = loads(r+1) if r < 7 else []
        if r == 7:
            L = ["ds_read_b64 %s, %s offset:%d" % (vr(A[0][i], 2), vr(aO), 480 + 512*i) for i in range(8)]
        a("s_waitcnt lgkmcnt(0)")
        li = 0
        for mm in range(8):
            for i in range(mm, 8):
                c = "0" if (r == 0 and mm == 0) else vr(acc[i], 4)
                a("v_mfma_f32_16x16x32_bf16 %s, %s, %s, %s" % (vr(acc[i], 4), vr(A[b][mm], 4), vr(B[b][i-mm], 4), c))
                if li < len(L): a(L[li]); li += 1
    a("s_waitcnt lgkmcnt(0)")
    a("s_nop 4")
    T = [B[0][0], B[0][0]+2, B[0][1], B[0][1]+2]
    for i in range(8):
        o = B[0][2 + (i & 1)]
        for k in range(2):
            y, s = T[2*k], T[2*k+1]
            a("v_cvt_pk_bf16_f32 %s, %s, %s" % (vr(y+1), vr(acc[i]+2*k), vr(acc[i]+2*k+1)))
            a("v_lshlrev_b32 %s, 16, %s" % (vr(s), vr(A[0][i]+k)))
            a("v_and_b32 %s, 0xffff0000, %s" % (vr(s+1), vr(A[0][i]+k)))
            a("v_mul_f32 %s, s%d, %s" % (vr(s), sD+2, vr(s)))
            a("v_mul_f32 %s, s%d, %s" % (vr(s+1), sD+2, vr(s+1)))
            a("v_lshlrev_b32 %s, 16, %s" % (vr(y), vr(y+1)))
            a("v_cvt_pk_bf16_f32 %s, %s, %s" % (vr(s+1), vr(s), vr(s+1)))
            a("v_and_b32 %s, 0xffff0000, %s" % (vr(y+1), vr(y+1)))
            a("v_lshlrev_b32 %s, 16, %s" % (vr(s), vr(s+1)))
            a("v_and_b32 %s, 0xffff0000, %s" % (vr(s+1), vr(s+1)))
            a("v_pk_add_f32 %s, %s, %s" % (vr(y,2), vr(y,2), vr(s,2)))
            a("v_cvt_pk_bf16_f32 %s, %s, %s" % (vr(o+k), vr(y), vr(y+1)))
        a("ds_write_b64 %s, %s offset:%d" % (vr(aO), vr(o, 2), 480 + 512*i))
    a("s_lshl_b32 s%d, s%d, 9" % (sB+1, S_WAVE))
    a("s_add_u32 s%d, s%d, %d" % (sB+1, sB+1, UB + 480))
    a("v_lshlrev_b32 %s, 3, v0" % vr(t0))
    a("v_add_u32 %s, s%d, %s" % (vr(t0), sB+1, vr(t0)))
    a("v_lshlrev_b32 %s, 6, v0" % vr(t1))
    a("v_add_u32 %s, s%d, %s" % (vr(t1), sB, vr(t1)))
    a("v_lshlrev_b32 %s, 4, v0" % vr(t2))
    a("v_add_u32 %s, s%d, %s" % (vr(t3), sB, vr(t2)))
    a("s_lshl_b32 s%d, s%d, 3" % (sB, S_CW))
    a("s_add_u32 s%d, s%d, s%d" % (sB, sB, S_WAVE))
    a("s_lshl_b32 s%d, s%d, 12" % (sB, sB))
    a("s_add_u32 s%d, s%d, 0x%x" % (sB, sB, WS_AT))
    a("s_waitcnt lgkmcnt(0)")
    a("s_barrier")
    Ar = [A[1][k >> 1] + 2*(k & 1) for k in range(8)]
    for k in range(8): a("ds_read_b64 %s, %s offset:%d" % (vr(Ar[k], 2), vr(t0), k*USTR))
    c = 0
    for jd in range(4):
        a("s_waitcnt lgkmcnt(%d)" % (6 - 2*jd))
        for i in range(4):
            y, s = T[2*(c & 1)], T[2*(c & 1)+1]; c += 1
            x = R["x"][i] + jd
            a("v_lshlrev_b32 %s, 16, %s" % (vr(s), vr(x)))
            a("v_and_b32 %s, 0xffff0000, %s" % (vr(s+1), vr(x)))
            for dd in range(2):
                src = Ar[2*jd+dd] + (i >> 1)
                if i & 1: a("v_and_b32 %s, 0xffff0000, %s" % (vr(y+dd), vr(src)))
                else: a("v_lshlrev_b32 %s, 16, %s" % (vr(y+dd), vr(src)))
            a("v_pk_add_f32 %s, %s, %s" % (vr(y,2), vr(y,2), vr(s,2)))
            a("v_cvt_pk_bf16_f32 %s, %s, %s" % (vr(B[1][i]+jd), vr(y), vr(y+1)))
    for i in range(4): a("ds_write_b128 %s, %s offset:%d" % (vr(t1), vr(B[1][i], 4), 16*i))
    a("s_waitcnt lgkmcnt(0)")
    for i in range(4): a("ds_read_b128 %s, %s offset:%d" % (vr(B[1][4+i], 4), vr(t3), 1024*i))
    for i in range(4):
        a("s_waitcnt lgkmcnt(%d)" % (3-i))
        a("buffer_store_dwordx4 %s, %s, s[%d:%d], s%d offen offset:%d %s" % (vr(B[1][4+i], 4), vr(t2), SRD_WS, SRD_WS+3, sB, 1024*i, sc))
    va.release(m)

def k_conv(kernels):
    a = Asm(); va = VAlloc()
    a("s_cmp_ge_u32 s2, 80"); a("s_cbranch_scc1 cv_end")
    load_args(a); wave_id(a, 1)
    a("s_mov_b32 s%d, s2" % S_CW)
    a("s_waitcnt lgkmcnt(0)")
    srd(a, SRD_X, P_U, X_BYTES); srd(a, SRD_WS, P_WS, 32 << 20)
    R = conv_issue_loads(a, va)
    conv_stats_load(a, va, R)
    conv_kgen(a, va, R, 10)
    a("s_waitcnt vmcnt(0)")
    conv_make_u(a, va, R)
    conv_main(a, va, R)
    a.label("cv_end"); a("s_endpgm")
    kernels.append(("cv_kernel", 80, 512, 163840, a.text(), va.hi))
```

```python
from gen_common import *
G1_STAGE = 36864
G1_NB = 4
G1_MISC = G1_STAGE*G1_NB
S_RB, S_CB = 60, 61

def g1_helper(a, va, stamps=False):
    m = va.mark()
    vXo = [va() for _ in range(4)]; vWo = [va() for _ in range(5)]; t0 = va(); t1 = va(); t2 = va()
    sH = S_T; sA = S_T+1; sXs = S_T+2; sWs = S_T+3; sM = S_T+4
    a("s_sub_u32 s%d, s%d, 4" % (sH, S_WAVE))
    a("s_lshl_b32 s%d, s%d, 7" % (sA, S_RB))
    a("s_lshl_b32 s%d, s%d, 5" % (sM, sH))
    a("s_add_u32 s%d, s%d, s%d" % (sA, sA, sM))
    a("v_lshrrev_b32 %s, 3, v0" % vr(t0))
    a("v_and_b32 %s, 7, v0" % vr(t1))
    for i in range(4):
        a("v_add_u32 %s, %d, %s" % (vr(t2), 8*i, vr(t0)))
        a("v_bfe_u32 %s, %s, 1, 3" % (vr(vXo[i]), vr(t2)))
        a("v_xor_b32 %s, %s, %s" % (vr(vXo[i]), vr(vXo[i]), vr(t1)))
        a("v_lshlrev_b32 %s, 4, %s" % (vr(vXo[i]), vr(vXo[i])))
        a("v_add_u32 %s, s%d, %s" % (vr(t2), sA, vr(t2)))
        a("v_mul_u32_u24 %s, 1280, %s" % (vr(t2), vr(t2)))
        a("v_add_u32 %s, %s, %s" % (vr(vXo[i]), vr(vXo[i]), vr(t2)))
        if i: a("v_subrev_u32 %s, %d, %s" % (vr(vXo[i]), 1024*i, vr(vXo[i])))
    a("s_mul_i32 s%d, s%d, 320" % (sA, sH))
    a("s_mul_i32 s%d, s%d, 320" % (sM, S_CB))
    for i in range(5):
        a("v_add_u32 %s, s%d, v0" % (vr(t0), sA))
        if i: a("v_add_u32 %s, %d, %s" % (vr(t0), 64*i, vr(t0)))
        a("v_mul_u32_u24 %s, 3277, %s" % (vr(t1), vr(t0)))
        a("v_lshrrev_b32 %s, 16, %s" % (vr(t1), vr(t1)))
        a("v_mul_u32_u24 %s, 20, %s" % (vr(t2), vr(t1)))
        a("v_sub_u32 %s, %s, %s" % (vr(t0), vr(t0), vr(t2)))
        a("v_bfe_u32 %s, %s, 3, 1" % (vr(t2), vr(t1)))
        a("v_lshlrev_b32 %s, 1, %s" % (vr(t2), vr(t2)))
        a("v_xor_b32 %s, %s, %s" % (vr(t0), vr(t0), vr(t2)))
        a("v_lshlrev_b32 %s, 4, %s" % (vr(t0), vr(t0)))
        a("v_mul_u32_u24 %s, 3456, %s" % (vr(t1), vr(t1)))
        a("v_add3_u32 %s, %s, %s, s%d" % (vr(vWo[i]), vr(t0), vr(t1), sM))
        if 0 < i < 4: a("v_subrev_u32 %s, %d, %s" % (vr(vWo[i]), 1024*i, vr(vWo[i])))
    a("s_lshl_b32 s%d, s%d, 12" % (sA, sH))
    a("s_mul_i32 s%d, s%d, 5120" % (sM, sH))
    a("s_add_u32 s%d, s%d, 16384" % (sM, sM))
    def issue(st):
        buf = (st % G1_NB)*G1_STAGE
        a("s_movk_i32 s%d, %d" % (sXs, st*128))
        a("s_mov_b32 s%d, %d" % (sWs, st*64*3456))
        a("s_add_u32 m0, s%d, %d" % (sA, buf))
        a("s_nop 0")
        for i in range(4):
            a("buffer_load_dwordx4 %s, s[%d:%d], s%d offen offset:%d lds" % (vr(vXo[i]), SRD_X, SRD_X+3, sXs, 1024*i))
        a("s_add_u32 m0, s%d, %d" % (sM, buf))
        a("s_nop 0")
        for i in range(4):
            a("buffer_load_dwordx4 %s, s[%d:%d], s%d offen offset:%d lds" % (vr(vWo[i]), SRD_W, SRD_W+3, sWs, 1024*i))
        a("s_add_u32 m0, s%d, %d" % (sM, buf+4096))
        a("s_nop 0")
        a("buffer_load_dwordx4 %s, s[%d:%d], s%d offen lds" % (vr(vWo[4]), SRD_W, SRD_W+3, sWs))
    for st in range(4): issue(st)
    for b in range(10):
        out = min(9, max(3, b+1)) - b
        a("s_waitcnt vmcnt(%d)" % (9*out))
        a("s_barrier")
        if b >= 2 and b+2 <= 9: issue(b+2)
    va.release(m)

def g1_compute(a, va, stats_wait=None, sc="", stamps=False):
    m = va.mark()
    acc = [[va(4, 4) for t in range(4)] for j in range(5)]
    xf = [[va(4, 4) for t in range(4)] for b in range(2)]
    wf = [[va(4, 4) for j in range(5)] for b in range(2)]
    cs = [va() for j in range(5)]
    vX = [[va() for h in range(2)] for s in range(2)]
    vW = [[[va() for h in range(2)] for s in range(2)] for k in range(3)]
    st = [va(2) for t in range(4)]
    t0, t1, t2, t3 = va(), va(), va(), va()
    sMP, sFP, sOne, sA = S_T, S_T+1, S_T+2, S_T+3
    a("s_lshr_b32 s%d, s%d, 1" % (sMP, S_WAVE))
    a("s_and_b32 s%d, s%d, 1" % (sFP, S_WAVE))
    a("s_mov_b32 s%d, 0x3f803f80" % sOne)
    a("v_and_b32 %s, 15, v0" % vr(t0))
    a("v_lshrrev_b32 %s, 4, v0" % vr(t1))
    a("v_lshrrev_b32 %s, 1, %s" % (vr(t2), vr(t0)))
    a("v_xor_b32 %s, %s, %s" % (vr(t2), vr(t2), vr(t1)))
    a("v_lshlrev_b32 %s, 4, %s" % (vr(t2), vr(t2)))
    a("v_lshl_add_u32 %s, %s, 7, %s" % (vr(t2), vr(t0), vr(t2)))
    a("s_lshl_b32 s%d, s%d, 13" % (sA, sMP))
    a("v_add_u32 %s, s%d, %s" % (vr(t2), sA, vr(t2)))
    a("s_lshl_b32 s%d, s%d, 6" % (sA, sMP))
    a("v_xor_b32 %s, s%d, %s" % (vr(vX[0][0]), sA, vr(t2)))
    a("v_xor_b32 %s, 64, %s" % (vr(vX[0][1]), vr(vX[0][0])))
    for h in range(2): a("v_add_u32 %s, %d, %s" % (vr(vX[1][h]), 2*G1_STAGE, vr(vX[0][h])))
    a("v_lshrrev_b32 %s, 2, %s" % (vr(t2), vr(t0)))
    a("v_lshl_add_u32 %s, %s, 3, %s" % (vr(t2), vr(t1), vr(t2)))
    a("v_mul_u32_u24 %s, 320, %s" % (vr(t2), vr(t2)))
    a("v_and_b32 %s, 3, v0" % vr(t3))
    a("v_lshl_add_u32 %s, %s, 3, %s" % (vr(t2), vr(t3), vr(t2)))
    a("s_mul_i32 s%d, s%d, 10240" % (sA, sMP))
    a("s_add_u32 s%d, s%d, 16384" % (sA, sA))
    a("v_add_u32 %s, s%d, %s" % (vr(t2), sA, vr(t2)))
    a("v_and_b32 %s, 1, %s" % (vr(t3), vr(t1)))
    a("v_lshlrev_b32 %s, 5, %s" % (vr(t3), vr(t3)))
    a("s_mul_i32 s%d, s%d, 192" % (sA, sFP))
    a("v_add3_u32 %s, %s, s%d, %s" % (vr(vW[0][0][0]), vr(t2), sA, vr(t3)))
    a("v_sub_u32 %s, %s, %s" % (vr(vW[1][0][0]), vr(t2), vr(t3)))
    a("v_add_u32 %s, s%d, %s" % (vr(vW[1][0][0]), sA, vr(vW[1][0][0])))
    a("s_lshl_b32 s%d, s%d, 5" % (sA, sFP))
    a("v_xor_b32 %s, s%d, %s" % (vr(t3), sA, vr(t3)))
    a("v_add3_u32 %s, %s, %s, 64" % (vr(vW[2][0][0]), vr(t2), vr(t3)))
    a("v_add_u32 %s, 64, %s" % (vr(vW[2][0][0]), vr(vW[2][0][0])))
    a("s_mul_i32 s%d, s%d, -20480" % (sA, sMP))
    a("s_add_u32 s%d, s%d, 10240" % (sA, sA))
    for k in range(3):
        a("v_add_u32 %s, s%d, %s" % (vr(vW[k][0][1]), sA, vr(vW[k][0][0])))
        for h in range(2): a("v_add_u32 %s, %d, %s" % (vr(vW[k][1][h]), 2*G1_STAGE, vr(vW[k][0][h])))
    for j in range(5): a("v_mov_b32 %s, 0" % vr(cs[j]))
    def stats_load():
        a("s_lshl_b32 s%d, s%d, 1" % (sA, S_RB))
        a("s_add_u32 s%d, s%d, s%d" % (sA, sA, sMP))
        a("s_lshl_b32 s%d, s%d, 9" % (sA, sA))
        a("s_add_u32 s%d, s%d, 0x%x" % (sA, sA, WS_ST))
        a("v_lshlrev_b32 %s, 3, %s" % (vr(t2), vr(t0)))
        for t in range(4):
            a("buffer_load_dwordx2 %s, %s, s[%d:%d], s%d offen offset:%d %s" % (vr(st[t], 2), vr(t2), SRD_WS, SRD_WS+3, sA, 128*t, sc))
    if stats_wait is None: stats_load()
    def loads(n):
        s, h = n >> 1, n & 1
        b = n & 1
        buf = s % G1_NB; se = buf >> 1; off = (buf & 1)*G1_STAGE
        L = []
        for t in range(4):
            L.append("ds_read_b128 %s, %s offset:%d" % (vr(xf[b][t], 4), vr(vX[se][h]), off + 2048*t))
        for j in range(5):
            k = 2 if j == 4 else (j & 1)
            o = off + (0 if j == 4 else 32*j)
            for e in range(2):
                L.append("ds_read_b64_tr_b16 %s, %s offset:%d" % (vr(wf[b][j]+2*e, 2), vr(vW[k][se][h]), o + 1280*e))
        return L
    a("s_barrier")
    for x in loads(0): a(x)
    for n in range(20):
        s, h = n >> 1, n & 1; b = n & 1
        if h == 1 and s+1 <= 9: a("s_barrier")
        L = loads(n+1) if n+1 < 20 else []
        li = 0
        a("s_waitcnt lgkmcnt(8)")
        for j in range(5):
            if j == 1: a("s_waitcnt lgkmcnt(%d)" % min(li, 15))
            for t in range(4):
                c = "0" if n == 0 else vr(acc[j][t], 4)
                a("v_mfma_f32_16x16x32_bf16 %s, %s, %s, %s" % (vr(acc[j][t], 4), vr(wf[b][j], 4), vr(xf[b][t], 4), c))
                if li < len(L): a(L[li]); li += 1
                if h == 0: a("v_dot2c_f32_bf16 %s, s%d, %s" % (vr(cs[j]), sOne, vr(wf[b][j]+t)))
    if stats_wait is not None: stats_wait(stats_load, st)
    a("s_nop 2")
    tm = xf[0][0]
    for j in range(5): a("v_mov_b32 %s, %s" % (vr(tm+j), vr(cs[j])))
    a("s_nop 1")
    for j in range(5): a("v_permlane32_swap_b32 %s, %s" % (vr(cs[j]), vr(tm+j)))
    a("s_nop 1")
    for j in range(5): a("v_add_f32 %s, %s, %s" % (vr(cs[j]), vr(cs[j]), vr(tm+j)))
    for j in range(5): a("v_mov_b32 %s, %s" % (vr(tm+j), vr(cs[j])))
    a("s_nop 1")
    for j in range(5): a("v_permlane16_swap_b32 %s, %s" % (vr(cs[j]), vr(tm+j)))
    a("s_nop 1")
    for j in range(5): a("v_add_f32 %s, %s, %s" % (vr(cs[j]), vr(cs[j]), vr(tm+j)))
    a("s_mul_i32 s%d, s%d, 320" % (sA, S_WAVE))
    a("v_lshlrev_b32 %s, 2, %s" % (vr(t2), vr(t0)))
    a("v_add_u32 %s, s%d, %s" % (vr(t2), sA, vr(t2)))
    a("v_add_u32 %s, %d, %s" % (vr(t2), G1_MISC, vr(t2)))
    for j in range(5): a("ds_write_b32 %s, %s offset:%d" % (vr(t2), vr(cs[j]), 64*j))
    a("s_mul_i32 s%d, s%d, 320" % (sA, sFP))
    a("v_lshlrev_b32 %s, 4, %s" % (vr(t2), vr(t1)))
    a("v_add_u32 %s, s%d, %s" % (vr(t2), sA, vr(t2)))
    a("v_add_u32 %s, %d, %s" % (vr(t2), G1_MISC, vr(t2)))
    a("s_waitcnt lgkmcnt(0)")
    a("s_barrier")
    for j in range(5):
        a("ds_read_b128 %s, %s offset:%d" % (vr(wf[0][j], 4), vr(t2), 64*j))
        a("ds_read_b128 %s, %s offset:%d" % (vr(wf[1][j], 4), vr(t2), 64*j + 640))
    a("s_waitcnt vmcnt(0)")
    for t in range(4):
        a("v_and_b32 %s, 0xffff0000, %s" % (vr(st[t]+1), vr(st[t])))
        a("v_rcp_f32 %s, %s" % (vr(st[t]+1), vr(st[t]+1)))
        a("v_lshlrev_b32 %s, 16, %s" % (vr(st[t]), vr(st[t])))
        a("v_mul_f32 %s, -%s, %s" % (vr(st[t]), vr(st[t]), vr(st[t]+1)))
    a("v_lshlrev_b32 %s, 4, v0" % vr(t3))
    sB = S_T+4; sC = S_T+5
    a("s_lshl_b32 s%d, s%d, 1" % (sA, S_RB))
    a("s_add_u32 s%d, s%d, s%d" % (sA, sA, sMP))
    a("s_mul_i32 s%d, s%d, %d" % (sA, sA, 4*H_MT_STRIDE))
    a("s_mul_i32 s%d, s%d, 5120" % (sB, S_CB))
    a("s_add_u32 s%d, s%d, s%d" % (sA, sA, sB))
    a("s_mul_i32 s%d, s%d, 3072" % (sB, sFP))
    a("s_add_u32 s%d, s%d, s%d" % (sB, sB, sA))
    a("s_lshl_b32 s%d, s%d, 3" % (sC, sFP))
    a("s_add_u32 s%d, s%d, s%d" % (sC, sC, sA))
    a("s_waitcnt lgkmcnt(0)")
    for j in range(5):
        for k in range(2):
            a("v_pk_add_f32 %s, %s, %s" % (vr(wf[0][j]+2*k, 2), vr(wf[0][j]+2*k, 2), vr(wf[1][j]+2*k, 2)))
    pk = [xf[0][0], xf[0][1], xf[0][2], xf[0][3], xf[1][0], xf[1][1]]
    tp = [xf[1][2], xf[1][2]+2, xf[1][3], xf[1][3]+2]
    skip = a.newlabel("g1_skip")
    a("s_cmp_eq_u32 s%d, 10" % S_CB)
    a("s_cselect_b32 s%d, s%d, 0" % (S_T+6, sFP))
    cnt = 0
    def cvt(j, t, dst):
        for k in range(2):
            T = tp[k + 2*(j & 1)]
            a("v_pk_mul_f32 %s, %s, %s op_sel_hi:[1,0]" % (vr(T, 2), vr(wf[0][j]+2*k, 2), vr(st[t], 2)))
            a("v_pk_fma_f32 %s, %s, %s, %s op_sel:[0,1,0] op_sel_hi:[1,1,1]" % (vr(T, 2), vr(acc[j][t]+2*k, 2), vr(st[t], 2), vr(T, 2)))
            a("v_cvt_pk_bf16_f32 %s, %s, %s" % (vr(dst+k), vr(T), vr(T+1)))
            a("v_pk_max_i16 %s, %s, 0" % (vr(dst+k), vr(dst+k)))
    for pr in (0, 2, 1):
        if pr == 1:
            a("s_cmp_lg_u32 s%d, 0" % (S_T+6))
            a("s_cbranch_scc1 %s" % skip)
        for t in range(4):
            d = pk[cnt % len(pk)]; cnt += 1
            if pr < 2:
                cvt(2*pr, t, d); cvt(2*pr+1, t, d+2)
                a("s_add_u32 s%d, s%d, %d" % (sA, sB, t*H_MT_STRIDE))
                a("buffer_store_dwordx4 %s, %s, s[%d:%d], s%d offen offset:%d %s" % (vr(d, 4), vr(t3), SRD_WS, SRD_WS+3, sA, 1024*pr, sc))
            else:
                cvt(4, t, d)
                a("s_add_u32 s%d, s%d, %d" % (sA, sC, t*H_MT_STRIDE))
                a("buffer_store_dwordx2 %s, %s, s[%d:%d], s%d offen offset:2048 %s" % (vr(d, 2), vr(t3), SRD_WS, SRD_WS+3, sA, sc))
    a.label(skip)
    va.release(m)
```

```python
from gen_common import *
G2_STAGE = 24576
G2_NB = 6
G2_OUT = G2_STAGE*G2_NB
S_RB, S_DB = 60, 63
DEPTH = 12

def g2_helper_setup(a, va):
    vO = va(); t0 = va(); t1 = va()
    sH = S_T; sG = S_T+1; sL = S_T+2; sX = S_T+3
    a("s_sub_u32 s%d, s%d, 4" % (sH, S_WAVE))
    a("v_lshrrev_b32 %s, 3, v0" % vr(t0))
    a("v_bfe_u32 %s, v0, 4, 2" % vr(t1))
    a("v_lshlrev_b32 %s, 1, %s" % (vr(t1), vr(t1)))
    a("v_and_b32 %s, 7, v0" % vr(vO))
    a("v_xor_b32 %s, %s, %s" % (vr(vO), vr(vO), vr(t1)))
    a("v_lshlrev_b32 %s, 4, %s" % (vr(vO), vr(vO)))
    a("v_mul_u32_u24 %s, 1280, %s" % (vr(t0), vr(t0)))
    a("v_add_u32 %s, %s, %s" % (vr(vO), vr(vO), vr(t0)))
    a("s_mul_i32 s%d, s%d, %d" % (sG, sH, 48*1280))
    a("s_lshl_b32 s%d, s%d, 7" % (sX, S_DB))
    a("s_add_u32 s%d, s%d, s%d" % (sG, sG, sX))
    a("s_mul_i32 s%d, s%d, %d" % (sL, sH, 48*128))
    def issue(st):
        buf = (st % G2_NB)*G2_STAGE
        for i in range(6):
            a("s_add_u32 m0, s%d, %d" % (sL, buf + 1024*i))
            a("s_add_u32 s%d, s%d, %d" % (sX, sG, st*192*1280 + 10240*i))
            a("buffer_load_dwordx4 %s, s[%d:%d], s%d offen lds" % (vr(vO), SRD_W2, SRD_W2+3, sX))
    return issue

def g2_helper_loop(a, issue, first_issued):
    issued = first_issued
    for b in range(9):
        a("s_waitcnt vmcnt(%d)" % (6*(issued - b - 1)))
        a("s_barrier")
        if b >= 2 and b + 4 <= 8 and b + 4 >= issued:
            while issued <= b + 4: issue(issued); issued += 1

def g2_compute(a, va, h_wait=None, xa_poll=None, sc="", stamps=None):
    m = va.mark()
    acc = [[va(4, 4) for j in range(4)] for t in range(2)]
    wf = [[va(4, 4) for j in range(4)] for b in range(2)]
    hr = [[va(4, 4) for t in range(2)] for d in range(DEPTH)]
    xa = [[va(4, 4) for jj in range(2)] for t in range(2)]
    vW = [[va() for j in range(4)] for k in range(3)]
    vH = va(); vXA = va(); t0, t1, t2, t3 = va(), va(), va(), va()
    vP = va()
    sH = [S_T, S_T+1]; sA = S_T+2; sXA = S_T+3
    a("v_and_b32 %s, 15, v0" % vr(t0))
    a("v_lshrrev_b32 %s, 4, v0" % vr(t1))
    a("v_lshrrev_b32 %s, 2, %s" % (vr(t2), vr(t0)))
    a("v_lshl_add_u32 %s, %s, 2, %s" % (vr(t2), vr(t1), vr(t2)))
    a("v_bfe_u32 %s, %s, 1, 2" % (vr(t3), vr(t2)))
    a("v_lshlrev_b32 %s, 7, %s" % (vr(t2), vr(t2)))
    a("v_and_b32 %s, 3, v0" % vr(vH))
    a("v_lshl_add_u32 %s, %s, 3, %s" % (vr(t2), vr(vH), vr(t2)))
    for j in range(4):
        a("v_xor_b32 %s, %d, %s" % (vr(vH), j, vr(t3)))
        a("v_lshl_add_u32 %s, %s, 5, %s" % (vr(vW[0][j]), vr(vH), vr(t2)))
        for k in (1, 2): a("v_add_u32 %s, %d, %s" % (vr(vW[k][j]), 2*k*G2_STAGE, vr(vW[0][j])))
    a("v_lshlrev_b32 %s, 4, v0" % vr(vH))
    a("s_lshl_b32 s%d, s%d, 2" % (sA, S_RB))
    a("s_add_u32 s%d, s%d, s%d" % (sA, sA, S_WAVE))
    a("s_mul_i32 s%d, s%d, %d" % (sH[0], sA, 2*H_MT_STRIDE))
    a("s_add_u32 s%d, s%d, %d" % (sH[1], sH[0], H_MT_STRIDE))
    a("v_lshlrev_b32 %s, 15, %s" % (vr(vXA), vr(t1)))
    a("v_lshl_add_u32 %s, %s, 4, %s" % (vr(vXA), vr(t0), vr(vXA)))
    a("s_lshl_b32 s%d, s%d, 9" % (sXA, sA))
    a("s_lshl_b32 s%d, s%d, 18" % (sA, S_DB))
    a("s_add_u32 s%d, s%d, s%d" % (sXA, sXA, sA))
    a("s_add_u32 s%d, s%d, 0x%x" % (sXA, sXA, WS_AT))
    q = []
    def hload(n):
        L = []
        for t in range(2):
            if n and n % 4 == 0: L.append("s_add_u32 s%d, s%d, 4096" % (sH[t], sH[t]))
            L.append(("buffer_load_dwordx4 %s, %s, s[%d:%d], s%d offen offset:%d %s" % (vr(hr[n % DEPTH][t], 4), vr(vH), SRD_WS, SRD_WS+3, sH[t], 1024*(n % 4), sc), ("h", n)))
        return L
    def emit(x):
        if isinstance(x, tuple): a(x[0]); q.append(x[1])
        else: a(x)
    def wait_for(tag):
        idx = max(i for i, tg in enumerate(q) if tg == tag)
        return len(q) - 1 - idx
    def xaload():
        L = []
        for jj in range(2):
            if jj: L.append("s_add_u32 s%d, s%d, %d" % (sXA, sXA, 4*32768))
            for t in range(2):
                L.append(("buffer_load_dwordx4 %s, %s, s[%d:%d], s%d offen offset:%d %s" % (vr(xa[t][jj], 4), vr(vXA), SRD_WS, SRD_WS+3, sXA, 256*t, sc), ("xa",)))
        L.append("s_sub_u32 s%d, s%d, %d" % (sXA, sXA, 4*32768))
        return L
    def wloads(n):
        st, s = divmod(n, 6); buf = st % G2_NB
        L = []
        for j in range(4):
            for e in range(2):
                L.append("ds_read_b64_tr_b16 %s, %s offset:%d" % (vr(wf[n & 1][j]+2*e, 2), vr(vW[buf >> 1][j]), (buf & 1)*G2_STAGE + 4096*s + 2048*e))
        return L
    if h_wait is not None: h_wait()
    if stamps: stamps(0)
    for n in range(DEPTH - 1):
        for x in hload(n): emit(x)
    a("s_barrier")
    for x in wloads(0): a(x)
    N_POLL, N_XA = 26, 26 + DEPTH
    for n in range(54):
        b = n & 1
        if (n + 1) % 6 == 0 and n + 1 < 54: a("s_barrier")
        L = wloads(n+1) if n + 1 < 54 else []
        G = hload(n - 1 + DEPTH) if n - 1 + DEPTH < 54 else []
        if n == N_POLL and xa_poll is not None: G = G + xa_poll.issue(vP, t2)
        if n == N_XA: G = G + xaload()
        a("s_waitcnt vmcnt(%d)" % wait_for(("h", n)))
        k = 0
        for j in range(4):
            nl = min(2*j, len(L))
            a("s_waitcnt lgkmcnt(%d)" % (6 - 2*j + nl))
            for t in range(2):
                c = "0" if n == 0 else vr(acc[t][j], 4)
                a("v_mfma_f32_16x16x32_bf16 %s, %s, %s, %s" % (vr(acc[t][j], 4), vr(wf[b][j], 4), vr(hr[n % DEPTH][t], 4), c))
                if k < len(L): a(L[k])
                k += 1
                while G:
                    x = G.pop(0); emit(x)
                    if isinstance(x, tuple): break
        for x in G: emit(x)
    if stamps: stamps(1)
    a("s_waitcnt vmcnt(0)")
    if xa_poll is not None: xa_poll.finish(vP, t2, lambda: [emit(x) for x in xaload()])
    a("s_lshl_b32 s%d, s%d, 12" % (sA, S_WAVE))
    a("s_add_u32 s%d, s%d, %d" % (sA, sA, G2_OUT))
    a("v_lshrrev_b32 %s, 1, %s" % (vr(t2), vr(t0)))
    a("v_lshrrev_b32 %s, 1, %s" % (vr(t3), vr(t1)))
    a("v_xor_b32 %s, %s, %s" % (vr(t2), vr(t2), vr(t3)))
    a("v_and_b32 %s, 1, %s" % (vr(t3), vr(t1)))
    a("v_lshlrev_b32 %s, 3, %s" % (vr(t3), vr(t3)))
    a("v_lshl_add_u32 %s, %s, 7, %s" % (vr(t3), vr(t0), vr(t3)))
    a("v_add_u32 %s, s%d, %s" % (vr(t3), sA, vr(t3)))
    for j in range(4):
        a("v_xor_b32 %s, %d, %s" % (vr(vW[0][j]), 2*j, vr(t2)))
        a("v_lshl_add_u32 %s, %s, 4, %s" % (vr(vW[0][j]), vr(vW[0][j]), vr(t3)))
    T = [wf[0][0], wf[0][0]+2, wf[0][1], wf[0][1]+2]
    O = [wf[0][2], wf[0][2]+2, wf[0][3], wf[0][3]+2]
    c = 0
    for t in range(2):
        for j in range(4):
            o = O[c % 4]; c += 1
            for k in range(2):
                y, s = T[2*k], T[2*k+1]
                x = xa[t][j >> 1] + 2*(j & 1) + k
                a("v_cvt_pk_bf16_f32 %s, %s, %s" % (vr(y+1), vr(acc[t][j]+2*k), vr(acc[t][j]+2*k+1)))
                a("v_lshlrev_b32 %s, 16, %s" % (vr(s), vr(x)))
                a("v_and_b32 %s, 0xffff0000, %s" % (vr(s+1), vr(x)))
                a("v_lshlrev_b32 %s, 16, %s" % (vr(y), vr(y+1)))
                a("v_and_b32 %s, 0xffff0000, %s" % (vr(y+1), vr(y+1)))
                a("v_pk_add_f32 %s, %s, %s" % (vr(y, 2), vr(y, 2), vr(s, 2)))
                a("v_cvt_pk_bf16_f32 %s, %s, %s" % (vr(o+k), vr(y), vr(y+1)))
            a("ds_write_b64 %s, %s offset:%d" % (vr(vW[0][j]), vr(o, 2), 2048*t))
    a("v_lshrrev_b32 %s, 3, v0" % vr(t0))
    a("v_and_b32 %s, 7, v0" % vr(t2))
    a("v_xor_b32 %s, %s, %s" % (vr(t3), vr(t2), vr(t1)))
    a("v_lshlrev_b32 %s, 4, %s" % (vr(t3), vr(t3)))
    a("v_lshl_add_u32 %s, %s, 7, %s" % (vr(t3), vr(t0), vr(t3)))
    a("v_add_u32 %s, s%d, %s" % (vr(t3), sA, vr(t3)))
    a("v_xor_b32 %s, 64, %s" % (vr(vH), vr(t3)))
    a("v_mul_u32_u24 %s, 1280, %s" % (vr(t0), vr(t0)))
    a("v_lshl_add_u32 %s, %s, 4, %s" % (vr(t0), vr(t2), vr(t0)))
    a("s_lshl_b32 s%d, s%d, 2" % (sA, S_RB))
    a("s_add_u32 s%d, s%d, s%d" % (sA, sA, S_WAVE))
    a("s_mul_i32 s%d, s%d, %d" % (sA, sA, 32*1280))
    a("s_lshl_b32 s%d, s%d, 7" % (sXA, S_DB))
    a("s_add_u32 s%d, s%d, s%d" % (sA, sA, sXA))
    a("s_waitcnt lgkmcnt(0)")
    for i in range(4): a("ds_read_b128 %s, %s offset:%d" % (vr(wf[1][i], 4), vr(vH if i & 1 else t3), 1024*i))
    for i in range(4):
        a("s_waitcnt lgkmcnt(%d)" % (3-i))
        a("buffer_store_dwordx4 %s, %s, s[%d:%d], s%d offen" % (vr(wf[1][i], 4), vr(t0), SRD_O, SRD_O+3, sA))
        if i < 3: a("s_add_u32 s%d, s%d, 10240" % (sA, sA))
    va.release(m)

def k_g2(kernels):
    a = Asm(); va = VAlloc()
    a("s_cmp_ge_u32 s2, 160"); a("s_cbranch_scc1 g2_end")
    load_args(a); wave_id(a, 1)
    a("s_and_b32 s60, s2, 7"); a("s_lshr_b32 s63, s2, 3"); a("s_lshl_b32 s60, s60, 1")
    a("s_cmp_ge_u32 s63, 10"); a("s_cselect_b32 s62, 10, 0"); a("s_cselect_b32 s61, 1, 0")
    a("s_sub_u32 s63, s63, s62"); a("s_add_u32 s60, s60, s61")
    a("s_waitcnt lgkmcnt(0)")
    srd(a, SRD_W2, P_W2, W_BYTES); srd(a, SRD_WS, P_WS, 32 << 20); srd(a, SRD_O, P_OUT, X_BYTES)
    a("s_cmp_ge_u32 s%d, 4" % S_WAVE); a("s_cbranch_scc1 g2_help")
    g2_compute(a, va)
    a("s_endpgm")
    a.label("g2_help")
    issue = g2_helper_setup(a, va)
    for st in range(6): issue(st)
    g2_helper_loop(a, issue, 6)
    a.label("g2_end"); a("s_endpgm")
    kernels.append(("g2_kernel", 160, 512, 163840, a.text(), va.hi))
```

```python
from gen_common import *
def role_stats(a, va, s_row0, tag_s=None, sc=""):
    vX = va(20, 4); vO = va(); vS = va(); vT = va(2); vM = va(2); vQ = va(2); vU = va(2)
    a("v_lshrrev_b32 %s, 4, v0" % vr(vT))
    a("v_add_u32 %s, s%d, %s" % (vr(vT), s_row0, vr(vT)))
    a("v_mul_u32_u24 %s, 1280, %s" % (vr(vO), vr(vT)))
    a("v_and_b32 %s, 15, v0" % vr(vT+1))
    a("v_lshl_add_u32 %s, %s, 4, %s" % (vr(vO), vr(vT+1), vr(vO)))
    for j in range(5):
        a("buffer_load_dwordx4 %s, %s, s[%d:%d], 0 offen offset:%d" % (vr(vX+4*j, 4), vr(vO), SRD_X, SRD_X+3, 256*j))
    def rowsum(v):
        for r in (8, 4, 2, 1):
            a("s_nop 1")
            a("v_add_f32_dpp %s, %s, %s row_ror:%d row_mask:0xf bank_mask:0xf" % (vr(v), vr(v), vr(v), r))
    def finish(vm):
        a("s_mov_b32 s%d, 0x3f803f80" % S_T)
        a("v_lshrrev_b32 %s, 4, v0" % vr(vO))
        a("v_add_u32 %s, s%d, %s" % (vr(vO), s_row0, vr(vO)))
        a("v_lshlrev_b32 %s, 3, %s" % (vr(vO), vr(vO)))
        a("v_mov_b32 %s, 0" % vr(vS))
        a("v_mov_b32 %s, 0" % vr(vS+0))
        a("v_mov_b32 %s, 0" % vr(vQ)); a("v_mov_b32 %s, 0" % vr(vQ+1))
        a("s_waitcnt vmcnt(%d)" % vm)
        for i in range(20):
            a("v_dot2c_f32_bf16 %s, s%d, %s" % (vr(vS), S_T, vr(vX+i)))
        a("s_nop 2")
        rowsum(vS)
        a("v_mul_f32 %s, 0x%08x, %s" % (vr(vM), f2u(1.0/640), vr(vS)))
        for i in range(20):
            a("v_lshlrev_b32 %s, 16, %s" % (vr(vU), vr(vX+i)))
            a("v_and_b32 %s, 0xffff0000, %s" % (vr(vU+1), vr(vX+i)))
            a("v_pk_add_f32 %s, %s, %s op_sel_hi:[1,0] neg_lo:[0,1] neg_hi:[0,1]" % (vr(vU,2), vr(vU,2), vr(vM,2)))
            a("v_pk_fma_f32 %s, %s, %s, %s" % (vr(vQ,2), vr(vU,2), vr(vU,2), vr(vQ,2)))
        a("v_add_f32 %s, %s, %s" % (vr(vQ), vr(vQ), vr(vQ+1)))
        rowsum(vQ)
        a("v_mul_f32 %s, 0x%08x, %s" % (vr(vQ), f2u(1.0/640), vr(vQ)))
        a("v_cvt_pk_bf16_f32 %s, %s, %s" % (vr(vQ), vr(vQ), vr(vQ)))
        a("v_lshlrev_b32 %s, 16, %s" % (vr(vQ), vr(vQ)))
        a("v_add_f32 %s, 0x%08x, %s" % (vr(vQ), f2u(1e-5), vr(vQ)))
        a("v_cvt_pk_bf16_f32 %s, %s, %s" % (vr(vQ), vr(vQ), vr(vQ)))
        a("v_lshlrev_b32 %s, 16, %s" % (vr(vQ), vr(vQ)))
        a("v_sqrt_f32 %s, %s" % (vr(vQ), vr(vQ)))
        a("s_nop 0")
        a("v_cvt_pk_bf16_f32 %s, %s, %s" % (vr(vU), vr(vM), vr(vQ)))
        if tag_s is None: a("v_mov_b32 %s, 0" % vr(vU+1))
        else: a("v_mov_b32 %s, s%d" % (vr(vU+1), tag_s))
        a("v_cmp_eq_u32 vcc, 0, %s" % vr(vT+1))
        a("s_mov_b32 s%d, 0x%x" % (S_T, WS_ST))
        a("s_and_saveexec_b64 s[%d:%d], vcc" % (S_T+2, S_T+3))
        a("buffer_store_dwordx2 %s, %s, s[%d:%d], s%d offen %s" % (vr(vU,2), vr(vO), SRD_WS, SRD_WS+3, S_T, sc))
        a("s_mov_b64 exec, s[%d:%d]" % (S_T+2, S_T+3))
    return finish
```

```python
import sys
from gen_common import *
from role_stats import role_stats
import role_g1
KN = "parallel_sum__ssm_conv_s4d__dense_activation_relu__prompt"
hdr = open("cdna_kernels/%s.s.ref" % KN).read().split("; Override launch")[0]
kernels = []

def k_stats():
    a = Asm(); va = VAlloc()
    a("s_cmp_ge_u32 s2, 64"); a("s_cbranch_scc1 st_end")
    load_args(a); wave_id(a, 1)
    a("s_waitcnt lgkmcnt(0)")
    srd(a, SRD_X, P_U, X_BYTES); srd(a, SRD_WS, P_WS, 32 << 20)
    a("s_lshl_b32 s60, s2, 3"); a("s_add_u32 s60, s60, s%d" % S_WAVE); a("s_lshl_b32 s60, s60, 2")
    fin = role_stats(a, va, 60); fin(0)
    a.label("st_end"); a("s_endpgm")
    kernels.append(("st_kernel", 64, 512, 0, a.text(), va.hi))

def k_g1():
    a = Asm(); va = VAlloc()
    a("s_cmp_ge_u32 s2, 176"); a("s_cbranch_scc1 g1_end")
    load_args(a); wave_id(a, 1)
    a("s_and_b32 s60, s2, 7"); a("s_lshr_b32 s61, s2, 3"); a("s_lshl_b32 s60, s60, 1")
    a("s_cmp_ge_u32 s61, 11"); a("s_cselect_b32 s62, 11, 0"); a("s_cselect_b32 s63, 1, 0")
    a("s_sub_u32 s61, s61, s62"); a("s_add_u32 s60, s60, s63")
    a("s_waitcnt lgkmcnt(0)")
    srd(a, SRD_X, P_U, X_BYTES); srd(a, SRD_W, P_W1, W_BYTES); srd(a, SRD_WS, P_WS, 32 << 20)
    a("s_cmp_ge_u32 s%d, 4" % S_WAVE); a("s_cbranch_scc1 g1_help")
    role_g1.g1_compute(a, va)
    a("s_endpgm")
    a.label("g1_help")
    role_g1.g1_helper(a, va)
    a("s_barrier")
    a.label("g1_end"); a("s_endpgm")
    kernels.append(("g1_kernel", 176, 512, 163840, a.text(), va.hi))

which = sys.argv[2].split(",") if len(sys.argv) > 2 else ["stats", "g1", "conv", "g2"]
if "stats" in which: k_stats()
if "g1" in which: k_g1()
if "conv" in which:
    import role_conv; role_conv.k_conv(kernels)
if "g2" in which:
    import role_g2; role_g2.k_g2(kernels)

out = hdr
for k in kernels: out += "; @launch kernel=%s grid=(%d,1,1) block=(%d,1,1) lds=%d\n" % (k[0], k[1], k[2], k[3])
out += '.amdgcn_target "amdgcn-amd-amdhsa--gfx950"\n.text\n'
for k in kernels:
    out += ".globl %s\n.p2align 8\n.type %s,@function\n%s:\n%s" % (k[0], k[0], k[0], k[4])
out += '.section .rodata,"a"\n'
for k in kernels: out += ".p2align 6\n" + kernel_desc(k[0], k[5])
open(sys.argv[1], "w").write(out)
print("vgprs", [(k[0], k[5]) for k in kernels])
```

```python
WS_H     = 0
H_MT_STRIDE = 54*1024
WS_ST    = 0x700000
WS_AT    = 0x710000
WS_STAMP = 0xA00000
WS_CS    = 0x708000
WS_FL    = 0x70C000
X_BYTES  = 2048*640*2
W_BYTES  = 640*1728*2
P_BYTES  = 640*128*2

class Asm:
    def __init__(s):
        s.l = []; s.uid = 0
    def __call__(s, t):
        for line in t.split("\n"):
            line = line.strip()
            if line: s.l.append("    " + line)
    def label(s, n): s.l.append(n + ":")
    def newlabel(s, p="L"):
        s.uid += 1; return "%s_%d" % (p, s.uid)
    def comment(s, t): s.l.append("    ; " + t)
    def text(s): return "\n".join(s.l) + "\n"

def vr(b, n=1):
    return "v%d" % b if n == 1 else "v[%d:%d]" % (b, b+n-1)
def sr(b, n=1):
    return "s%d" % b if n == 1 else "s[%d:%d]" % (b, b+n-1)

class VAlloc:
    def __init__(s, start=1, limit=256): s.n = start; s.limit = limit; s.hi = start
    def __call__(s, n=1, align=None):
        if align is None: align = 2 if n >= 2 else 1
        s.n = (s.n + align - 1)//align*align
        b = s.n; s.n += n; s.hi = max(s.hi, s.n)
        assert s.n <= s.limit, "out of vgprs"
        return b
    def mark(s): return s.n
    def release(s, m): s.n = m

S_WG   = 2
S_PTR  = 4
P_U, P_LOGA, P_AIM, P_CRE, P_CIM, P_LOGDT, P_DSK = 4, 6, 8, 10, 12, 14, 16
P_W1, P_W2, P_OUT, P_DBG = 20, 22, 24, 26
P_WS = 28
S_WAVE = 30
SRD_X  = 32
SRD_W  = 36
SRD_WS = 40
SRD_O  = 44
SRD_D  = 48
S_T = 52
SRD_W2 = 72
S_NONCE = 67

def load_args(a):
    a("s_load_dwordx16 s[4:19], s[0:1], 0")
    a("s_load_dwordx8 s[20:27], s[0:1], 64")
    a("s_load_dwordx2 s[28:29], s[0:1], 96")

def srd(a, d, p, nbytes):
    a("s_mov_b32 s%d, s%d" % (d, p))
    a("s_and_b32 s%d, s%d, 0xffff" % (d+1, p+1))
    a("s_mov_b32 s%d, 0x%x" % (d+2, nbytes))
    a("s_mov_b32 s%d, 0x20000" % (d+3))

def wave_id(a, vtmp):
    a("v_lshrrev_b32 %s, 6, v0" % vr(vtmp))
    a("v_and_b32 v0, 63, v0")
    a("v_readfirstlane_b32 s%d, %s" % (S_WAVE, vr(vtmp)))

S_STAMP = 80
class Stamps:
    def __init__(s, a, enable, area=0): s.a = a; s.en = enable; s.area = area; s.mx = 0
    def __call__(s, k):
        if not s.en: return
        assert k < 10
        s.a("%s s[%d:%d]" % (STAMPOP, S_STAMP+2*k, S_STAMP+2*k+1))
    def clear(s):
        if not s.en: return
        for k in range(10): s.a("s_mov_b32 s%d, 0" % (S_STAMP+2*k))
        s.a("s_memtime s[76:77]")
    def flush(s):
        if not s.en: return
        a = s.a
        a("s_lshl_b32 s%d, s%d, 3" % (S_T, S_WG))
        a("s_add_u32 s%d, s%d, s%d" % (S_T, S_T, S_WAVE))
        a("s_lshl_b32 s%d, s%d, 6" % (S_T, S_T))
        a("s_add_u32 s%d, s%d, 0x%x" % (S_T, S_T, WS_STAMP + s.area*0x20000))
        a("s_waitcnt lgkmcnt(0) vmcnt(0)")
        a("%s s[%d:%d]" % (STAMPOP, S_STAMP+18, S_STAMP+19))
        a("s_memtime s[78:79]")
        a("s_waitcnt lgkmcnt(0)")
        a("s_sub_u32 s76, s78, s76")
        a("s_mov_b64 exec, 1")
        a("v_mov_b32 v1, 0")
        for k in range(10):
            a("v_mov_b32 v%d, s%d" % (2+k, S_STAMP+2*k))
            a("buffer_store_dword v%d, v1, s[%d:%d], s%d offen offset:%d" % (2+k, SRD_WS, SRD_WS+3, S_T, 4*k))
        a("v_mov_b32 v12, s76")
        a("buffer_store_dword v12, v1, s[%d:%d], s%d offen offset:40" % (SRD_WS, SRD_WS+3, S_T))

def kernel_desc(name, vgprs, sgprs=102):
    acc = (vgprs + 3)//4*4
    return """.amdhsa_kernel %s
  .amdhsa_next_free_vgpr %d
  .amdhsa_next_free_sgpr %d
  .amdhsa_accum_offset %d
  .amdhsa_group_segment_fixed_size 0
  .amdhsa_kernarg_size 104
  .amdhsa_user_sgpr_count 2
  .amdhsa_user_sgpr_kernarg_segment_ptr 1
  .amdhsa_system_sgpr_workgroup_id_x 1
  .amdhsa_float_denorm_mode_32 3
.end_amdhsa_kernel
""" % (name, vgprs, sgprs, acc)

def interleave(a, mfmas, fillers, per_gap=None):
    fi = 0
    n = len(mfmas)
    for i, m in enumerate(mfmas):
        a(m)
        remaining_gaps = n - i
        want = -(-(len(fillers) - fi)//remaining_gaps) if per_gap is None else per_gap
        cnt = 0
        while fi < len(fillers) and cnt < want:
            a(fillers[fi]); fi += 1; cnt += 1
    while fi < len(fillers):
        a(fillers[fi]); fi += 1

import struct
import os
STAMPS = bool(int(os.environ.get('STAMPS','0')))
STAMPOP = 's_memtime' if os.environ.get('STAMPS') == '2' else 's_memrealtime'
def f2u(x): return struct.unpack("<I", struct.pack("<f", x))[0]

def nonce_issue(a, vN, vZ):
    a("v_mov_b32 %s, 0" % vr(vZ))
    a("global_load_dword %s, %s, s[%d:%d] sc1" % (vr(vN), vr(vZ), P_DBG, P_DBG+1))
def nonce_finish(a, vN, vZ):
    ok = a.newlabel("nz_ok"); lp = a.newlabel("nz_lp")
    a.label(lp)
    a("v_readfirstlane_b32 s%d, %s" % (S_NONCE, vr(vN)))
    a("s_cmp_lg_u32 s%d, 0" % S_NONCE)
    a("s_cbranch_scc1 %s" % ok)
    a("v_mov_b32 %s, 0" % vr(vZ))
    a("global_load_dword %s, %s, s[%d:%d] sc1" % (vr(vN), vr(vZ), P_DBG, P_DBG+1))
    a("s_waitcnt vmcnt(0)")
    a("s_branch %s" % lp)
    a.label(ok)
def tags_check(a, tags, t0, t1, fail):
    tags = list(tags)
    for op, t in (("v_min3_u32", t0), ("v_max3_u32", t1)):
        a("%s %s, %s, %s, %s" % (op, vr(t), vr(tags[0]), vr(tags[1 % len(tags)]), vr(tags[2 % len(tags)])))
        for i in range(3, len(tags), 2):
            a("%s %s, %s, %s, %s" % (op, vr(t), vr(t), vr(tags[i]), vr(tags[min(i+1, len(tags)-1)])))
    a("v_cmp_ne_u32 vcc, s%d, %s" % (S_NONCE, vr(t0)))
    a("s_cbranch_vccnz %s" % fail)
    a("v_cmp_ne_u32 vcc, s%d, %s" % (S_NONCE, vr(t1)))
    a("s_cbranch_vccnz %s" % fail)
def flag_store(a, soff_s, t0, t1):
    a("v_mov_b32 %s, s%d" % (vr(t0), S_NONCE))
    a("v_mov_b32 %s, 0" % vr(t1))
    a("s_mov_b64 exec, 1")
    a("buffer_store_dword %s, %s, s[%d:%d], s%d offen sc1" % (vr(t0), vr(t1), SRD_WS, SRD_WS+3, soff_s))
    a("s_mov_b64 exec, -1")
```

```python
from gen_common import *
import math
PW = 15872
TOFF = 12800
REGB = 8448
UB = 8*PW
USTR = 4576
S_CW = 66
LOG2E = 1.4426950408889634
L2E_HI = f2u(LOG2E); L2E_LO = f2u(LOG2E - struct.unpack("<f", struct.pack("<f", LOG2E))[0])

def exp_bf16(a, dst, src, t0, t1, sH, sL, sN):
    a("v_mul_f32 %s, s%d, %s" % (vr(t0), sH, vr(src)))
    a("v_fma_f32 %s, %s, s%d, -%s" % (vr(t1), vr(src), sH, vr(t0)))
    a("v_fmac_f32 %s, s%d, %s" % (vr(t1), sL, vr(src)))
    a("v_exp_f32 %s, %s" % (vr(t0), vr(t0)))
    a("v_mul_f32 %s, s%d, %s" % (vr(t1), sN, vr(t1)))
    a("v_fma_f32 %s, %s, %s, %s" % (vr(t0), vr(t0), vr(t1), vr(t0)))
    a("v_cvt_pk_bf16_f32 %s, %s, %s" % (vr(t0), vr(t0), vr(t0)))
    a("v_lshlrev_b32 %s, 16, %s" % (vr(dst), vr(t0)))

def cmul(a, z, x, y, t):
    a("v_pk_mul_f32 %s, %s, %s op_sel_hi:[1,0]" % (vr(t,2), vr(x,2), vr(y,2)))
    a("v_pk_fma_f32 %s, %s, %s, %s op_sel:[1,1,0] op_sel_hi:[0,1,1] neg_lo:[1,0,0]" % (vr(z,2), vr(x,2), vr(y,2), vr(t,2)))

def conv_issue_loads(a, va, sc=""):
    R = {}
    R["par"] = [va() for _ in range(4)]
    R["x"] = [va(4, 4) for _ in range(4)]
    R["st"] = [va(4, 4) for _ in range(2)]
    t = va(); R["t"] = t
    sD = S_T+8; R["sD"] = sD
    a("s_lshl_b32 s%d, s%d, 3" % (sD, S_CW))
    a("s_add_u32 s%d, s%d, s%d" % (sD, sD, S_WAVE))
    a("s_lshl_b32 s%d, s%d, 8" % (S_T, sD))
    a("v_lshlrev_b32 %s, 2, v0" % vr(t))
    a("v_add_u32 %s, s%d, %s" % (vr(t), S_T, vr(t)))
    for i, p in enumerate((P_LOGA, P_AIM, P_CRE, P_CIM)):
        a("global_load_dword %s, %s, s[%d:%d]" % (vr(R["par"][i]), vr(t), p, p+1))
    a("s_lshr_b32 s%d, s%d, 1" % (S_T, sD))
    a("s_lshl_b32 s%d, s%d, 2" % (S_T, S_T))
    a("s_load_dword s%d, s[%d:%d], s%d" % (sD+1, P_LOGDT, P_LOGDT+1, S_T))
    a("s_load_dword s%d, s[%d:%d], s%d" % (sD+2, P_DSK, P_DSK+1, S_T))
    return R

def conv_issue_x(a, R):
    t = R["t"]
    a("s_mul_i32 s%d, s%d, %d" % (S_T, S_WAVE, 256*1280))
    a("s_lshl_b32 s%d, s%d, 4" % (S_T+1, S_CW))
    a("s_add_u32 s%d, s%d, s%d" % (S_T, S_T, S_T+1))
    if os.environ.get("XMAP") == "1":
        a("v_mul_u32_u24 %s, 1280, v0" % vr(t))
        for i in range(4):
            a("buffer_load_dwordx4 %s, %s, s[%d:%d], s%d offen" % (vr(R["x"][i], 4), vr(t), SRD_X, SRD_X+3, S_T))
            a("s_add_u32 s%d, s%d, %d" % (S_T, S_T, 64*1280))
        return
    a("v_mul_u32_u24 %s, 5120, v0" % vr(t))
    for i in range(4):
        a("buffer_load_dwordx4 %s, %s, s[%d:%d], s%d offen offset:%d" % (vr(R["x"][i], 4), vr(t), SRD_X, SRD_X+3, S_T, 1280*i))

def colsum_issue(a, va, s_blk):
    W = [va(4, 4) for _ in range(5)]; D = va(4, 4); I = va(4, 4); t0 = va(); t1 = va()
    a("s_mul_i32 s%d, s%d, %d" % (S_T, S_WAVE, 80*3456))
    a("s_lshl_b32 s%d, s%d, 6" % (S_T+1, s_blk))
    a("s_add_u32 s%d, s%d, s%d" % (S_T, S_T, S_T+1))
    a("v_lshrrev_b32 %s, 2, v0" % vr(t0))
    a("v_mul_u32_u24 %s, 3456, %s" % (vr(t0), vr(t0)))
    a("v_and_b32 %s, 3, v0" % vr(t1))
    a("v_lshl_add_u32 %s, %s, 4, %s" % (vr(t0), vr(t1), vr(t0)))
    for i in range(5):
        a("buffer_load_dwordx4 %s, %s, s[%d:%d], s%d offen" % (vr(W[i], 4), vr(t0), SRD_W, SRD_W+3, S_T))
        if i < 4: a("s_add_u32 s%d, s%d, %d" % (S_T, S_T, 16*3456))
    def finish():
        XO = 14416
        a("v_and_b32 %s, 15, v0" % vr(t0))
        a("v_and_b32 %s, 1, v0" % vr(t1))
        a("v_lshlrev_b32 %s, 4, %s" % (vr(t1), vr(t1)))
        a("v_mov_b32 %s, 0x3f80" % vr(D))
        a("v_lshlrev_b32 %s, %s, %s" % (vr(t1), vr(t1), vr(D)))
        a("v_lshrrev_b32 %s, 1, %s" % (vr(t0), vr(t0)))
        for k in range(4):
            a("v_cmp_eq_u32 vcc, %d, %s" % (k, vr(t0)))
            a("s_nop 1")
            a("v_cndmask_b32 %s, 0, %s, vcc" % (vr(I+k), vr(t1)))
        a("s_nop 1")
        for i in range(5):
            a("v_mfma_f32_16x16x32_bf16 %s, %s, %s, %s" % (vr(D, 4), vr(I, 4), vr(W[i], 4), "0" if i == 0 else vr(D, 4)))
        a("v_and_b32 %s, 3, v0" % vr(t0))
        a("v_lshlrev_b32 %s, 5, %s" % (vr(t0), vr(t0)))
        a("v_lshrrev_b32 %s, 4, v0" % vr(t1))
        a("v_lshl_add_u32 %s, %s, 4, %s" % (vr(t0), vr(t1), vr(t0)))
        a("s_lshl_b32 s%d, s%d, 7" % (S_T, S_WAVE))
        a("v_add_u32 %s, s%d, %s" % (vr(t0), S_T, vr(t0)))
        a("s_nop 3")
        for r in (4, 8):
            for k in range(4):
                a("v_add_f32_dpp %s, %s, %s row_ror:%d row_mask:0xf bank_mask:0xf" % (vr(D+k), vr(D+k), vr(D+k), r))
        a("s_mov_b32 exec_lo, 0x000f000f"); a("s_mov_b32 exec_hi, 0")
        a("ds_write_b128 %s, %s offset:%d" % (vr(t0), vr(D, 4), XO))
        a("s_mov_b64 exec, -1")
        a("s_waitcnt lgkmcnt(0)")
        a("s_barrier")
        done = a.newlabel("cs_done")
        a("s_cmp_lg_u32 s%d, 0" % S_WAVE)
        a("s_cbranch_scc1 %s" % done)
        a("v_and_b32 %s, 15, v0" % vr(t0))
        a("v_lshlrev_b32 %s, 3, %s" % (vr(t1), vr(t0)))
        for k in range(8): a("ds_read_b64 %s, %s offset:%d" % (vr(W[k >> 1] + 2*(k & 1), 2), vr(t1), XO + 128*k))
        a("v_lshlrev_b32 %s, 4, %s" % (vr(t0), vr(t0)))
        a("s_lshl_b32 s%d, s%d, 8" % (S_T, s_blk))
        a("s_add_u32 s%d, s%d, 0x%x" % (S_T, S_T, WS_CS))
        a("v_mov_b32 %s, s%d" % (vr(D+2), S_NONCE)); a("v_mov_b32 %s, s%d" % (vr(D+3), S_NONCE))
        a("s_waitcnt lgkmcnt(0)")
        a("v_pk_add_f32 %s, %s, %s" % (vr(D, 2), vr(W[0], 2), vr(W[0]+2, 2)))
        for k in range(2, 8): a("v_pk_add_f32 %s, %s, %s" % (vr(D, 2), vr(D, 2), vr(W[k >> 1] + 2*(k & 1), 2)))
        a("s_mov_b64 exec, 0xffff")
        a("buffer_store_dwordx4 %s, %s, s[%d:%d], s%d offen sc1" % (vr(D, 4), vr(t0), SRD_WS, SRD_WS+3, S_T))
        a("s_mov_b64 exec, -1")
        a.label(done)
    return finish

def conv_kgen(a, va, R, vm_params, stamps=None, hook=None):
    m = va.mark()
    sD = R["sD"]; sH, sL, sN, sB = S_T, S_T+1, S_T+2, S_T+3
    D = va(16, 4)
    fa = [va(4, 4) for _ in range(2)]; fb = [va(4, 4) for _ in range(2)]
    dt = va(); E1, E8, E256, Y, T = va(2), va(2), va(2), va(2), va(2)
    X = [va(2) for _ in range(8)]
    t0, t1, t2, t3 = va(), va(), va(), va()
    vW = va(); vR = va(); pk = [va() for _ in range(4)]
    a("s_mov_b32 s%d, 0x%08x" % (sH, L2E_HI)); a("s_mov_b32 s%d, 0x%08x" % (sL, L2E_LO)); a("s_mov_b32 s%d, 0x%08x" % (sN, f2u(math.log(2.0))))
    a("s_mul_i32 s%d, s%d, %d" % (sB, S_WAVE, PW))
    a("v_lshlrev_b32 %s, 2, v0" % vr(vW))
    a("v_add_u32 %s, s%d, %s" % (vr(vW), sB, vr(vW)))
    a("v_and_b32 %s, 31, v0" % vr(t0))
    a("v_mul_u32_u24 %s, 272, %s" % (vr(t0), vr(t0)))
    a("v_lshrrev_b32 %s, 5, v0" % vr(t1))
    a("v_lshl_add_u32 %s, %s, 4, %s" % (vr(t0), vr(t1), vr(t0)))
    a("v_add_u32 %s, s%d, %s" % (vr(vR), sB, vr(t0)))
    a("s_waitcnt lgkmcnt(0)")
    a("s_and_b32 s%d, s%d, 1" % (sB+1, sD))
    a("s_lshl_b32 s%d, s%d, 4" % (sB+1, sB+1))
    a("s_lshr_b32 s%d, s%d, s%d" % (sD+1, sD+1, sB+1)); a("s_lshl_b32 s%d, s%d, 16" % (sD+1, sD+1))
    a("s_lshr_b32 s%d, s%d, s%d" % (sD+2, sD+2, sB+1)); a("s_lshl_b32 s%d, s%d, 16" % (sD+2, sD+2))
    a("v_mov_b32 %s, s%d" % (vr(t2), sD+1))
    exp_bf16(a, dt, t2, t0, t1, sH, sL, sN)
    if vm_params is not None: a("s_waitcnt vmcnt(%d)" % vm_params)
    if stamps: stamps(2)
    cnt = [0]
    def put(row, z, neg):
        p = pk[cnt[0] % 4]; cnt[0] += 1
        a("v_cvt_pk_bf16_f32 %s, %s, %s%s" % (vr(p), vr(z), "-" if neg else "", vr(z+1)))
        a("ds_write_b32 %s, %s offset:%d" % (vr(vW), vr(p), row*272))
    for ps in range(2):
        def unp(dst, src):
            if ps == 0: a("v_lshlrev_b32 %s, 16, %s" % (vr(dst), vr(src)))
            else: a("v_and_b32 %s, 0xffff0000, %s" % (vr(dst), vr(src)))
        par = R["par"]
        unp(t2, par[0])
        exp_bf16(a, t2, t2, t0, t1, sH, sL, sN)
        a("v_mul_f32 %s, %s, %s" % (vr(t2), vr(t2), vr(dt)))
        a("v_mul_f32 %s, s%d, %s" % (vr(t2), sH, vr(t2)))
        unp(t3, par[1])
        a("v_mul_f32 %s, %s, %s" % (vr(t3), vr(t3), vr(dt)))
        a("v_mul_f32 %s, 0.15915494, %s" % (vr(t3), vr(t3)))
        for E, sc_ in ((E1, 1.0), (E8, 8.0), (E256, 256.0)):
            a("v_mul_f32 %s, 0x%08x, %s" % (vr(t0), f2u(-sc_), vr(t2)))
            a("v_mul_f32 %s, 0x%08x, %s" % (vr(t1), f2u(sc_), vr(t3)))
            a("v_exp_f32 %s, %s" % (vr(t0), vr(t0)))
            a("v_fract_f32 %s, %s" % (vr(t1), vr(t1)))
            a("v_cos_f32 %s, %s" % (vr(E), vr(t1)))
            a("v_sin_f32 %s, %s" % (vr(E+1), vr(t1)))
            a("s_nop 0")
            a("v_mul_f32 %s, %s, %s" % (vr(E), vr(E), vr(t0)))
            a("v_mul_f32 %s, %s, %s" % (vr(E+1), vr(E+1), vr(t0)))
        unp(X[0], par[2]); unp(X[0]+1, par[3])
        a("v_add_f32 %s, %s, %s" % (vr(t0), vr(dt), vr(dt)))
        a("v_mul_f32 %s, %s, %s" % (vr(X[0]), vr(X[0]), vr(t0)))
        a("v_mul_f32 %s, %s, %s" % (vr(X[0]+1), vr(X[0]+1), vr(t0)))
        if ps == 1: a("s_waitcnt lgkmcnt(0)")
        a("v_mov_b32 %s, 0x3f80" % vr(pk[3]))
        a("ds_write_b32 %s, %s offset:0" % (vr(vW), vr(pk[3])))
        put(1, E8, False)
        cmul(a, Y, E8, E8, T); put(2, Y, False)
        for q in range(3, 32):
            cmul(a, Y, Y, E8, T); put(q, Y, False)
        put(32, X[0], True)
        for i in range(1, 8):
            cmul(a, X[i], X[i-1], E1, T); put(32+i, X[i], True)
        for k, i in enumerate((0, 2, 4, 6)):
            cmul(a, X[i], X[i], E256, T); put(40+k, X[i], True)
        for k in range(2):
            for kk, i in enumerate((0, 4)):
                cmul(a, X[i], X[i], E256, T); put(44+2*k+kk, X[i], True)
        for k in range(5):
            cmul(a, X[0], X[0], E256, T); put(48+k, X[0], True)
        a("s_waitcnt lgkmcnt(0)")
        a("ds_read_b128 %s, %s offset:%d" % (vr(fa[0], 4), vr(vR), 32*272))
        a("ds_read_b128 %s, %s offset:%d" % (vr(fb[0], 4), vr(vR), 0))
        for s in range(8):
            b = s & 1
            if s < 7:
                a("ds_read_b128 %s, %s offset:%d" % (vr(fa[b^1], 4), vr(vR), 32*272 + 32*(s+1)))
                a("ds_read_b128 %s, %s offset:%d" % (vr(fb[b^1], 4), vr(vR), 32*(s+1)))
                a("s_waitcnt lgkmcnt(2)")
            else: a("s_waitcnt lgkmcnt(0)")
            c = "0" if (ps == 0 and s == 0) else vr(D, 16)
            a("v_mfma_f32_32x32x16_bf16 %s, %s, %s, %s" % (vr(D, 16), vr(fa[b], 4), vr(fb[b], 4), c))
    if hook is not None: hook()
    if stamps: stamps(3)
    q, h = t0, t1
    a("v_and_b32 %s, 31, v0" % vr(q)); a("v_lshrrev_b32 %s, 5, v0" % vr(h))
    a("s_add_u32 s%d, s%d, %d" % (sB+1, sB, TOFF))
    a0, a1, a2, a3 = pk
    a("v_lshlrev_b32 %s, 5, %s" % (vr(a0), vr(q)))
    a("v_lshl_add_u32 %s, %s, 4, %s" % (vr(a0), vr(h), vr(a0)))
    a("v_add_u32 %s, s%d, %s" % (vr(a0), sB+1, vr(a0)))
    a("v_cmp_eq_u32 vcc, 0, %s" % vr(h))
    a("v_lshlrev_b32 %s, 4, %s" % (vr(t2), vr(q)))
    a("v_lshlrev_b32 %s, 3, %s" % (vr(t3), vr(q)))
    a("v_add_u32 %s, %d, %s" % (vr(t2), 256*4, vr(t2)))
    a("v_add_u32 %s, %d, %s" % (vr(t3), 384*4, vr(t3)))
    a("v_cndmask_b32 %s, %s, %s, vcc" % (vr(a1), vr(t3), vr(t2)))
    a("v_add_u32 %s, 8, %s" % (vr(t2), vr(t2)))
    a("v_add_u32 %s, 256, %s" % (vr(t3), vr(t3)))
    a("v_cndmask_b32 %s, %s, %s, vcc" % (vr(a2), vr(t3), vr(t2)))
    a("v_add_u32 %s, s%d, %s" % (vr(a1), sB+1, vr(a1)))
    a("v_add_u32 %s, s%d, %s" % (vr(a2), sB+1, vr(a2)))
    a("v_lshlrev_b32 %s, 2, %s" % (vr(a3), vr(q)))
    a("v_lshl_add_u32 %s, %s, 9, %s" % (vr(a3), vr(h), vr(a3)))
    a("v_add_u32 %s, s%d, %s" % (vr(a3), sB+1, vr(a3)))
    a("ds_write_b128 %s, %s" % (vr(a0), vr(D, 4)))
    a("ds_write_b64 %s, %s" % (vr(a1), vr(D+4, 2)))
    a("ds_write_b64 %s, %s" % (vr(a2), vr(D+6, 2)))
    for p in range(4): a("ds_write_b32 %s, %s offset:%d" % (vr(a3), vr(D+8+p), 2048 + 128*p))
    lo, qq = t0, t1
    a("v_and_b32 %s, 15, v0" % vr(lo)); a("v_lshrrev_b32 %s, 4, v0" % vr(qq))
    a("v_lshlrev_b32 %s, 6, %s" % (vr(a0), vr(lo)))
    a("v_lshl_add_u32 %s, %s, 4, %s" % (vr(a0), vr(qq), vr(a0)))
    a("v_add_u32 %s, s%d, %s" % (vr(a0), sB+1, vr(a0)))
    a("v_lshlrev_b32 %s, 5, %s" % (vr(a1), vr(lo)))
    a("v_lshl_add_u32 %s, %s, 3, %s" % (vr(a1), vr(qq), vr(a1)))
    a("v_add_u32 %s, s%d, %s" % (vr(a1), sB+1, vr(a1)))
    a("v_and_b32 %s, 31, v0" % vr(t2)); a("v_lshrrev_b32 %s, 5, v0" % vr(t3))
    a("v_lshlrev_b32 %s, 4, %s" % (vr(a2), vr(t2)))
    a("v_lshl_add_u32 %s, %s, 3, %s" % (vr(a2), vr(t3), vr(a2)))
    a("v_add_u32 %s, s%d, %s" % (vr(a2), sB+1, vr(a2)))
    a("v_lshlrev_b32 %s, 3, v0" % vr(a3))
    a("v_add_u32 %s, s%d, %s" % (vr(a3), sB+1, vr(a3)))
    a("v_mov_b32 %s, s%d" % (vr(vR), sB+1))
    r0 = D; r1 = D+8; r2 = D+12; r3 = fa[0]; rz = fa[1]
    a("s_waitcnt lgkmcnt(0)")
    a("ds_read_b128 %s, %s" % (vr(r0, 4), vr(a0)))
    a("ds_read_b128 %s, %s offset:16" % (vr(r0+4, 4), vr(a0)))
    a("ds_read_b64 %s, %s offset:1024" % (vr(r1, 2), vr(a1)))
    a("ds_read_b64 %s, %s offset:1032" % (vr(r1+2, 2), vr(a1)))
    a("ds_read_b64 %s, %s offset:1536" % (vr(r2, 2), vr(a2)))
    a("ds_read_b32 %s, %s offset:1544" % (vr(r2+2), vr(a2)))
    a("ds_read_b64 %s, %s offset:2048" % (vr(r3, 2), vr(a3)))
    a("ds_read_b32 %s, %s offset:2056" % (vr(r3+2), vr(a3)))
    a("ds_read_b128 %s, %s" % (vr(rz, 4), vr(vR)))
    a("v_mul_u32_u24 %s, %d, %s" % (vr(a0), 4*528, vr(qq)))
    a("v_lshl_add_u32 %s, %s, 3, %s" % (vr(a0), vr(lo), vr(a0)))
    a("v_add_u32 %s, s%d, %s" % (vr(a0), sB, vr(a0)))
    a("v_mul_u32_u24 %s, %d, %s" % (vr(a2), 8*528, vr(t3)))
    a("v_lshl_add_u32 %s, %s, 3, %s" % (vr(a2), vr(t2), vr(a2)))
    a("v_add_u32 %s, s%d, %s" % (vr(a2), sB, vr(a2)))
    a("v_lshlrev_b32 %s, 3, v0" % vr(a3))
    a("v_add_u32 %s, s%d, %s" % (vr(a3), sB, vr(a3)))
    a("v_mul_u32_u24 %s, 528, %s" % (vr(a1), vr(lo)))
    a("v_add_u32 %s, s%d, %s" % (vr(a1), sB, vr(a1)))
    a("v_cmp_eq_u32 vcc, 63, v0")
    a("s_waitcnt lgkmcnt(0)")
    a("s_nop 1")
    a("v_cndmask_b32 %s, %s, %s, vcc" % (vr(r0+6), vr(r0+6), vr(r0+5)))
    a("v_cndmask_b32 %s, %s, %s, vcc" % (vr(r0+5), vr(r0+5), vr(r0+4)))
    a("v_cndmask_b32 %s, %s, %s, vcc" % (vr(r1+3), vr(r1+3), vr(r1+2)))
    W = X + [E1, E8, E256, Y]
    wc = [0]
    def win(adr, off, v3, v2, v1, v0_):
        p = W[wc[0] % len(W)]; wc[0] += 1
        a("v_cvt_pk_bf16_f32 %s, %s, %s" % (vr(p), vr(v3), vr(v2)))
        a("v_cvt_pk_bf16_f32 %s, %s, %s" % (vr(p+1), vr(v1), vr(v0_)))
        a("ds_write_b64 %s, %s offset:%d" % (vr(adr), vr(p, 2), off))
        return p
    for i in range(4): win(a0, i*528 + 8, r0+i+3, r0+i+2, r0+i+1, r0+i)
    K1 = [r1, r1, r1+1, r1+2, r1+2, r1+2, r1+3]
    for i in range(4): win(a0, i*528 + 8 + 128, K1[i+3], K1[i+2], K1[i+1], K1[i])
    K2 = [r2]*3 + [r2+1]*3 + [r2+2]*5
    for i in range(7):
        p = win(a2, i*528 + 8 + 256, K2[i+3], K2[i+2], K2[i+1], K2[i])
    a("ds_write_b64 %s, %s offset:%d" % (vr(a2), vr(p, 2), 7*528 + 8 + 256))
    K3 = [r3]*5 + [r3+1]*7 + [r3+2]*7
    for arr, ph in enumerate((0, 2, 3, 4, 5, 9, 10, 11)):
        win(a3, REGB + arr*544, K3[ph+3], K3[ph+2], K3[ph+1], K3[ph])
    win(a3, REGB + 8, r3+2, r3+2, r3+2, r3+2)
    p = T
    a("v_mov_b32 %s, 0" % vr(rz+3))
    a("v_cvt_pk_bf16_f32 %s, %s, %s" % (vr(t2), vr(rz), vr(rz+3)))
    a("v_cvt_pk_bf16_f32 %s, %s, %s" % (vr(t3), vr(rz+1), vr(rz)))
    a("v_cvt_pk_bf16_f32 %s, %s, %s" % (vr(rz+1), vr(rz+2), vr(rz+1)))
    a("v_cmp_eq_u32 vcc, 13, %s" % vr(lo)); a("s_nop 1")
    a("v_cndmask_b32 %s, 0, %s, vcc" % (vr(p), vr(t2)))
    a("v_cmp_eq_u32 vcc, 14, %s" % vr(lo)); a("s_nop 1")
    a("v_cndmask_b32 %s, %s, %s, vcc" % (vr(p), vr(p), vr(t3)))
    a("v_cmp_eq_u32 vcc, 15, %s" % vr(lo)); a("s_nop 1")
    a("v_cndmask_b32 %s, %s, %s, vcc" % (vr(p), vr(p), vr(rz+1)))
    a("v_cndmask_b32 %s, 0, %s, vcc" % (vr(p+1), vr(t2)))
    a("ds_write_b64 %s, %s" % (vr(a1), vr(p, 2)))
    va.release(m)

def conv_stats_load(a, va, R, sc=""):
    t = R["t"]
    a("s_lshl_b32 s%d, s%d, 11" % (S_T, S_WAVE))
    a("s_add_u32 s%d, s%d, 0x%x" % (S_T, S_T, WS_ST))
    a("v_lshlrev_b32 %s, 5, v0" % vr(t))
    for i in range(2):
        a("buffer_load_dwordx4 %s, %s, s[%d:%d], s%d offen offset:%d %s" % (vr(R["st"][i], 4), vr(t), SRD_WS, SRD_WS+3, S_T, 16*i, sc))

def conv_make_u(a, va, R):
    m = va.mark()
    xn = [va(8, 2) for _ in range(4)]
    ms = [va(2) for _ in range(4)]
    T = [va(2) for _ in range(2)]; o = [va(2) for _ in range(2)]; adr = va(); z = va(2)
    for i in range(4):
        g = R["st"][i >> 1] + 2*(i & 1)
        a("v_and_b32 %s, 0xffff0000, %s" % (vr(ms[i]+1), vr(g)))
        a("v_rcp_f32 %s, %s" % (vr(ms[i]+1), vr(ms[i]+1)))
        a("v_lshlrev_b32 %s, 16, %s" % (vr(ms[i]), vr(g)))
    a("s_mul_i32 s%d, s%d, %d" % (S_T, S_WAVE, USTR))
    a("s_add_u32 s%d, s%d, %d" % (S_T, S_T, UB))
    a("v_lshlrev_b32 %s, 3, v0" % vr(adr))
    a("v_add_u32 %s, s%d, %s" % (vr(z), S_T, vr(adr)))
    a("v_mov_b32 %s, 0" % vr(o[0])); a("v_mov_b32 %s, 0" % vr(o[0]+1))
    a("s_mov_b32 exec_hi, 0x0fffffff")
    a("ds_write_b64 %s, %s" % (vr(z), vr(o[0], 2)))
    a("s_mov_b32 exec_hi, -1")
    a("s_lshl_b32 s%d, s%d, 9" % (S_T, S_WAVE))
    a("s_add_u32 s%d, s%d, %d" % (S_T, S_T, UB + 480))
    a("v_add_u32 %s, s%d, %s" % (vr(adr), S_T, vr(adr)))
    k = 0
    for jd in range(4):
        for i in range(4):
            t = T[k & 1]; k += 1
            x = R["x"][i] + jd
            a("v_lshlrev_b32 %s, 16, %s" % (vr(t), vr(x)))
            a("v_and_b32 %s, 0xffff0000, %s" % (vr(t+1), vr(x)))
            a("v_pk_add_f32 %s, %s, %s op_sel_hi:[1,0] neg_lo:[0,1] neg_hi:[0,1]" % (vr(t,2), vr(t,2), vr(ms[i],2)))
            a("v_cvt_pk_bf16_f32 %s, %s, %s" % (vr(t+1), vr(t), vr(t+1)))
            a("v_lshlrev_b32 %s, 16, %s" % (vr(t), vr(t+1)))
            a("v_and_b32 %s, 0xffff0000, %s" % (vr(t+1), vr(t+1)))
            a("v_pk_mul_f32 %s, %s, %s op_sel:[0,1] op_sel_hi:[1,1]" % (vr(xn[i]+2*jd, 2), vr(t,2), vr(ms[i],2)))
        for dd in range(2):
            d = 2*jd + dd; oo = o[dd]
            a("v_cvt_pk_bf16_f32 %s, %s, %s" % (vr(oo), vr(xn[0]+d), vr(xn[1]+d)))
            a("v_cvt_pk_bf16_f32 %s, %s, %s" % (vr(oo+1), vr(xn[2]+d), vr(xn[3]+d)))
            a("ds_write_b64 %s, %s offset:%d" % (vr(adr), vr(oo, 2), d*USTR))
    va.release(m)

def conv_main(a, va, R, sc="", stamps=None):
    m = va.mark()
    sD = R["sD"]
    acc = [va(4, 4) for _ in range(8)]
    A = [[va(4, 4) for _ in range(8)] for _ in range(2)]
    B = [[va(4, 4) for _ in range(8)] for _ in range(2)]
    aA = [va(), va()]; aB = [va(), va()]; aX = [va(), va()]; aU = va(); aO = va()
    t0, t1, t2, t3, t4 = va(), va(), va(), va(), va()
    sB = S_T
    a("s_mul_i32 s%d, s%d, %d" % (sB, S_WAVE, PW))
    a("s_mov_b32 s%d, 0x44432100" % (sB+1))
    a("v_and_b32 %s, 15, v0" % vr(t0))
    a("v_lshrrev_b32 %s, 4, v0" % vr(t1))
    a("v_mov_b32 %s, 0x7654" % vr(t4))
    for e in range(2):
        a("v_lshlrev_b32 %s, 3, %s" % (vr(t2), vr(t1)))
        a("v_sub_u32 %s, %s, %s" % (vr(t2), vr(t0), vr(t2)))
        a("v_add_u32 %s, %d, %s" % (vr(t2), 13 - 4*e + 16, vr(t2)))
        a("v_lshrrev_b32 %s, 4, %s" % (vr(t3), vr(t2)))
        a("v_and_b32 %s, 15, %s" % (vr(t2), vr(t2)))
        a("v_mul_u32_u24 %s, 528, %s" % (vr(aA[e]), vr(t2)))
        a("v_lshl_add_u32 %s, %s, 3, %s" % (vr(aA[e]), vr(t3), vr(aA[e])))
        a("v_add_u32 %s, s%d, %s" % (vr(aA[e]), sB, vr(aA[e])))
        a("v_cmp_gt_u32 vcc, 8, %s" % vr(t2))
        a("v_mov_b32 %s, s%d" % (vr(aX[e]), sB+1))
        a("v_and_b32 %s, 7, %s" % (vr(aB[e]), vr(t2)))
        a("v_cndmask_b32 %s, %s, %s, vcc" % (vr(aX[e]), vr(t4), vr(aX[e])))
        a("v_lshlrev_b32 %s, 2, %s" % (vr(aB[e]), vr(aB[e])))
        a("v_bfe_u32 %s, %s, %s, 4" % (vr(aB[e]), vr(aX[e]), vr(aB[e])))
        a("v_mul_u32_u24 %s, 544, %s" % (vr(aB[e]), vr(aB[e])))
        a("v_cmp_lt_u32 vcc, 11, %s" % vr(t2))
        a("v_lshl_add_u32 %s, %s, 3, %s" % (vr(aB[e]), vr(t3), vr(aB[e])))
        a("v_add_u32 %s, s%d, %s" % (vr(aB[e]), sB, vr(aB[e])))
        a("v_cndmask_b32 %s, 0, 8, vcc" % vr(t2))
        a("v_add_u32 %s, %d, %s" % (vr(aB[e]), REGB - 8, vr(aB[e])))
        a("v_add_u32 %s, %s, %s" % (vr(aB[e]), vr(t2), vr(aB[e])))
        a("v_cmp_eq_u32 vcc, 0, %s" % vr(t3))
        a("v_add_u32 %s, 512, %s" % (vr(t2), vr(aA[e])))
        a("s_nop 0")
        a("v_cndmask_b32 %s, %s, %s, vcc" % (vr(aX[e]), vr(aB[e]), vr(t2)))
    a("s_mul_i32 s%d, s%d, %d" % (sB+1, S_WAVE, USTR))
    a("s_add_u32 s%d, s%d, %d" % (sB+1, sB+1, UB))
    a("v_lshlrev_b32 %s, 5, %s" % (vr(t2), vr(t0)))
    a("v_lshl_add_u32 %s, %s, 4, %s" % (vr(aU), vr(t1), vr(t2)))
    a("v_add_u32 %s, s%d, %s" % (vr(aU), sB+1, vr(aU)))
    a("v_lshl_add_u32 %s, %s, 3, %s" % (vr(aO), vr(t1), vr(t2)))
    a("v_add_u32 %s, s%d, %s" % (vr(aO), sB+1, vr(aO)))
    a("s_waitcnt lgkmcnt(0)")
    a("s_barrier")
    def loads(r):
        b = r & 1; L = []
        for i in range(8):
            t = 8*i + r
            L.append("ds_read_b128 %s, %s offset:%d" % (vr(B[b][i], 4), vr(aU), 512*i + 64*(7-r)))
            for e in range(2):
                if t <= 31: adr, off = aA[e], 16*t
                elif t == 32: adr, off = aX[e], 0
                else: adr, off = aB[e], 16*(t-32)
                L.append("ds_read_b64 %s, %s offset:%d" % (vr(A[b][i]+2*e, 2), vr(adr), off))
        return L
    if stamps: stamps(7)
    for x in loads(0): a(x)
    for r in range(8):
        b = r & 1
        L = loads(r+1) if r < 7 else []
        if r == 7:
            L = ["ds_read_b64 %s, %s offset:%d" % (vr(A[0][i], 2), vr(aO), 480 + 512*i) for i in range(8)]
        a("s_waitcnt lgkmcnt(0)")
        li = 0
        for mm in range(8):
            for i in range(mm, 8):
                c = "0" if (r == 0 and mm == 0) else vr(acc[i], 4)
                a("v_mfma_f32_16x16x32_bf16 %s, %s, %s, %s" % (vr(acc[i], 4), vr(A[b][mm], 4), vr(B[b][i-mm], 4), c))
                if li < len(L): a(L[li]); li += 1
    if stamps: stamps(8)
    a("s_waitcnt lgkmcnt(0)")
    a("s_nop 4")
    T = [B[0][0], B[0][0]+2, B[0][1], B[0][1]+2]
    for i in range(8):
        o = B[0][2 + (i & 1)]
        for k in range(2):
            y, s = T[2*k], T[2*k+1]
            a("v_cvt_pk_bf16_f32 %s, %s, %s" % (vr(y+1), vr(acc[i]+2*k), vr(acc[i]+2*k+1)))
            a("v_lshlrev_b32 %s, 16, %s" % (vr(s), vr(A[0][i]+k)))
            a("v_and_b32 %s, 0xffff0000, %s" % (vr(s+1), vr(A[0][i]+k)))
            a("v_mul_f32 %s, s%d, %s" % (vr(s), sD+2, vr(s)))
            a("v_mul_f32 %s, s%d, %s" % (vr(s+1), sD+2, vr(s+1)))
            a("v_lshlrev_b32 %s, 16, %s" % (vr(y), vr(y+1)))
            a("v_cvt_pk_bf16_f32 %s, %s, %s" % (vr(s+1), vr(s), vr(s+1)))
            a("v_and_b32 %s, 0xffff0000, %s" % (vr(y+1), vr(y+1)))
            a("v_lshlrev_b32 %s, 16, %s" % (vr(s), vr(s+1)))
            a("v_and_b32 %s, 0xffff0000, %s" % (vr(s+1), vr(s+1)))
            a("v_pk_add_f32 %s, %s, %s" % (vr(y,2), vr(y,2), vr(s,2)))
            a("v_cvt_pk_bf16_f32 %s, %s, %s" % (vr(o+k), vr(y), vr(y+1)))
        a("ds_write_b64 %s, %s offset:%d" % (vr(aO), vr(o, 2), 480 + 512*i))
    a("s_lshl_b32 s%d, s%d, 9" % (sB+1, S_WAVE))
    a("s_add_u32 s%d, s%d, %d" % (sB+1, sB+1, UB + 480))
    a("v_lshlrev_b32 %s, 3, v0" % vr(t0))
    a("v_add_u32 %s, s%d, %s" % (vr(t0), sB+1, vr(t0)))
    a("v_lshlrev_b32 %s, 6, v0" % vr(t1))
    a("v_add_u32 %s, s%d, %s" % (vr(t1), sB, vr(t1)))
    a("v_lshlrev_b32 %s, 4, v0" % vr(t2))
    a("v_add_u32 %s, s%d, %s" % (vr(t3), sB, vr(t2)))
    a("s_lshl_b32 s%d, s%d, 3" % (sB, S_CW))
    a("s_add_u32 s%d, s%d, s%d" % (sB, sB, S_WAVE))
    a("s_lshl_b32 s%d, s%d, 12" % (sB, sB))
    a("s_add_u32 s%d, s%d, 0x%x" % (sB, sB, WS_AT))
    a("s_waitcnt lgkmcnt(0)")
    a("s_barrier")
    Ar = [A[1][k >> 1] + 2*(k & 1) for k in range(8)]
    for k in range(8): a("ds_read_b64 %s, %s offset:%d" % (vr(Ar[k], 2), vr(t0), k*USTR))
    c = 0
    for jd in range(4):
        a("s_waitcnt lgkmcnt(%d)" % (6 - 2*jd))
        for i in range(4):
            y, s = T[2*(c & 1)], T[2*(c & 1)+1]; c += 1
            x = R["x"][i] + jd
            a("v_lshlrev_b32 %s, 16, %s" % (vr(s), vr(x)))
            a("v_and_b32 %s, 0xffff0000, %s" % (vr(s+1), vr(x)))
            for dd in range(2):
                src = Ar[2*jd+dd] + (i >> 1)
                if i & 1: a("v_and_b32 %s, 0xffff0000, %s" % (vr(y+dd), vr(src)))
                else: a("v_lshlrev_b32 %s, 16, %s" % (vr(y+dd), vr(src)))
            a("v_pk_add_f32 %s, %s, %s" % (vr(y,2), vr(y,2), vr(s,2)))
            a("v_cvt_pk_bf16_f32 %s, %s, %s" % (vr(B[1][i]+jd), vr(y), vr(y+1)))
    for i in range(4): a("ds_write_b128 %s, %s offset:%d" % (vr(t1), vr(B[1][i], 4), 16*i))
    a("s_waitcnt lgkmcnt(0)")
    for i in range(4): a("ds_read_b128 %s, %s offset:%d" % (vr(B[1][4+i], 4), vr(t3), 1024*i))
    for i in range(4):
        a("s_waitcnt lgkmcnt(%d)" % (3-i))
        a("buffer_store_dwordx4 %s, %s, s[%d:%d], s%d offen offset:%d %s" % (vr(B[1][4+i], 4), vr(t2), SRD_WS, SRD_WS+3, sB, 1024*i, sc))
    va.release(m)
```

```python
from gen_common import *
DBG = os.environ.get('DBG','').split(',')
G1_STAGE = 36864
G1_NB = 4
G1_MISC = G1_STAGE*G1_NB
S_RB, S_CB = 60, 61

def g1_helper(a, va, stamps=False, hook=None):
    m = va.mark()
    vXo = [va() for _ in range(4)]; vWo = [va() for _ in range(5)]; t0 = va(); t1 = va(); t2 = va()
    sH = S_T; sA = S_T+1; sXs = S_T+2; sWs = S_T+3; sM = S_T+4
    a("s_sub_u32 s%d, s%d, 4" % (sH, S_WAVE))
    a("s_lshl_b32 s%d, s%d, 7" % (sA, S_RB))
    a("s_lshl_b32 s%d, s%d, 5" % (sM, sH))
    a("s_add_u32 s%d, s%d, s%d" % (sA, sA, sM))
    a("v_lshrrev_b32 %s, 3, v0" % vr(t0))
    a("v_and_b32 %s, 7, v0" % vr(t1))
    for i in range(4):
        a("v_add_u32 %s, %d, %s" % (vr(t2), 8*i, vr(t0)))
        a("v_bfe_u32 %s, %s, 1, 3" % (vr(vXo[i]), vr(t2)))
        a("v_xor_b32 %s, %s, %s" % (vr(vXo[i]), vr(vXo[i]), vr(t1)))
        a("v_lshlrev_b32 %s, 4, %s" % (vr(vXo[i]), vr(vXo[i])))
        a("v_add_u32 %s, s%d, %s" % (vr(t2), sA, vr(t2)))
        a("v_mul_u32_u24 %s, 1280, %s" % (vr(t2), vr(t2)))
        a("v_add_u32 %s, %s, %s" % (vr(vXo[i]), vr(vXo[i]), vr(t2)))
        if i: a("v_subrev_u32 %s, %d, %s" % (vr(vXo[i]), 1024*i, vr(vXo[i])))
    a("s_mul_i32 s%d, s%d, 320" % (sA, sH))
    a("s_mul_i32 s%d, s%d, 320" % (sM, S_CB))
    for i in range(5):
        a("v_add_u32 %s, s%d, v0" % (vr(t0), sA))
        if i: a("v_add_u32 %s, %d, %s" % (vr(t0), 64*i, vr(t0)))
        a("v_mul_u32_u24 %s, 3277, %s" % (vr(t1), vr(t0)))
        a("v_lshrrev_b32 %s, 16, %s" % (vr(t1), vr(t1)))
        a("v_mul_u32_u24 %s, 20, %s" % (vr(t2), vr(t1)))
        a("v_sub_u32 %s, %s, %s" % (vr(t0), vr(t0), vr(t2)))
        a("v_bfe_u32 %s, %s, 3, 1" % (vr(t2), vr(t1)))
        a("v_lshlrev_b32 %s, 1, %s" % (vr(t2), vr(t2)))
        a("v_xor_b32 %s, %s, %s" % (vr(t0), vr(t0), vr(t2)))
        a("v_lshlrev_b32 %s, 4, %s" % (vr(t0), vr(t0)))
        a("v_mul_u32_u24 %s, 3456, %s" % (vr(t1), vr(t1)))
        a("v_add3_u32 %s, %s, %s, s%d" % (vr(vWo[i]), vr(t0), vr(t1), sM))
        if 0 < i < 4: a("v_subrev_u32 %s, %d, %s" % (vr(vWo[i]), 1024*i, vr(vWo[i])))
    a("s_lshl_b32 s%d, s%d, 12" % (sA, sH))
    a("s_mul_i32 s%d, s%d, 5120" % (sM, sH))
    a("s_add_u32 s%d, s%d, 16384" % (sM, sM))
    def issue(st):
        buf = (st % G1_NB)*G1_STAGE
        a("s_movk_i32 s%d, %d" % (sXs, st*128))
        a("s_mov_b32 s%d, %d" % (sWs, st*64*3456))
        a("s_add_u32 m0, s%d, %d" % (sA, buf))
        a("s_nop 0")
        for i in range(4):
            a("buffer_load_dwordx4 %s, s[%d:%d], s%d offen offset:%d lds" % (vr(vXo[i]), SRD_X, SRD_X+3, sXs, 1024*i))
        a("s_add_u32 m0, s%d, %d" % (sM, buf))
        a("s_nop 0")
        for i in range(4):
            a("buffer_load_dwordx4 %s, s[%d:%d], s%d offen offset:%d lds" % (vr(vWo[i]), SRD_W, SRD_W+3, sWs, 1024*i))
        a("s_add_u32 m0, s%d, %d" % (sM, buf+4096))
        a("s_nop 0")
        a("buffer_load_dwordx4 %s, s[%d:%d], s%d offen lds" % (vr(vWo[4]), SRD_W, SRD_W+3, sWs))
    if stamps: stamps(1)
    PRE = int(os.environ.get("G1PRE", "2"))
    q = []
    def iss(st): issue(st); q.extend([st]*9)
    for st in range(PRE): iss(st)
    nxt = PRE
    if stamps: stamps(2)
    for b in range(10):
        idx = max(i for i, t in enumerate(q) if t == b)
        a("s_waitcnt vmcnt(%d)" % (len(q) - 1 - idx))
        if stamps and b in (0, 4, 9): stamps({0:3, 4:4, 9:5}[b])
        a("s_barrier")
        while nxt <= min(9, b+2 if b else max(2, int(os.environ.get("G1PRE0", "2")))): iss(nxt); nxt += 1
        if hook is not None: q.extend(hook(b))

def g1_compute(a, va, stats_wait=None, sc="", stamps=False):
    m = va.mark()
    acc = [[va(4, 4) for t in range(4)] for j in range(5)]
    xf = [[va(4, 4) for t in range(4)] for b in range(2)]
    wf = [[va(4, 4) for j in range(5)] for b in range(2)]
    cs = [[va(4, 4) for k in range(2)] for j in range(5)]
    vN = va()
    vX = [[va() for h in range(2)] for s in range(2)]
    vW = [[[va() for h in range(2)] for s in range(2)] for k in range(3)]
    st = [va(2) for t in range(4)]
    t0, t1, t2, t3 = va(), va(), va(), va()
    sMP, sFP, sOne, sA = S_T, S_T+1, S_T+2, S_T+3
    a("s_lshr_b32 s%d, s%d, 1" % (sMP, S_WAVE))
    a("s_and_b32 s%d, s%d, 1" % (sFP, S_WAVE))
    a("v_and_b32 %s, 15, v0" % vr(t0))
    a("v_lshrrev_b32 %s, 4, v0" % vr(t1))
    a("v_lshrrev_b32 %s, 1, %s" % (vr(t2), vr(t0)))
    a("v_xor_b32 %s, %s, %s" % (vr(t2), vr(t2), vr(t1)))
    a("v_lshlrev_b32 %s, 4, %s" % (vr(t2), vr(t2)))
    a("v_lshl_add_u32 %s, %s, 7, %s" % (vr(t2), vr(t0), vr(t2)))
    a("s_lshl_b32 s%d, s%d, 13" % (sA, sMP))
    a("v_add_u32 %s, s%d, %s" % (vr(t2), sA, vr(t2)))
    a("s_lshl_b32 s%d, s%d, 6" % (sA, sMP))
    a("v_xor_b32 %s, s%d, %s" % (vr(vX[0][0]), sA, vr(t2)))
    a("v_xor_b32 %s, 64, %s" % (vr(vX[0][1]), vr(vX[0][0])))
    for h in range(2): a("v_add_u32 %s, %d, %s" % (vr(vX[1][h]), 2*G1_STAGE, vr(vX[0][h])))
    a("v_lshrrev_b32 %s, 2, %s" % (vr(t2), vr(t0)))
    a("v_lshl_add_u32 %s, %s, 3, %s" % (vr(t2), vr(t1), vr(t2)))
    a("v_mul_u32_u24 %s, 320, %s" % (vr(t2), vr(t2)))
    a("v_and_b32 %s, 3, v0" % vr(t3))
    a("v_lshl_add_u32 %s, %s, 3, %s" % (vr(t2), vr(t3), vr(t2)))
    a("s_mul_i32 s%d, s%d, 10240" % (sA, sMP))
    a("s_add_u32 s%d, s%d, 16384" % (sA, sA))
    a("v_add_u32 %s, s%d, %s" % (vr(t2), sA, vr(t2)))
    a("v_and_b32 %s, 1, %s" % (vr(t3), vr(t1)))
    a("v_lshlrev_b32 %s, 5, %s" % (vr(t3), vr(t3)))
    a("s_mul_i32 s%d, s%d, 192" % (sA, sFP))
    a("v_add3_u32 %s, %s, s%d, %s" % (vr(vW[0][0][0]), vr(t2), sA, vr(t3)))
    a("v_sub_u32 %s, %s, %s" % (vr(vW[1][0][0]), vr(t2), vr(t3)))
    a("v_add_u32 %s, s%d, %s" % (vr(vW[1][0][0]), sA, vr(vW[1][0][0])))
    a("s_lshl_b32 s%d, s%d, 5" % (sA, sFP))
    a("v_xor_b32 %s, s%d, %s" % (vr(t3), sA, vr(t3)))
    a("v_add3_u32 %s, %s, %s, 64" % (vr(vW[2][0][0]), vr(t2), vr(t3)))
    a("v_add_u32 %s, 64, %s" % (vr(vW[2][0][0]), vr(vW[2][0][0])))
    a("s_mul_i32 s%d, s%d, -20480" % (sA, sMP))
    a("s_add_u32 s%d, s%d, 10240" % (sA, sA))
    for k in range(3):
        a("v_add_u32 %s, s%d, %s" % (vr(vW[k][0][1]), sA, vr(vW[k][0][0])))
        for h in range(2): a("v_add_u32 %s, %d, %s" % (vr(vW[k][1][h]), 2*G1_STAGE, vr(vW[k][0][h])))
    sSkip = S_T+6
    a("s_cmp_eq_u32 s%d, 10" % S_CB)
    a("s_cselect_b32 s%d, s%d, 0" % (sSkip, sFP))
    def stats_load():
        L = []
        L.append("s_lshl_b32 s%d, s%d, 1" % (sA, S_RB))
        L.append("s_add_u32 s%d, s%d, s%d" % (sA, sA, sMP))
        L.append("s_lshl_b32 s%d, s%d, 9" % (sA, sA))
        L.append("s_add_u32 s%d, s%d, 0x%x" % (sA, sA, WS_ST))
        L.append("v_lshlrev_b32 %s, 3, %s" % (vr(t2), vr(t0)))
        for t in range(4):
            L.append("buffer_load_dwordx2 %s, %s, s[%d:%d], s%d offen offset:%d sc1" % (vr(st[t], 2), vr(t2), SRD_WS, SRD_WS+3, sA, 128*t))
        L.append("s_mul_i32 s%d, s%d, 1280" % (sA, S_CB))
        L.append("s_add_u32 s%d, s%d, 0x%x" % (sA, sA, WS_CS))
        L.append("s_lshl_b32 s%d, s%d, 7" % (S_T+4, sFP))
        L.append("s_add_u32 s%d, s%d, s%d" % (S_T+4, S_T+4, sA))
        L.append("s_mul_i32 s%d, s%d, 768" % (S_T+5, sFP))
        L.append("s_add_u32 s%d, s%d, s%d" % (sA, sA, S_T+5))
        L.append("s_lshl_b32 s%d, s%d, 8" % (S_T+5, sSkip))
        L.append("s_sub_u32 s%d, s%d, s%d" % (S_T+5, sA, S_T+5))
        L.append("v_lshlrev_b32 %s, 5, %s" % (vr(t3), vr(t1)))
        for j in range(5):
            sb = S_T+4 if j == 4 else (sA if j < 2 else S_T+5)
            for k in range(2):
                L.append("buffer_load_dwordx4 %s, %s, s[%d:%d], s%d offen offset:%d sc1" % (vr(cs[j][k], 4), vr(t3), SRD_WS, SRD_WS+3, sb, 128*j + 16*k))
        return L
    nonce_issue(a, vN, t2)
    def loads(n):
        s, h = n >> 1, n & 1
        b = n & 1
        buf = s % G1_NB; se = buf >> 1; off = (buf & 1)*G1_STAGE
        L = []
        for t in range(4):
            L.append("ds_read_b128 %s, %s offset:%d" % (vr(xf[b][t], 4), vr(vX[se][h]), off + 2048*t))
        for j in range(5):
            k = 2 if j == 4 else (j & 1)
            o = off + (0 if j == 4 else 32*j)
            for e in range(2):
                L.append("ds_read_b64_tr_b16 %s, %s offset:%d" % (vr(wf[b][j]+2*e, 2), vr(vW[k][se][h]), o + 1280*e))
        return L
    if stamps: stamps(1)
    a("s_barrier")
    if stamps: stamps(2)
    for x in loads(0): a(x)
    for n in range(20):
        if stamps and n == 10: stamps(3)
        s, h = n >> 1, n & 1; b = n & 1
        if h == 1 and s+1 <= 9: a("s_barrier")
        L = loads(n+1) if n+1 < 20 else []
        if 'nods' in DBG: L = []
        if 'notr' in DBG: L = L[:4]
        if 'nox' in DBG: L = L[4:]
        li = 0
        G = stats_load() if n == 12 else []
        a("s_waitcnt lgkmcnt(8)")
        for j in range(5):
            if j == 1: a("s_waitcnt lgkmcnt(%d)" % min(li, 15))
            for t in range(4):
                c = "0" if n == 0 else vr(acc[j][t], 4)
                a("v_mfma_f32_16x16x32_bf16 %s, %s, %s, %s" % (vr(acc[j][t], 4), vr(wf[b][j], 4), vr(xf[b][t], 4), c))
                if li < len(L): a(L[li]); li += 1
                for _ in range(2):
                    if G:
                        x = G.pop(0); a(x)
                        if x.startswith("buffer"): break
    if stamps: stamps(4)
    a("s_waitcnt vmcnt(0)")
    nonce_finish(a, vN, t2)
    retry = a.newlabel("g1_retry"); chk = a.newlabel("g1_chk"); ok = a.newlabel("g1_ok")
    a.label(chk)
    tags_check(a, [st[t]+1 for t in range(4)] + [cs[j][k]+2 for j in range(5) for k in range(2)], t2, t3, retry)
    a("s_branch %s" % ok)
    a.label(retry)
    for x in stats_load(): a(x)
    a("s_waitcnt vmcnt(0)")
    a("s_branch %s" % chk)
    a.label(ok)
    if stamps: stamps(5)
    for t in range(4):
        a("v_and_b32 %s, 0xffff0000, %s" % (vr(st[t]+1), vr(st[t])))
        a("v_rcp_f32 %s, %s" % (vr(st[t]+1), vr(st[t]+1)))
        a("v_lshlrev_b32 %s, 16, %s" % (vr(st[t]), vr(st[t])))
        a("v_mul_f32 %s, -%s, %s" % (vr(st[t]), vr(st[t]), vr(st[t]+1)))
    a("v_lshlrev_b32 %s, 4, v0" % vr(t3))
    sB = S_T+4; sC = S_T+5
    a("s_lshl_b32 s%d, s%d, 1" % (sA, S_RB))
    a("s_add_u32 s%d, s%d, s%d" % (sA, sA, sMP))
    a("s_mul_i32 s%d, s%d, %d" % (sA, sA, 4*H_MT_STRIDE))
    a("s_mul_i32 s%d, s%d, 5120" % (sB, S_CB))
    a("s_add_u32 s%d, s%d, s%d" % (sA, sA, sB))
    a("s_mul_i32 s%d, s%d, 3072" % (sB, sFP))
    a("s_add_u32 s%d, s%d, s%d" % (sB, sB, sA))
    a("s_lshl_b32 s%d, s%d, 3" % (sC, sFP))
    a("s_add_u32 s%d, s%d, s%d" % (sC, sC, sA))
    pk = [xf[0][0], xf[0][1], xf[0][2], xf[0][3], xf[1][0], xf[1][1]]
    tp = [xf[1][2], xf[1][2]+2, xf[1][3], xf[1][3]+2]
    skip = a.newlabel("g1_skip")
    cnt = 0
    def cvt(j, t, dst):
        for k in range(2):
            T = tp[k + 2*(j & 1)]
            a("v_pk_mul_f32 %s, %s, %s op_sel_hi:[1,0]" % (vr(T, 2), vr(cs[j][k], 2), vr(st[t], 2)))
            a("v_pk_fma_f32 %s, %s, %s, %s op_sel:[0,1,0] op_sel_hi:[1,1,1]" % (vr(T, 2), vr(acc[j][t]+2*k, 2), vr(st[t], 2), vr(T, 2)))
            a("v_cvt_pk_bf16_f32 %s, %s, %s" % (vr(dst+k), vr(T), vr(T+1)))
            a("v_pk_max_i16 %s, %s, 0" % (vr(dst+k), vr(dst+k)))
    for pr in (0, 2, 1):
        if pr == 1:
            a("s_cmp_lg_u32 s%d, 0" % (S_T+6))
            a("s_cbranch_scc1 %s" % skip)
        for t in range(4):
            d = pk[cnt % len(pk)]; cnt += 1
            if pr < 2:
                cvt(2*pr, t, d); cvt(2*pr+1, t, d+2)
                a("s_add_u32 s%d, s%d, %d" % (sA, sB, t*H_MT_STRIDE))
                a("buffer_store_dwordx4 %s, %s, s[%d:%d], s%d offen offset:%d %s" % (vr(d, 4), vr(t3), SRD_WS, SRD_WS+3, sA, 1024*pr, sc))
            else:
                cvt(4, t, d)
                a("s_add_u32 s%d, s%d, %d" % (sA, sC, t*H_MT_STRIDE))
                a("buffer_store_dwordx2 %s, %s, s[%d:%d], s%d offen offset:2048 %s" % (vr(d, 2), vr(t3), SRD_WS, SRD_WS+3, sA, sc))
    a.label(skip)
    if stamps: stamps(6)
    va.release(m)
```

```python
from gen_common import *
G2_STAGE = 24576
G2_NB = 6
G2_OUT = G2_STAGE*G2_NB
S_RB, S_DB = 60, 63
DEPTH = int(os.environ.get('DEPTH', '12'))
ROT = 3

def g2_helper_setup(a, va):
    vO = va(); t0 = va(); t1 = va()
    sH = 68; sG = 69; sL = 70; sX = 71
    a("s_sub_u32 s%d, s%d, 4" % (sH, S_WAVE))
    a("v_lshrrev_b32 %s, 3, v0" % vr(t0))
    a("v_bfe_u32 %s, v0, 4, 2" % vr(t1))
    a("v_lshlrev_b32 %s, 1, %s" % (vr(t1), vr(t1)))
    a("v_and_b32 %s, 7, v0" % vr(vO))
    a("v_xor_b32 %s, %s, %s" % (vr(vO), vr(vO), vr(t1)))
    a("v_lshlrev_b32 %s, 4, %s" % (vr(vO), vr(vO)))
    a("v_mul_u32_u24 %s, 1280, %s" % (vr(t0), vr(t0)))
    a("v_add_u32 %s, %s, %s" % (vr(vO), vr(vO), vr(t0)))
    a("s_mul_i32 s%d, s%d, %d" % (sG, sH, 48*1280))
    a("s_lshl_b32 s%d, s%d, 7" % (sX, S_DB))
    a("s_add_u32 s%d, s%d, s%d" % (sG, sG, sX))
    a("s_mul_i32 s%d, s%d, %d" % (sL, sH, 48*128))
    def issue(st):
        buf = ((st + ROT) % G2_NB)*G2_STAGE
        for i in range(6):
            a("s_add_u32 m0, s%d, %d" % (sL, buf + 1024*i))
            a("s_add_u32 s%d, s%d, %d" % (sX, sG, st*192*1280 + 10240*i))
            a("buffer_load_dwordx4 %s, s[%d:%d], s%d offen lds" % (vr(vO), SRD_W2, SRD_W2+3, sX))
    return issue

def g2_helper_loop(a, issue, first_issued):
    issued = first_issued
    for b in range(9):
        a("s_waitcnt vmcnt(%d)" % (6*(issued - b - 1)))
        a("s_barrier")
        if b >= 2 and b + 4 <= 8 and b + 4 >= issued:
            while issued <= b + 4: issue(issued); issued += 1

def g2_compute(a, va, h_wait=None, xa_poll=None, sc="", stamps=None):
    m = va.mark()
    acc = [[va(4, 4) for j in range(4)] for t in range(2)]
    wf = [[va(4, 4) for j in range(4)] for b in range(2)]
    hr = [[va(4, 4) for t in range(2)] for d in range(DEPTH)]
    xa = [[va(4, 4) for jj in range(2)] for t in range(2)]
    vW = [[va() for j in range(4)] for k in range(3)]
    vH = va(); vXA = va(); t0, t1, t2, t3 = va(), va(), va(), va()
    vP = va()
    sH = [S_T, S_T+1]; sA = S_T+2; sXA = S_T+3
    a("v_and_b32 %s, 15, v0" % vr(t0))
    a("v_lshrrev_b32 %s, 4, v0" % vr(t1))
    a("v_lshrrev_b32 %s, 2, %s" % (vr(t2), vr(t0)))
    a("v_lshl_add_u32 %s, %s, 2, %s" % (vr(t2), vr(t1), vr(t2)))
    a("v_bfe_u32 %s, %s, 1, 2" % (vr(t3), vr(t2)))
    a("v_lshlrev_b32 %s, 7, %s" % (vr(t2), vr(t2)))
    a("v_and_b32 %s, 3, v0" % vr(vH))
    a("v_lshl_add_u32 %s, %s, 3, %s" % (vr(t2), vr(vH), vr(t2)))
    for j in range(4):
        a("v_xor_b32 %s, %d, %s" % (vr(vH), j, vr(t3)))
        a("v_lshl_add_u32 %s, %s, 5, %s" % (vr(vW[0][j]), vr(vH), vr(t2)))
        for k in (1, 2): a("v_add_u32 %s, %d, %s" % (vr(vW[k][j]), 2*k*G2_STAGE, vr(vW[0][j])))
    a("v_lshlrev_b32 %s, 4, v0" % vr(vH))
    a("s_lshl_b32 s%d, s%d, 2" % (sA, S_RB))
    a("s_add_u32 s%d, s%d, s%d" % (sA, sA, S_WAVE))
    a("s_mul_i32 s%d, s%d, %d" % (sH[0], sA, 2*H_MT_STRIDE))
    a("s_add_u32 s%d, s%d, %d" % (sH[1], sH[0], H_MT_STRIDE))
    a("v_lshlrev_b32 %s, 15, %s" % (vr(vXA), vr(t1)))
    a("v_lshl_add_u32 %s, %s, 4, %s" % (vr(vXA), vr(t0), vr(vXA)))
    a("s_lshl_b32 s%d, s%d, 9" % (sXA, sA))
    a("s_lshl_b32 s%d, s%d, 18" % (sA, S_DB))
    a("s_add_u32 s%d, s%d, s%d" % (sXA, sXA, sA))
    a("s_add_u32 s%d, s%d, 0x%x" % (sXA, sXA, WS_AT))
    q = []
    def hload(n):
        L = []
        for t in range(2):
            if n and n % 4 == 0: L.append("s_add_u32 s%d, s%d, 4096" % (sH[t], sH[t]))
            L.append(("buffer_load_dwordx4 %s, %s, s[%d:%d], s%d offen offset:%d %s" % (vr(hr[n % DEPTH][t], 4), vr(vH), SRD_WS, SRD_WS+3, sH[t], 1024*(n % 4), sc), ("h", n)))
        return L
    def emit(x):
        if isinstance(x, tuple): a(x[0]); q.append(x[1])
        else: a(x)
    def wait_for(tag):
        idx = max(i for i, tg in enumerate(q) if tg == tag)
        return len(q) - 1 - idx
    def xaload():
        L = []
        for jj in range(2):
            if jj: L.append("s_add_u32 s%d, s%d, %d" % (sXA, sXA, 4*32768))
            for t in range(2):
                L.append(("buffer_load_dwordx4 %s, %s, s[%d:%d], s%d offen offset:%d %s" % (vr(xa[t][jj], 4), vr(vXA), SRD_WS, SRD_WS+3, sXA, 256*t, sc), ("xa",)))
        L.append("s_sub_u32 s%d, s%d, %d" % (sXA, sXA, 4*32768))
        return L
    def wloads(n):
        st, s = divmod(n, 6); buf = (st + ROT) % G2_NB
        L = []
        for j in range(4):
            for e in range(2):
                L.append("ds_read_b64_tr_b16 %s, %s offset:%d" % (vr(wf[n & 1][j]+2*e, 2), vr(vW[buf >> 1][j]), (buf & 1)*G2_STAGE + 4096*s + 2048*e))
        return L
    if h_wait is not None: h_wait(vP, t2)
    if stamps: stamps(1)
    for n in range(DEPTH - 1):
        for x in hload(n): emit(x)
    a("s_barrier")
    if stamps: stamps(2)
    for x in wloads(0): a(x)
    N_POLL, N_XA = 26, 26 + DEPTH
    for n in range(54):
        b = n & 1
        if stamps and n in (1, 27): stamps(3 if n == 1 else 4)
        if (n + 1) % 6 == 0 and n + 1 < 54: a("s_barrier")
        L = wloads(n+1) if n + 1 < 54 else []
        G = hload(n - 1 + DEPTH) if n - 1 + DEPTH < 54 else []
        if n == N_POLL and xa_poll is not None: G = G + xa_poll.issue(vP, t3)
        if n == N_XA: G = G + xaload()
        a("s_waitcnt vmcnt(%d)" % wait_for(("h", n)))
        k = 0
        for j in range(4):
            nl = min(2*j, len(L))
            a("s_waitcnt lgkmcnt(%d)" % (6 - 2*j + nl))
            for t in range(2):
                c = "0" if n == 0 else vr(acc[t][j], 4)
                a("v_mfma_f32_16x16x32_bf16 %s, %s, %s, %s" % (vr(acc[t][j], 4), vr(wf[b][j], 4), vr(hr[n % DEPTH][t], 4), c))
                if k < len(L): a(L[k])
                k += 1
                while G:
                    x = G.pop(0); emit(x)
                    if isinstance(x, tuple): break
        for x in G: emit(x)
    if stamps: stamps(5)
    a("s_waitcnt vmcnt(0)")
    if xa_poll is not None: xa_poll.finish(vP, t3, lambda: [emit(x) for x in xaload()])
    a("s_lshl_b32 s%d, s%d, 12" % (sA, S_WAVE))
    a("s_add_u32 s%d, s%d, %d" % (sA, sA, G2_OUT))
    a("v_lshrrev_b32 %s, 1, %s" % (vr(t2), vr(t0)))
    a("v_xor_b32 %s, %s, %s" % (vr(t2), vr(t2), vr(t1)))
    a("v_lshlrev_b32 %s, 4, %s" % (vr(t2), vr(t2)))
    a("v_lshl_add_u32 %s, %s, 7, %s" % (vr(t2), vr(t0), vr(t2)))
    a("v_add_u32 %s, s%d, %s" % (vr(vW[0][0]), sA, vr(t2)))
    a("v_xor_b32 %s, 64, %s" % (vr(vW[0][1]), vr(vW[0][0])))
    T = [wf[0][0], wf[0][0]+2, wf[0][1], wf[0][1]+2]
    F = [[wf[1][2*t+jj] for jj in range(2)] for t in range(2)]
    for t in range(2):
        for jj in range(2):
            for e in range(2):
                for k in range(2):
                    a("v_cvt_pk_bf16_f32 %s, %s, %s" % (vr(F[t][jj]+2*e+k), vr(acc[t][2*jj+e]+2*k), vr(acc[t][2*jj+e]+2*k+1)))
    for op in ("v_permlane32_swap_b32", "v_permlane16_swap_b32"):
        a("s_nop 1")
        for t in range(2):
            for jj in range(2):
                for k in range(2): a("%s %s, %s" % (op, vr(F[t][jj]+k), vr(F[t][jj]+2+k)))
    a("s_nop 1")
    c = 0
    for t in range(2):
        for jj in range(2):
            for k in range(4):
                y, s_ = T[2*(c & 1)], T[2*(c & 1)+1]; c += 1
                x = xa[t][jj] + k; f = F[t][jj] + k
                a("v_lshlrev_b32 %s, 16, %s" % (vr(s_), vr(x)))
                a("v_and_b32 %s, 0xffff0000, %s" % (vr(s_+1), vr(x)))
                a("v_lshlrev_b32 %s, 16, %s" % (vr(y), vr(f)))
                a("v_and_b32 %s, 0xffff0000, %s" % (vr(y+1), vr(f)))
                a("v_pk_add_f32 %s, %s, %s" % (vr(y, 2), vr(y, 2), vr(s_, 2)))
                a("v_cvt_pk_bf16_f32 %s, %s, %s" % (vr(f), vr(y), vr(y+1)))
            a("ds_write_b128 %s, %s offset:%d" % (vr(vW[0][jj]), vr(F[t][jj], 4), 2048*t))
    a("v_lshrrev_b32 %s, 3, v0" % vr(t0))
    a("v_and_b32 %s, 7, v0" % vr(t2))
    a("v_xor_b32 %s, %s, %s" % (vr(t3), vr(t2), vr(t1)))
    a("v_lshlrev_b32 %s, 4, %s" % (vr(t3), vr(t3)))
    a("v_lshl_add_u32 %s, %s, 7, %s" % (vr(t3), vr(t0), vr(t3)))
    a("v_add_u32 %s, s%d, %s" % (vr(t3), sA, vr(t3)))
    a("v_xor_b32 %s, 64, %s" % (vr(vH), vr(t3)))
    a("v_mul_u32_u24 %s, 1280, %s" % (vr(t0), vr(t0)))
    a("v_lshl_add_u32 %s, %s, 4, %s" % (vr(t0), vr(t2), vr(t0)))
    a("s_lshl_b32 s%d, s%d, 2" % (sA, S_RB))
    a("s_add_u32 s%d, s%d, s%d" % (sA, sA, S_WAVE))
    a("s_mul_i32 s%d, s%d, %d" % (sA, sA, 32*1280))
    a("s_lshl_b32 s%d, s%d, 7" % (sXA, S_DB))
    a("s_add_u32 s%d, s%d, s%d" % (sA, sA, sXA))
    a("s_waitcnt lgkmcnt(0)")
    for i in range(4): a("ds_read_b128 %s, %s offset:%d" % (vr(hr[0][0] + 4*i, 4), vr(vH if i & 1 else t3), 1024*i))
    for i in range(4):
        a("s_waitcnt lgkmcnt(%d)" % (3-i))
        a("buffer_store_dwordx4 %s, %s, s[%d:%d], s%d offen" % (vr(hr[0][0] + 4*i, 4), vr(t0), SRD_O, SRD_O+3, sA))
        if i < 3: a("s_add_u32 s%d, s%d, 10240" % (sA, sA))
    va.release(m)
```

```python
import sys
from gen_common import *
from role_stats import role_stats
import role_g1, role_g2, role_conv
from role_g1 import S_RB, S_CB
from role_g2 import S_DB
from role_conv import *
KN = "parallel_sum__ssm_conv_s4d__dense_activation_relu__prompt"
hdr = open("cdna_kernels/%s.s.ref" % KN).read().split("; Override launch")[0]
a = Asm()
S = Stamps(a, STAMPS, 0)
S2 = Stamps(a, STAMPS, 1)
a("s_cmp_ge_u32 s2, 256"); a("s_cbranch_scc1 k_end")
S.clear(); S(0)
load_args(a); wave_id(a, 1)
a("s_cmp_ge_u32 s2, 80"); a("s_cbranch_scc1 role_g")
hi = 0
va = VAlloc()
a("s_mov_b32 s%d, s2" % S_CW)
a("s_or_b32 s%d, s2, s%d" % (S_T, S_WAVE))
a("s_memrealtime s[64:65]")
a("s_waitcnt lgkmcnt(0)")
a("s_cmp_lg_u32 s%d, 0" % S_T); a("s_cbranch_scc1 no_pub")
a("s_or_b32 s64, s64, 1")
a("v_mov_b32 v1, s64"); a("v_mov_b32 v2, 0")
a("s_mov_b64 exec, 1")
a("global_store_dword v2, v1, s[%d:%d] sc1" % (P_DBG, P_DBG+1))
a("s_mov_b64 exec, -1")
a.label("no_pub")
srd(a, SRD_X, P_U, X_BYTES); srd(a, SRD_WS, P_WS, 32 << 20); srd(a, SRD_W, P_W1, W_BYTES)
R = conv_issue_loads(a, va)
m0 = va.mark()
vN, vZ = va(), va()
a("s_lshl_b32 s64, s%d, 3" % S_CW); a("s_add_u32 s64, s64, s%d" % S_WAVE); a("s_lshl_b32 s64, s64, 2")
a("s_sub_u32 s65, s%d, 26" % S_CW)
a("s_cmp_ge_u32 s%d, 64" % S_CW); a("s_cbranch_scc1 no_st1")
st_fin = role_stats(a, va, 64, tag_s=S_NONCE, sc="sc1")
a.label("no_st1")
a("s_cmp_lt_u32 s%d, 26" % S_CW); a("s_cbranch_scc1 no_cs1")
cs_fin = colsum_issue(a, va, 65)
a.label("no_cs1")
nonce_issue(a, vN, vZ)
S(1)
a("s_waitcnt vmcnt(0)")
nonce_finish(a, vN, vZ)
S(2)
a("s_cmp_ge_u32 s%d, 64" % S_CW); a("s_cbranch_scc1 no_st2")
st_fin(0)
a.label("no_st2")
conv_issue_x(a, R)
a("s_cmp_lt_u32 s%d, 26" % S_CW); a("s_cbranch_scc1 no_cs2")
cs_fin()
a.label("no_cs2")
va.release(m0)
S(3)
conv_kgen(a, va, R, None, hook=lambda: conv_stats_load(a, va, R, "sc1"))
S(4)
m0 = va.mark(); t0, t1 = va(), va()
a.label("cv_chk")
a("s_waitcnt vmcnt(0)")
tags_check(a, [R["st"][i >> 1] + 2*(i & 1) + 1 for i in range(4)], t0, t1, "cv_retry")
va.release(m0)
S(5)
conv_make_u(a, va, R)
S(6)
conv_main(a, va, R, sc="sc1", stamps=S)
a("s_waitcnt vmcnt(0)")
a("s_barrier")
a("s_cmp_lg_u32 s%d, 0" % S_WAVE); a("s_cbranch_scc1 cv_fin")
a("s_lshr_b32 s%d, s%d, 3" % (S_T, S_CW)); a("s_lshl_b32 s%d, s%d, 7" % (S_T, S_T))
a("s_and_b32 s%d, s%d, 7" % (S_T+1, S_CW)); a("s_lshl_b32 s%d, s%d, 2" % (S_T+1, S_T+1))
a("s_add_u32 s%d, s%d, s%d" % (S_T, S_T, S_T+1)); a("s_add_u32 s%d, s%d, 0x%x" % (S_T, S_T, WS_FL + 0x1000))
flag_store(a, S_T, 1, 2)
a.label("cv_fin")
S.flush()
a("s_endpgm")
a.label("cv_retry")
conv_stats_load(a, va, R, "sc1")
a("s_branch cv_chk")
hi = max(hi, va.hi)
a.label("role_g")
sI = 64
a("s_sub_u32 s%d, s2, 80" % S_T)
a("s_lshr_b32 s%d, s%d, 3" % (sI, S_T))
a("s_and_b32 s%d, s%d, 1" % (S_T+1, S_T))
a("s_bfe_u32 s%d, s%d, 0x20001" % (S_T+2, S_T))
a("s_lshl_b32 s%d, s%d, 2" % (S_T+2, S_T+2))
a("s_lshr_b32 s%d, s%d, 2" % (S_T+3, sI))
a("s_mul_i32 s%d, s%d, 6" % (S_CB, S_T+1)); a("s_add_u32 s%d, s%d, s%d" % (S_CB, S_CB, S_T+3))
a("s_mul_i32 s%d, s%d, 5" % (S_DB, S_T+1)); a("s_add_u32 s%d, s%d, s%d" % (S_DB, S_DB, S_T+3))
a("s_and_b32 s%d, s%d, 3" % (S_RB, sI))
a("s_lshl_b32 s%d, s%d, 1" % (S_T+1, S_T+1)); a("s_add_u32 s%d, s%d, s%d" % (S_T+1, S_T+1, S_RB))
a("s_cmp_ge_u32 s%d, 20" % sI)
a("s_cselect_b32 s%d, 5, s%d" % (S_CB, S_CB))
a("s_cselect_b32 s%d, s%d, s%d" % (S_RB, S_T+1, S_RB))
a("s_add_u32 s%d, s%d, s%d" % (S_RB, S_RB, S_T+2))
a("s_waitcnt lgkmcnt(0)")
srd(a, SRD_X, P_U, X_BYTES); srd(a, SRD_W, P_W1, W_BYTES); srd(a, SRD_WS, P_WS, 32 << 20)
srd(a, SRD_W2, P_W2, W_BYTES); srd(a, SRD_O, P_OUT, X_BYTES)
a("s_cmp_ge_u32 s%d, 4" % S_WAVE); a("s_cbranch_scc1 g_help")
va = VAlloc()
role_g1.g1_compute(a, va, sc="sc1", stamps=S)
a("s_waitcnt vmcnt(0)")
S(7)
a("s_barrier")
a("s_cmp_lg_u32 s%d, 0" % S_WAVE); a("s_cbranch_scc1 g_noflag")
a("s_lshl_b32 s%d, s%d, 7" % (S_T, S_RB)); a("s_lshl_b32 s%d, s%d, 2" % (S_T+1, S_CB))
a("s_add_u32 s%d, s%d, s%d" % (S_T, S_T, S_T+1)); a("s_add_u32 s%d, s%d, 0x%x" % (S_T, S_T, WS_FL))
flag_store(a, S_T, 1, 2)
a.label("g_noflag")
if STAMPS:
    S.flush(); a("s_mov_b64 exec, -1"); S2.clear(); S2(0)
a("s_cmp_ge_u32 s%d, 20" % sI); a("s_cbranch_scc1 k_end")
sF = S_T+4
def h_wait(vP, t):
    a("v_min_u32 %s, 10, v0" % vr(t)); a("v_lshlrev_b32 %s, 2, %s" % (vr(t), vr(t)))
    a("s_lshl_b32 s%d, s%d, 7" % (sF, S_RB)); a("s_add_u32 s%d, s%d, 0x%x" % (sF, sF, WS_FL))
    a.label("h_poll")
    a("buffer_load_dword %s, %s, s[%d:%d], s%d offen sc1" % (vr(vP), vr(t), SRD_WS, SRD_WS+3, sF))
    a("s_waitcnt vmcnt(0)")
    a("v_cmp_ne_u32 vcc, s%d, %s" % (S_NONCE, vr(vP)))
    a("s_cbranch_vccnz h_poll")
class XP:
    def issue(s, vP, t):
        return ["v_and_b32 %s, 7, v0" % vr(t), "v_lshlrev_b32 %s, 2, %s" % (vr(t), vr(t)),
                "s_lshl_b32 s%d, s%d, 7" % (sF, S_DB), "s_add_u32 s%d, s%d, 0x%x" % (sF, sF, WS_FL + 0x1000),
                ("buffer_load_dword %s, %s, s[%d:%d], s%d offen sc1" % (vr(vP), vr(t), SRD_WS, SRD_WS+3, sF), ("poll",))]
    def finish(s, vP, t, reload):
        a("v_cmp_ne_u32 vcc, s%d, %s" % (S_NONCE, vr(vP)))
        a("s_cbranch_vccz xa_ok")
        a.label("xa_poll")
        a("buffer_load_dword %s, %s, s[%d:%d], s%d offen sc1" % (vr(vP), vr(t), SRD_WS, SRD_WS+3, sF))
        a("s_waitcnt vmcnt(0)")
        a("v_cmp_ne_u32 vcc, s%d, %s" % (S_NONCE, vr(vP)))
        a("s_cbranch_vccnz xa_poll")
        reload()
        a("s_waitcnt vmcnt(0)")
        a.label("xa_ok")
        S2(6)
role_g2.g2_compute(a, va, h_wait=h_wait, xa_poll=XP(), sc="sc1", stamps=S2)
S2.flush()
a("s_endpgm")
hi = max(hi, va.hi)
a.label("g_help")
va = VAlloc()
issue2 = role_g2.g2_helper_setup(a, va)
def hook(b):
    if b == 8: issue2(0); return ["w2"]*6
    if b == 9: issue2(1); issue2(2); return ["w2"]*12
    return []
role_g1.g1_helper(a, va, stamps=S, hook=hook)
a("s_barrier")
if STAMPS:
    S(7)
a("s_cmp_ge_u32 s%d, 20" % sI); a("s_cbranch_scc1 g_help_end")
for st in (3, 4, 5): issue2(st)
if STAMPS: S(8)
role_g2.g2_helper_loop(a, issue2, 6)
a.label("g_help_end")
a("s_waitcnt vmcnt(0)")
S.flush()
a.label("k_end"); a("s_endpgm")
hi = max(hi, va.hi)
out = hdr + "; @launch grid=(256,1,1) block=(512,1,1) lds=163840\n"
out += '.amdgcn_target "amdgcn-amd-amdhsa--gfx950"\n.text\n'
k = KN + "_kernel"
out += ".globl %s\n.p2align 8\n.type %s,@function\n%s:\n%s" % (k, k, k, a.text())
out += '.section .rodata,"a"\n.p2align 6\n' + kernel_desc(k, hi)
open(sys.argv[1], "w").write(out)
print("vgprs", hi, "lines", len(a.l))
```

```python
from gen_common import *
import math
PW = 15872
TOFF = 12800
REGB = 8448
UB = 8*PW
USTR = 4576
S_CW = 66
LOG2E = 1.4426950408889634
L2E_HI = f2u(LOG2E); L2E_LO = f2u(LOG2E - struct.unpack("<f", struct.pack("<f", LOG2E))[0])

def exp_bf16(a, dst, src, t0, t1, sH, sL, sN):
    a("v_mul_f32 %s, s%d, %s" % (vr(t0), sH, vr(src)))
    a("v_fma_f32 %s, %s, s%d, -%s" % (vr(t1), vr(src), sH, vr(t0)))
    a("v_fmac_f32 %s, s%d, %s" % (vr(t1), sL, vr(src)))
    a("v_exp_f32 %s, %s" % (vr(t0), vr(t0)))
    a("v_mul_f32 %s, s%d, %s" % (vr(t1), sN, vr(t1)))
    a("v_fma_f32 %s, %s, %s, %s" % (vr(t0), vr(t0), vr(t1), vr(t0)))
    a("v_cvt_pk_bf16_f32 %s, %s, %s" % (vr(t0), vr(t0), vr(t0)))
    a("v_lshlrev_b32 %s, 16, %s" % (vr(dst), vr(t0)))

def cmul(a, z, x, y, t):
    a("v_pk_mul_f32 %s, %s, %s op_sel_hi:[1,0]" % (vr(t,2), vr(x,2), vr(y,2)))
    a("v_pk_fma_f32 %s, %s, %s, %s op_sel:[1,1,0] op_sel_hi:[0,1,1] neg_lo:[1,0,0]" % (vr(z,2), vr(x,2), vr(y,2), vr(t,2)))

def conv_issue_loads(a, va, sc=""):
    R = {}
    R["par"] = [va() for _ in range(4)]
    R["x"] = [va(4, 4) for _ in range(4)]
    R["st"] = [va(4, 4) for _ in range(2)]
    t = va(); R["t"] = t
    sD = S_T+8; R["sD"] = sD
    a("s_lshl_b32 s%d, s%d, 3" % (sD, S_CW))
    a("s_add_u32 s%d, s%d, s%d" % (sD, sD, S_WAVE))
    a("s_lshl_b32 s%d, s%d, 8" % (S_T, sD))
    a("v_lshlrev_b32 %s, 2, v0" % vr(t))
    a("v_add_u32 %s, s%d, %s" % (vr(t), S_T, vr(t)))
    for i, p in enumerate((P_LOGA, P_AIM, P_CRE, P_CIM)):
        a("global_load_dword %s, %s, s[%d:%d]" % (vr(R["par"][i]), vr(t), p, p+1))
    a("s_lshr_b32 s%d, s%d, 1" % (S_T, sD))
    a("s_lshl_b32 s%d, s%d, 2" % (S_T, S_T))
    a("s_load_dword s%d, s[%d:%d], s%d" % (sD+1, P_LOGDT, P_LOGDT+1, S_T))
    a("s_load_dword s%d, s[%d:%d], s%d" % (sD+2, P_DSK, P_DSK+1, S_T))
    return R

def conv_issue_x(a, R):
    t = R["t"]; sX = 63
    a("s_mul_i32 s%d, s%d, %d" % (sX, S_WAVE, 256*1280))
    a("s_lshl_b32 s%d, s%d, 4" % (S_T+1, S_CW))
    a("s_add_u32 s%d, s%d, s%d" % (sX, sX, S_T+1))
    a("v_mul_u32_u24 %s, 5120, v0" % vr(t))
    return ["buffer_load_dwordx4 %s, %s, s[%d:%d], s%d offen offset:%d %s" % (vr(R["x"][i], 4), vr(t), SRD_X, SRD_X+3, sX, 1280*i, os.environ.get("XSC", "")) for i in range(4)]

def colsum_issue(a, va, s_blk):
    W = [va(4, 4) for _ in range(5)]; D = va(4, 4); I = va(4, 4); t0 = va(); t1 = va()
    a("s_mul_i32 s%d, s%d, %d" % (S_T, S_WAVE, 80*3456))
    a("s_lshl_b32 s%d, s%d, 6" % (S_T+1, s_blk))
    a("s_add_u32 s%d, s%d, s%d" % (S_T, S_T, S_T+1))
    a("v_lshrrev_b32 %s, 2, v0" % vr(t0))
    a("v_mul_u32_u24 %s, 3456, %s" % (vr(t0), vr(t0)))
    a("v_and_b32 %s, 3, v0" % vr(t1))
    a("v_lshl_add_u32 %s, %s, 4, %s" % (vr(t0), vr(t1), vr(t0)))
    for i in range(5):
        a("buffer_load_dwordx4 %s, %s, s[%d:%d], s%d offen" % (vr(W[i], 4), vr(t0), SRD_W, SRD_W+3, S_T))
        if i < 4: a("s_add_u32 s%d, s%d, %d" % (S_T, S_T, 16*3456))
    def finish():
        XO = 14464
        a("v_and_b32 %s, 15, v0" % vr(t0))
        a("v_and_b32 %s, 1, v0" % vr(t1))
        a("v_lshlrev_b32 %s, 4, %s" % (vr(t1), vr(t1)))
        a("v_mov_b32 %s, 0x3f80" % vr(D))
        a("v_lshlrev_b32 %s, %s, %s" % (vr(t1), vr(t1), vr(D)))
        a("v_lshrrev_b32 %s, 1, %s" % (vr(t0), vr(t0)))
        for k in range(4):
            a("v_cmp_eq_u32 vcc, %d, %s" % (k, vr(t0)))
            a("s_nop 1")
            a("v_cndmask_b32 %s, 0, %s, vcc" % (vr(I+k), vr(t1)))
        a("s_nop 1")
        for i in range(5):
            a("v_mfma_f32_16x16x32_bf16 %s, %s, %s, %s" % (vr(D, 4), vr(I, 4), vr(W[i], 4), "0" if i == 0 else vr(D, 4)))
        a("v_and_b32 %s, 3, v0" % vr(t0))
        a("v_lshlrev_b32 %s, 5, %s" % (vr(t0), vr(t0)))
        a("v_lshrrev_b32 %s, 4, v0" % vr(t1))
        a("v_lshl_add_u32 %s, %s, 4, %s" % (vr(t0), vr(t1), vr(t0)))
        a("s_lshl_b32 s%d, s%d, 7" % (S_T, S_WAVE))
        a("v_add_u32 %s, s%d, %s" % (vr(t0), S_T, vr(t0)))
        a("s_nop 3")
        for r in (4, 8):
            for k in range(4):
                a("v_add_f32_dpp %s, %s, %s row_ror:%d row_mask:0xf bank_mask:0xf" % (vr(D+k), vr(D+k), vr(D+k), r))
        a("s_mov_b32 exec_lo, 0x000f000f"); a("s_mov_b32 exec_hi, 0")
        a("ds_write_b128 %s, %s offset:%d" % (vr(t0), vr(D, 4), XO))
        a("s_mov_b64 exec, -1")
        a("s_waitcnt lgkmcnt(0)")
        a("s_barrier")
        done = a.newlabel("cs_done")
        a("s_cmp_lg_u32 s%d, 0" % S_WAVE)
        a("s_cbranch_scc1 %s" % done)
        a("v_and_b32 %s, 15, v0" % vr(t0))
        a("v_lshlrev_b32 %s, 3, %s" % (vr(t1), vr(t0)))
        for k in range(8): a("ds_read_b64 %s, %s offset:%d" % (vr(W[k >> 1] + 2*(k & 1), 2), vr(t1), XO + 128*k))
        a("v_lshlrev_b32 %s, 4, %s" % (vr(t0), vr(t0)))
        a("s_lshl_b32 s%d, s%d, 8" % (S_T, s_blk))
        a("s_add_u32 s%d, s%d, 0x%x" % (S_T, S_T, WS_CS))
        a("v_mov_b32 %s, s%d" % (vr(D+2), S_NONCE)); a("v_mov_b32 %s, s%d" % (vr(D+3), S_NONCE))
        a("s_waitcnt lgkmcnt(0)")
        a("v_pk_add_f32 %s, %s, %s" % (vr(D, 2), vr(W[0], 2), vr(W[0]+2, 2)))
        for k in range(2, 8): a("v_pk_add_f32 %s, %s, %s" % (vr(D, 2), vr(D, 2), vr(W[k >> 1] + 2*(k & 1), 2)))
        a("s_mov_b64 exec, 0xffff")
        a("buffer_store_dwordx4 %s, %s, s[%d:%d], s%d offen sc1" % (vr(D, 4), vr(t0), SRD_WS, SRD_WS+3, S_T))
        a("s_mov_b64 exec, -1")
        a.label(done)
    return finish

def conv_kgen(a, va, R, vm_params, stamps=None, hook=None, xload=None, mid=None):
    m = va.mark()
    sD = R["sD"]; sH, sL, sN, sB = S_T, S_T+1, S_T+2, S_T+3
    D = va(16, 4)
    fa = [va(4, 4) for _ in range(2)]; fb = [va(4, 4) for _ in range(2)]
    dt = va(); E1, E8, E256, Y, T = va(2), va(2), va(2), va(2), va(2)
    X = [va(2) for _ in range(8)]
    t0, t1, t2, t3 = va(), va(), va(), va()
    vW = va(); vR = va(); pk = [va() for _ in range(4)]
    a("s_mov_b32 s%d, 0x%08x" % (sH, L2E_HI)); a("s_mov_b32 s%d, 0x%08x" % (sL, L2E_LO)); a("s_mov_b32 s%d, 0x%08x" % (sN, f2u(math.log(2.0))))
    a("s_mul_i32 s%d, s%d, %d" % (sB, S_WAVE, PW))
    a("v_lshlrev_b32 %s, 2, v0" % vr(vW))
    a("v_add_u32 %s, s%d, %s" % (vr(vW), sB, vr(vW)))
    a("v_and_b32 %s, 31, v0" % vr(t0))
    a("v_mul_u32_u24 %s, 272, %s" % (vr(t0), vr(t0)))
    a("v_lshrrev_b32 %s, 5, v0" % vr(t1))
    a("v_lshl_add_u32 %s, %s, 4, %s" % (vr(t0), vr(t1), vr(t0)))
    a("v_add_u32 %s, s%d, %s" % (vr(vR), sB, vr(t0)))
    a("s_waitcnt lgkmcnt(0)")
    a("s_and_b32 s%d, s%d, 1" % (sB+1, sD))
    a("s_lshl_b32 s%d, s%d, 4" % (sB+1, sB+1))
    a("s_lshr_b32 s%d, s%d, s%d" % (sD+1, sD+1, sB+1)); a("s_lshl_b32 s%d, s%d, 16" % (sD+1, sD+1))
    a("s_lshr_b32 s%d, s%d, s%d" % (sD+2, sD+2, sB+1)); a("s_lshl_b32 s%d, s%d, 16" % (sD+2, sD+2))
    a("v_mov_b32 %s, s%d" % (vr(t2), sD+1))
    exp_bf16(a, dt, t2, t0, t1, sH, sL, sN)
    if vm_params is not None: a("s_waitcnt vmcnt(%d)" % vm_params)
    if stamps: stamps(2)
    cnt = [0]
    def put(row, z, neg):
        p = pk[cnt[0] % 4]; cnt[0] += 1
        a("v_cvt_pk_bf16_f32 %s, %s, %s%s" % (vr(p), vr(z), "-" if neg else "", vr(z+1)))
        a("ds_write_b32 %s, %s offset:%d" % (vr(vW), vr(p), row*272))
    for ps in range(2):
        def unp(dst, src):
            if ps == 0: a("v_lshlrev_b32 %s, 16, %s" % (vr(dst), vr(src)))
            else: a("v_and_b32 %s, 0xffff0000, %s" % (vr(dst), vr(src)))
        par = R["par"]
        if ps == 1:
            mid()
            a("s_mov_b32 s%d, 0x%08x" % (sH, L2E_HI)); a("s_mul_i32 s%d, s%d, %d" % (sB, S_WAVE, PW))
            a("s_mov_b32 s%d, 0x%08x" % (sL, L2E_LO)); a("s_mov_b32 s%d, 0x%08x" % (sN, f2u(math.log(2.0))))
            a(xload[1])
        unp(t2, par[0])
        exp_bf16(a, t2, t2, t0, t1, sH, sL, sN)
        a("v_mul_f32 %s, %s, %s" % (vr(t2), vr(t2), vr(dt)))
        a("v_mul_f32 %s, s%d, %s" % (vr(t2), sH, vr(t2)))
        unp(t3, par[1])
        a("v_mul_f32 %s, %s, %s" % (vr(t3), vr(t3), vr(dt)))
        a("v_mul_f32 %s, 0.15915494, %s" % (vr(t3), vr(t3)))
        for E, sc_ in ((E1, 1.0), (E8, 8.0), (E256, 256.0)):
            a("v_mul_f32 %s, 0x%08x, %s" % (vr(t0), f2u(-sc_), vr(t2)))
            a("v_mul_f32 %s, 0x%08x, %s" % (vr(t1), f2u(sc_), vr(t3)))
            a("v_exp_f32 %s, %s" % (vr(t0), vr(t0)))
            a("v_fract_f32 %s, %s" % (vr(t1), vr(t1)))
            a("v_cos_f32 %s, %s" % (vr(E), vr(t1)))
            a("v_sin_f32 %s, %s" % (vr(E+1), vr(t1)))
            a("s_nop 0")
            a("v_mul_f32 %s, %s, %s" % (vr(E), vr(E), vr(t0)))
            a("v_mul_f32 %s, %s, %s" % (vr(E+1), vr(E+1), vr(t0)))
        unp(X[0], par[2]); unp(X[0]+1, par[3])
        a("v_add_f32 %s, %s, %s" % (vr(t0), vr(dt), vr(dt)))
        a("v_mul_f32 %s, %s, %s" % (vr(X[0]), vr(X[0]), vr(t0)))
        a("v_mul_f32 %s, %s, %s" % (vr(X[0]+1), vr(X[0]+1), vr(t0)))
        if ps == 1: a("s_waitcnt lgkmcnt(0)")
        a("v_mov_b32 %s, 0x3f80" % vr(pk[3]))
        a("ds_write_b32 %s, %s offset:0" % (vr(vW), vr(pk[3])))
        put(1, E8, False)
        cmul(a, Y, E8, E8, T); put(2, Y, False)
        for q in range(3, 32):
            if ps == 1 and q == 8: a(xload[2])
            cmul(a, Y, Y, E8, T); put(q, Y, False)
        if ps == 1: a(xload[3])
        put(32, X[0], True)
        for i in range(1, 8):
            cmul(a, X[i], X[i-1], E1, T); put(32+i, X[i], True)
        for k, i in enumerate((0, 2, 4, 6)):
            cmul(a, X[i], X[i], E256, T); put(40+k, X[i], True)
        for k in range(2):
            for kk, i in enumerate((0, 4)):
                cmul(a, X[i], X[i], E256, T); put(44+2*k+kk, X[i], True)
        for k in range(5):
            cmul(a, X[0], X[0], E256, T); put(48+k, X[0], True)
        a("s_waitcnt lgkmcnt(0)")
        a("ds_read_b128 %s, %s offset:%d" % (vr(fa[0], 4), vr(vR), 32*272))
        a("ds_read_b128 %s, %s offset:%d" % (vr(fb[0], 4), vr(vR), 0))
        for s in range(8):
            b = s & 1
            if s < 7:
                a("ds_read_b128 %s, %s offset:%d" % (vr(fa[b^1], 4), vr(vR), 32*272 + 32*(s+1)))
                a("ds_read_b128 %s, %s offset:%d" % (vr(fb[b^1], 4), vr(vR), 32*(s+1)))
                a("s_waitcnt lgkmcnt(2)")
            else: a("s_waitcnt lgkmcnt(0)")
            c = "0" if (ps == 0 and s == 0) else vr(D, 16)
            a("v_mfma_f32_32x32x16_bf16 %s, %s, %s, %s" % (vr(D, 16), vr(fa[b], 4), vr(fb[b], 4), c))
    if hook is not None: hook()
    if stamps: stamps(3)
    q, h = t0, t1
    a("v_and_b32 %s, 31, v0" % vr(q)); a("v_lshrrev_b32 %s, 5, v0" % vr(h))
    a("s_add_u32 s%d, s%d, %d" % (sB+1, sB, TOFF))
    a0, a1, a2, a3 = pk
    a("v_lshlrev_b32 %s, 5, %s" % (vr(a0), vr(q)))
    a("v_lshl_add_u32 %s, %s, 4, %s" % (vr(a0), vr(h), vr(a0)))
    a("v_add_u32 %s, s%d, %s" % (vr(a0), sB+1, vr(a0)))
    a("v_cmp_eq_u32 vcc, 0, %s" % vr(h))
    a("v_lshlrev_b32 %s, 4, %s" % (vr(t2), vr(q)))
    a("v_lshlrev_b32 %s, 3, %s" % (vr(t3), vr(q)))
    a("v_add_u32 %s, %d, %s" % (vr(t2), 256*4, vr(t2)))
    a("v_add_u32 %s, %d, %s" % (vr(t3), 384*4, vr(t3)))
    a("v_cndmask_b32 %s, %s, %s, vcc" % (vr(a1), vr(t3), vr(t2)))
    a("v_add_u32 %s, 8, %s" % (vr(t2), vr(t2)))
    a("v_add_u32 %s, 256, %s" % (vr(t3), vr(t3)))
    a("v_cndmask_b32 %s, %s, %s, vcc" % (vr(a2), vr(t3), vr(t2)))
    a("v_add_u32 %s, s%d, %s" % (vr(a1), sB+1, vr(a1)))
    a("v_add_u32 %s, s%d, %s" % (vr(a2), sB+1, vr(a2)))
    a("v_lshlrev_b32 %s, 2, %s" % (vr(a3), vr(q)))
    a("v_lshl_add_u32 %s, %s, 9, %s" % (vr(a3), vr(h), vr(a3)))
    a("v_add_u32 %s, s%d, %s" % (vr(a3), sB+1, vr(a3)))
    a("ds_write_b128 %s, %s" % (vr(a0), vr(D, 4)))
    a("ds_write_b64 %s, %s" % (vr(a1), vr(D+4, 2)))
    a("ds_write_b64 %s, %s" % (vr(a2), vr(D+6, 2)))
    for p in range(4): a("ds_write_b32 %s, %s offset:%d" % (vr(a3), vr(D+8+p), 2048 + 128*p))
    lo, qq = t0, t1
    a("v_and_b32 %s, 15, v0" % vr(lo)); a("v_lshrrev_b32 %s, 4, v0" % vr(qq))
    a("v_lshlrev_b32 %s, 6, %s" % (vr(a0), vr(lo)))
    a("v_lshl_add_u32 %s, %s, 4, %s" % (vr(a0), vr(qq), vr(a0)))
    a("v_add_u32 %s, s%d, %s" % (vr(a0), sB+1, vr(a0)))
    a("v_lshlrev_b32 %s, 5, %s" % (vr(a1), vr(lo)))
    a("v_lshl_add_u32 %s, %s, 3, %s" % (vr(a1), vr(qq), vr(a1)))
    a("v_add_u32 %s, s%d, %s" % (vr(a1), sB+1, vr(a1)))
    a("v_and_b32 %s, 31, v0" % vr(t2)); a("v_lshrrev_b32 %s, 5, v0" % vr(t3))
    a("v_lshlrev_b32 %s, 4, %s" % (vr(a2), vr(t2)))
    a("v_lshl_add_u32 %s, %s, 3, %s" % (vr(a2), vr(t3), vr(a2)))
    a("v_add_u32 %s, s%d, %s" % (vr(a2), sB+1, vr(a2)))
    a("v_lshlrev_b32 %s, 3, v0" % vr(a3))
    a("v_add_u32 %s, s%d, %s" % (vr(a3), sB+1, vr(a3)))
    a("v_mov_b32 %s, s%d" % (vr(vR), sB+1))
    r0 = D; r1 = D+8; r2 = D+12; r3 = fa[0]; rz = fa[1]
    a("s_waitcnt lgkmcnt(0)")
    a("ds_read_b128 %s, %s" % (vr(r0, 4), vr(a0)))
    a("ds_read_b128 %s, %s offset:16" % (vr(r0+4, 4), vr(a0)))
    a("ds_read_b64 %s, %s offset:1024" % (vr(r1, 2), vr(a1)))
    a("ds_read_b64 %s, %s offset:1032" % (vr(r1+2, 2), vr(a1)))
    a("ds_read_b64 %s, %s offset:1536" % (vr(r2, 2), vr(a2)))
    a("ds_read_b32 %s, %s offset:1544" % (vr(r2+2), vr(a2)))
    a("ds_read_b64 %s, %s offset:2048" % (vr(r3, 2), vr(a3)))
    a("ds_read_b32 %s, %s offset:2056" % (vr(r3+2), vr(a3)))
    a("ds_read_b128 %s, %s" % (vr(rz, 4), vr(vR)))
    a("v_mul_u32_u24 %s, %d, %s" % (vr(a0), 4*528, vr(qq)))
    a("v_lshl_add_u32 %s, %s, 3, %s" % (vr(a0), vr(lo), vr(a0)))
    a("v_add_u32 %s, s%d, %s" % (vr(a0), sB, vr(a0)))
    a("v_mul_u32_u24 %s, %d, %s" % (vr(a2), 8*528, vr(t3)))
    a("v_lshl_add_u32 %s, %s, 3, %s" % (vr(a2), vr(t2), vr(a2)))
    a("v_add_u32 %s, s%d, %s" % (vr(a2), sB, vr(a2)))
    a("v_lshlrev_b32 %s, 3, v0" % vr(a3))
    a("v_add_u32 %s, s%d, %s" % (vr(a3), sB, vr(a3)))
    a("v_mul_u32_u24 %s, 528, %s" % (vr(a1), vr(lo)))
    a("v_add_u32 %s, s%d, %s" % (vr(a1), sB, vr(a1)))
    a("v_cmp_eq_u32 vcc, 63, v0")
    a("s_waitcnt lgkmcnt(0)")
    a("s_nop 1")
    a("v_cndmask_b32 %s, %s, %s, vcc" % (vr(r0+6), vr(r0+6), vr(r0+5)))
    a("v_cndmask_b32 %s, %s, %s, vcc" % (vr(r0+5), vr(r0+5), vr(r0+4)))
    a("v_cndmask_b32 %s, %s, %s, vcc" % (vr(r1+3), vr(r1+3), vr(r1+2)))
    W = X + [E1, E8, E256, Y]
    wc = [0]
    def win(adr, off, v3, v2, v1, v0_):
        p = W[wc[0] % len(W)]; wc[0] += 1
        a("v_cvt_pk_bf16_f32 %s, %s, %s" % (vr(p), vr(v3), vr(v2)))
        a("v_cvt_pk_bf16_f32 %s, %s, %s" % (vr(p+1), vr(v1), vr(v0_)))
        a("ds_write_b64 %s, %s offset:%d" % (vr(adr), vr(p, 2), off))
        return p
    for i in range(4): win(a0, i*528 + 8, r0+i+3, r0+i+2, r0+i+1, r0+i)
    K1 = [r1, r1, r1+1, r1+2, r1+2, r1+2, r1+3]
    for i in range(4): win(a0, i*528 + 8 + 128, K1[i+3], K1[i+2], K1[i+1], K1[i])
    K2 = [r2]*3 + [r2+1]*3 + [r2+2]*5
    for i in range(7):
        p = win(a2, i*528 + 8 + 256, K2[i+3], K2[i+2], K2[i+1], K2[i])
    a("ds_write_b64 %s, %s offset:%d" % (vr(a2), vr(p, 2), 7*528 + 8 + 256))
    K3 = [r3]*5 + [r3+1]*7 + [r3+2]*7
    for arr, ph in enumerate((0, 2, 3, 4, 5, 9, 10, 11)):
        win(a3, REGB + arr*544, K3[ph+3], K3[ph+2], K3[ph+1], K3[ph])
    win(a3, REGB + 8, r3+2, r3+2, r3+2, r3+2)
    p = T
    a("v_mov_b32 %s, 0" % vr(rz+3))
    a("v_cvt_pk_bf16_f32 %s, %s, %s" % (vr(t2), vr(rz), vr(rz+3)))
    a("v_cvt_pk_bf16_f32 %s, %s, %s" % (vr(t3), vr(rz+1), vr(rz)))
    a("v_cvt_pk_bf16_f32 %s, %s, %s" % (vr(rz+1), vr(rz+2), vr(rz+1)))
    a("v_cmp_eq_u32 vcc, 13, %s" % vr(lo)); a("s_nop 1")
    a("v_cndmask_b32 %s, 0, %s, vcc" % (vr(p), vr(t2)))
    a("v_cmp_eq_u32 vcc, 14, %s" % vr(lo)); a("s_nop 1")
    a("v_cndmask_b32 %s, %s, %s, vcc" % (vr(p), vr(p), vr(t3)))
    a("v_cmp_eq_u32 vcc, 15, %s" % vr(lo)); a("s_nop 1")
    a("v_cndmask_b32 %s, %s, %s, vcc" % (vr(p), vr(p), vr(rz+1)))
    a("v_cndmask_b32 %s, 0, %s, vcc" % (vr(p+1), vr(t2)))
    a("ds_write_b64 %s, %s" % (vr(a1), vr(p, 2)))
    va.release(m)

def conv_stats_load(a, va, R, sc=""):
    t = R["t"]
    a("s_lshl_b32 s%d, s%d, 11" % (S_T, S_WAVE))
    a("s_add_u32 s%d, s%d, 0x%x" % (S_T, S_T, WS_ST))
    a("v_lshlrev_b32 %s, 5, v0" % vr(t))
    for i in range(2):
        a("buffer_load_dwordx4 %s, %s, s[%d:%d], s%d offen offset:%d %s" % (vr(R["st"][i], 4), vr(t), SRD_WS, SRD_WS+3, S_T, 16*i, sc))

def conv_make_u(a, va, R):
    m = va.mark()
    xn = [va(8, 2) for _ in range(4)]
    ms = [va(2) for _ in range(4)]
    T = [va(2) for _ in range(2)]; o = [va(2) for _ in range(2)]; adr = va(); z = va(2)
    for i in range(4):
        g = R["st"][i >> 1] + 2*(i & 1)
        a("v_and_b32 %s, 0xffff0000, %s" % (vr(ms[i]+1), vr(g)))
        a("v_rcp_f32 %s, %s" % (vr(ms[i]+1), vr(ms[i]+1)))
        a("v_lshlrev_b32 %s, 16, %s" % (vr(ms[i]), vr(g)))
    a("s_mul_i32 s%d, s%d, %d" % (S_T, S_WAVE, USTR))
    a("s_add_u32 s%d, s%d, %d" % (S_T, S_T, UB))
    a("v_lshlrev_b32 %s, 3, v0" % vr(adr))
    a("v_add_u32 %s, s%d, %s" % (vr(z), S_T, vr(adr)))
    a("v_mov_b32 %s, 0" % vr(o[0])); a("v_mov_b32 %s, 0" % vr(o[0]+1))
    a("s_mov_b32 exec_hi, 0x0fffffff")
    a("ds_write_b64 %s, %s" % (vr(z), vr(o[0], 2)))
    a("s_mov_b32 exec_hi, -1")
    a("s_lshl_b32 s%d, s%d, 9" % (S_T, S_WAVE))
    a("s_add_u32 s%d, s%d, %d" % (S_T, S_T, UB + 480))
    a("v_add_u32 %s, s%d, %s" % (vr(adr), S_T, vr(adr)))
    k = 0
    for jd in range(4):
        for i in range(4):
            t = T[k & 1]; k += 1
            x = R["x"][i] + jd
            a("v_lshlrev_b32 %s, 16, %s" % (vr(t), vr(x)))
            a("v_and_b32 %s, 0xffff0000, %s" % (vr(t+1), vr(x)))
            a("v_pk_add_f32 %s, %s, %s op_sel_hi:[1,0] neg_lo:[0,1] neg_hi:[0,1]" % (vr(t,2), vr(t,2), vr(ms[i],2)))
            a("v_cvt_pk_bf16_f32 %s, %s, %s" % (vr(t+1), vr(t), vr(t+1)))
            a("v_lshlrev_b32 %s, 16, %s" % (vr(t), vr(t+1)))
            a("v_and_b32 %s, 0xffff0000, %s" % (vr(t+1), vr(t+1)))
            a("v_pk_mul_f32 %s, %s, %s op_sel:[0,1] op_sel_hi:[1,1]" % (vr(xn[i]+2*jd, 2), vr(t,2), vr(ms[i],2)))
        for dd in range(2):
            d = 2*jd + dd; oo = o[dd]
            a("v_cvt_pk_bf16_f32 %s, %s, %s" % (vr(oo), vr(xn[0]+d), vr(xn[1]+d)))
            a("v_cvt_pk_bf16_f32 %s, %s, %s" % (vr(oo+1), vr(xn[2]+d), vr(xn[3]+d)))
            a("ds_write_b64 %s, %s offset:%d" % (vr(adr), vr(oo, 2), d*USTR))
    va.release(m)

def conv_main(a, va, R, sc="", stamps=None):
    m = va.mark()
    sD = R["sD"]
    acc = [va(4, 4) for _ in range(8)]
    A = [[va(4, 4) for _ in range(8)] for _ in range(2)]
    B = [[va(4, 4) for _ in range(8)] for _ in range(2)]
    aA = [va(), va()]; aB = [va(), va()]; aX = [va(), va()]; aU = va(); aO = va()
    t0, t1, t2, t3, t4 = va(), va(), va(), va(), va()
    sB = S_T
    a("s_mul_i32 s%d, s%d, %d" % (sB, S_WAVE, PW))
    a("s_mov_b32 s%d, 0x44432100" % (sB+1))
    a("v_and_b32 %s, 15, v0" % vr(t0))
    a("v_lshrrev_b32 %s, 4, v0" % vr(t1))
    a("v_mov_b32 %s, 0x7654" % vr(t4))
    for e in range(2):
        a("v_lshlrev_b32 %s, 3, %s" % (vr(t2), vr(t1)))
        a("v_sub_u32 %s, %s, %s" % (vr(t2), vr(t0), vr(t2)))
        a("v_add_u32 %s, %d, %s" % (vr(t2), 13 - 4*e + 16, vr(t2)))
        a("v_lshrrev_b32 %s, 4, %s" % (vr(t3), vr(t2)))
        a("v_and_b32 %s, 15, %s" % (vr(t2), vr(t2)))
        a("v_mul_u32_u24 %s, 528, %s" % (vr(aA[e]), vr(t2)))
        a("v_lshl_add_u32 %s, %s, 3, %s" % (vr(aA[e]), vr(t3), vr(aA[e])))
        a("v_add_u32 %s, s%d, %s" % (vr(aA[e]), sB, vr(aA[e])))
        a("v_cmp_gt_u32 vcc, 8, %s" % vr(t2))
        a("v_mov_b32 %s, s%d" % (vr(aX[e]), sB+1))
        a("v_and_b32 %s, 7, %s" % (vr(aB[e]), vr(t2)))
        a("v_cndmask_b32 %s, %s, %s, vcc" % (vr(aX[e]), vr(t4), vr(aX[e])))
        a("v_lshlrev_b32 %s, 2, %s" % (vr(aB[e]), vr(aB[e])))
        a("v_bfe_u32 %s, %s, %s, 4" % (vr(aB[e]), vr(aX[e]), vr(aB[e])))
        a("v_mul_u32_u24 %s, 544, %s" % (vr(aB[e]), vr(aB[e])))
        a("v_cmp_lt_u32 vcc, 11, %s" % vr(t2))
        a("v_lshl_add_u32 %s, %s, 3, %s" % (vr(aB[e]), vr(t3), vr(aB[e])))
        a("v_add_u32 %s, s%d, %s" % (vr(aB[e]), sB, vr(aB[e])))
        a("v_cndmask_b32 %s, 0, 8, vcc" % vr(t2))
        a("v_add_u32 %s, %d, %s" % (vr(aB[e]), REGB - 8, vr(aB[e])))
        a("v_add_u32 %s, %s, %s" % (vr(aB[e]), vr(t2), vr(aB[e])))
        a("v_cmp_eq_u32 vcc, 0, %s" % vr(t3))
        a("v_add_u32 %s, 512, %s" % (vr(t2), vr(aA[e])))
        a("s_nop 0")
        a("v_cndmask_b32 %s, %s, %s, vcc" % (vr(aX[e]), vr(aB[e]), vr(t2)))
    a("s_mul_i32 s%d, s%d, %d" % (sB+1, S_WAVE, USTR))
    a("s_add_u32 s%d, s%d, %d" % (sB+1, sB+1, UB))
    a("v_lshlrev_b32 %s, 5, %s" % (vr(t2), vr(t0)))
    a("v_lshl_add_u32 %s, %s, 4, %s" % (vr(aU), vr(t1), vr(t2)))
    a("v_add_u32 %s, s%d, %s" % (vr(aU), sB+1, vr(aU)))
    a("v_lshl_add_u32 %s, %s, 3, %s" % (vr(aO), vr(t1), vr(t2)))
    a("v_add_u32 %s, s%d, %s" % (vr(aO), sB+1, vr(aO)))
    a("s_waitcnt lgkmcnt(0)")
    a("s_barrier")
    def loads(r):
        b = r & 1; L = []
        for i in range(8):
            t = 8*i + r
            L.append("ds_read_b128 %s, %s offset:%d" % (vr(B[b][i], 4), vr(aU), 512*i + 64*(7-r)))
            for e in range(2):
                if t <= 31: adr, off = aA[e], 16*t
                elif t == 32: adr, off = aX[e], 0
                else: adr, off = aB[e], 16*(t-32)
                L.append("ds_read_b64 %s, %s offset:%d" % (vr(A[b][i]+2*e, 2), vr(adr), off))
        return L
    if stamps: stamps(7)
    for x in loads(0): a(x)
    for r in range(8):
        b = r & 1
        L = loads(r+1) if r < 7 else []
        if r == 7:
            L = ["ds_read_b64 %s, %s offset:%d" % (vr(A[0][i], 2), vr(aO), 480 + 512*i) for i in range(8)]
        a("s_waitcnt lgkmcnt(0)")
        li = 0
        for mm in range(8):
            for i in range(mm, 8):
                c = "0" if (r == 0 and mm == 0) else vr(acc[i], 4)
                a("v_mfma_f32_16x16x32_bf16 %s, %s, %s, %s" % (vr(acc[i], 4), vr(A[b][mm], 4), vr(B[b][i-mm], 4), c))
                if li < len(L): a(L[li]); li += 1
    if stamps: stamps(8)
    a("s_waitcnt lgkmcnt(0)")
    a("s_nop 4")
    T = [B[0][0], B[0][0]+2, B[0][1], B[0][1]+2]
    for i in range(8):
        o = B[0][2 + (i & 1)]
        for k in range(2):
            y, s = T[2*k], T[2*k+1]
            a("v_cvt_pk_bf16_f32 %s, %s, %s" % (vr(y+1), vr(acc[i]+2*k), vr(acc[i]+2*k+1)))
            a("v_lshlrev_b32 %s, 16, %s" % (vr(s), vr(A[0][i]+k)))
            a("v_and_b32 %s, 0xffff0000, %s" % (vr(s+1), vr(A[0][i]+k)))
            a("v_mul_f32 %s, s%d, %s" % (vr(s), sD+2, vr(s)))
            a("v_mul_f32 %s, s%d, %s" % (vr(s+1), sD+2, vr(s+1)))
            a("v_lshlrev_b32 %s, 16, %s" % (vr(y), vr(y+1)))
            a("v_cvt_pk_bf16_f32 %s, %s, %s" % (vr(s+1), vr(s), vr(s+1)))
            a("v_and_b32 %s, 0xffff0000, %s" % (vr(y+1), vr(y+1)))
            a("v_lshlrev_b32 %s, 16, %s" % (vr(s), vr(s+1)))
            a("v_and_b32 %s, 0xffff0000, %s" % (vr(s+1), vr(s+1)))
            a("v_pk_add_f32 %s, %s, %s" % (vr(y,2), vr(y,2), vr(s,2)))
            a("v_cvt_pk_bf16_f32 %s, %s, %s" % (vr(o+k), vr(y), vr(y+1)))
        a("ds_write_b64 %s, %s offset:%d" % (vr(aO), vr(o, 2), 480 + 512*i))
    a("s_lshl_b32 s%d, s%d, 9" % (sB+1, S_WAVE))
    a("s_add_u32 s%d, s%d, %d" % (sB+1, sB+1, UB + 480))
    a("v_lshlrev_b32 %s, 3, v0" % vr(t0))
    a("v_add_u32 %s, s%d, %s" % (vr(t0), sB+1, vr(t0)))
    a("v_lshlrev_b32 %s, 6, v0" % vr(t1))
    a("v_add_u32 %s, s%d, %s" % (vr(t1), sB, vr(t1)))
    a("v_lshlrev_b32 %s, 4, v0" % vr(t2))
    a("v_add_u32 %s, s%d, %s" % (vr(t3), sB, vr(t2)))
    a("s_lshl_b32 s%d, s%d, 3" % (sB, S_CW))
    a("s_add_u32 s%d, s%d, s%d" % (sB, sB, S_WAVE))
    a("s_lshl_b32 s%d, s%d, 12" % (sB, sB))
    a("s_add_u32 s%d, s%d, 0x%x" % (sB, sB, WS_AT))
    a("s_waitcnt lgkmcnt(0)")
    a("s_barrier")
    Ar = [A[1][k >> 1] + 2*(k & 1) for k in range(8)]
    for k in range(8): a("ds_read_b64 %s, %s offset:%d" % (vr(Ar[k], 2), vr(t0), k*USTR))
    c = 0
    for jd in range(4):
        a("s_waitcnt lgkmcnt(%d)" % (6 - 2*jd))
        for i in range(4):
            y, s = T[2*(c & 1)], T[2*(c & 1)+1]; c += 1
            x = R["x"][i] + jd
            a("v_lshlrev_b32 %s, 16, %s" % (vr(s), vr(x)))
            a("v_and_b32 %s, 0xffff0000, %s" % (vr(s+1), vr(x)))
            for dd in range(2):
                src = Ar[2*jd+dd] + (i >> 1)
                if i & 1: a("v_and_b32 %s, 0xffff0000, %s" % (vr(y+dd), vr(src)))
                else: a("v_lshlrev_b32 %s, 16, %s" % (vr(y+dd), vr(src)))
            a("v_pk_add_f32 %s, %s, %s" % (vr(y,2), vr(y,2), vr(s,2)))
            a("v_cvt_pk_bf16_f32 %s, %s, %s" % (vr(B[1][i]+jd), vr(y), vr(y+1)))
    for i in range(4): a("ds_write_b128 %s, %s offset:%d" % (vr(t1), vr(B[1][i], 4), 16*i))
    a("s_waitcnt lgkmcnt(0)")
    for i in range(4): a("ds_read_b128 %s, %s offset:%d" % (vr(B[1][4+i], 4), vr(t3), 1024*i))
    for i in range(4):
        a("s_waitcnt lgkmcnt(%d)" % (3-i))
        a("buffer_store_dwordx4 %s, %s, s[%d:%d], s%d offen offset:%d %s" % (vr(B[1][4+i], 4), vr(t2), SRD_WS, SRD_WS+3, sB, 1024*i, sc))
    va.release(m)
```

```python
from gen_common import *
DBG = os.environ.get('DBG','').split(',')
G1_STAGE = 36864
G1_NB = 4
G1_MISC = G1_STAGE*G1_NB
S_RB, S_CB = 60, 61
S_ROT1 = 62

def g1_helper(a, va, stamps=False, hook=None):
    m = va.mark()
    vXo = [va() for _ in range(4)]; vWo = [va() for _ in range(5)]; t0 = va(); t1 = va(); t2 = va()
    sH = S_T; sA = S_T+1; sXs = S_T+2; sWs = S_T+3; sM = S_T+4; sK = S_ROT1
    a("s_sub_u32 s%d, s%d, 4" % (sH, S_WAVE))
    a("s_lshl_b32 s%d, s%d, 7" % (sA, S_RB))
    a("s_lshl_b32 s%d, s%d, 5" % (sM, sH))
    a("s_add_u32 s%d, s%d, s%d" % (sA, sA, sM))
    a("v_lshrrev_b32 %s, 3, v0" % vr(t0))
    a("v_and_b32 %s, 7, v0" % vr(t1))
    for i in range(4):
        a("v_add_u32 %s, %d, %s" % (vr(t2), 8*i, vr(t0)))
        a("v_bfe_u32 %s, %s, 1, 3" % (vr(vXo[i]), vr(t2)))
        a("v_xor_b32 %s, %s, %s" % (vr(vXo[i]), vr(vXo[i]), vr(t1)))
        a("v_lshlrev_b32 %s, 4, %s" % (vr(vXo[i]), vr(vXo[i])))
        a("v_add_u32 %s, s%d, %s" % (vr(t2), sA, vr(t2)))
        a("v_mul_u32_u24 %s, 1280, %s" % (vr(t2), vr(t2)))
        a("v_add_u32 %s, %s, %s" % (vr(vXo[i]), vr(vXo[i]), vr(t2)))
        if i: a("v_subrev_u32 %s, %d, %s" % (vr(vXo[i]), 1024*i, vr(vXo[i])))
    a("s_mul_i32 s%d, s%d, 320" % (sA, sH))
    a("s_mul_i32 s%d, s%d, 320" % (sM, S_CB))
    for i in range(5):
        a("v_add_u32 %s, s%d, v0" % (vr(t0), sA))
        if i: a("v_add_u32 %s, %d, %s" % (vr(t0), 64*i, vr(t0)))
        a("v_mul_u32_u24 %s, 3277, %s" % (vr(t1), vr(t0)))
        a("v_lshrrev_b32 %s, 16, %s" % (vr(t1), vr(t1)))
        a("v_mul_u32_u24 %s, 20, %s" % (vr(t2), vr(t1)))
        a("v_sub_u32 %s, %s, %s" % (vr(t0), vr(t0), vr(t2)))
        a("v_bfe_u32 %s, %s, 3, 1" % (vr(t2), vr(t1)))
        a("v_lshlrev_b32 %s, 1, %s" % (vr(t2), vr(t2)))
        a("v_xor_b32 %s, %s, %s" % (vr(t0), vr(t0), vr(t2)))
        a("v_lshlrev_b32 %s, 4, %s" % (vr(t0), vr(t0)))
        a("v_mul_u32_u24 %s, 3456, %s" % (vr(t1), vr(t1)))
        a("v_add3_u32 %s, %s, %s, s%d" % (vr(vWo[i]), vr(t0), vr(t1), sM))
        if 0 < i < 4: a("v_subrev_u32 %s, %d, %s" % (vr(vWo[i]), 1024*i, vr(vWo[i])))
    a("s_lshl_b32 s%d, s%d, 12" % (sA, sH))
    a("s_mul_i32 s%d, s%d, 5120" % (sM, sH))
    a("s_add_u32 s%d, s%d, 16384" % (sM, sM))
    def issue(st):
        buf = (st % G1_NB)*G1_STAGE
        if st:
            a("s_add_u32 s%d, s%d, 1" % (sK, sK))
            a("s_cmp_eq_u32 s%d, 10" % sK)
            a("s_cselect_b32 s%d, 0, s%d" % (sK, sK))
        a("s_lshl_b32 s%d, s%d, 7" % (sXs, sK))
        a("s_mul_i32 s%d, s%d, %d" % (sWs, sK, 64*3456))
        a("s_add_u32 m0, s%d, %d" % (sA, buf))
        a("s_nop 0")
        for i in range(4):
            a("buffer_load_dwordx4 %s, s[%d:%d], s%d offen offset:%d lds" % (vr(vXo[i]), SRD_X, SRD_X+3, sXs, 1024*i))
        a("s_add_u32 m0, s%d, %d" % (sM, buf))
        a("s_nop 0")
        for i in range(4):
            a("buffer_load_dwordx4 %s, s[%d:%d], s%d offen offset:%d lds" % (vr(vWo[i]), SRD_W, SRD_W+3, sWs, 1024*i))
        a("s_add_u32 m0, s%d, %d" % (sM, buf+4096))
        a("s_nop 0")
        a("buffer_load_dwordx4 %s, s[%d:%d], s%d offen lds" % (vr(vWo[4]), SRD_W, SRD_W+3, sWs))
    if stamps: stamps(1)
    PRE = int(os.environ.get("G1PRE", "2"))
    AHEAD = int(os.environ.get("AHEAD", "3")); AH0 = int(os.environ.get("AH0", "4")); GRB = int(os.environ.get("GRB", "7"))
    q = []
    def iss(st): issue(st); q.extend([st]*9)
    for st in range(PRE): iss(st)
    nxt = PRE
    for b in range(10):
        idx = max(i for i, t in enumerate(q) if t == b)
        a("s_waitcnt vmcnt(%d)" % (len(q) - 1 - idx))
        if stamps and b in (0, 1, 2, 3, 5, 7, 9): stamps({0:2, 1:3, 2:4, 3:5, 5:6, 7:7, 9:8}[b])
        a("s_barrier")
        while nxt <= min(9, b + (AHEAD if b >= AH0 else 2)): iss(nxt); nxt += 1
        if b == GRB:
            a("v_lshlrev_b32 %s, 4, v0" % vr(t0))
            a("s_lshl_b32 s%d, s%d, 10" % (sXs, S_RB)); a("s_add_u32 s%d, s%d, 0x%x" % (sXs, sXs, WS_ST))
            a("s_mul_i32 s%d, s%d, 1280" % (sWs, S_CB)); a("s_add_u32 s%d, s%d, 0x%x" % (sWs, sWs, WS_CS - 1024))
            a("s_lshl_b32 s%d, s%d, 10" % (S_T+5, sH)); a("s_add_u32 s%d, s%d, s%d" % (sWs, sWs, S_T+5))
            a("s_cmp_eq_u32 s%d, 0" % sH); a("s_cselect_b32 s%d, s%d, s%d" % (sWs, sXs, sWs))
            a("s_add_u32 m0, s%d, %d" % (S_T+5, G1_MISC))
            a("s_nop 0")
            a("buffer_load_dwordx4 %s, s[%d:%d], s%d offen sc1 lds" % (vr(t0), SRD_WS, SRD_WS+3, sWs))
            q.append("gr")
        if hook is not None: q.extend(hook(b))
    idx = q.index("gr")
    a("s_waitcnt vmcnt(%d)" % (len(q) - 1 - idx))
    a("s_barrier")

def g1_compute(a, va, stats_wait=None, sc="", stamps=False):
    m = va.mark()
    acc = [[va(4, 4) for t in range(4)] for j in range(5)]
    xf = [[va(4, 4) for t in range(4)] for b in range(2)]
    wf = [[va(4, 4) for j in range(5)] for b in range(2)]
    cs = [[va(4, 4) for k in range(2)] for j in range(5)]
    vN = va()
    vX = [[va() for h in range(2)] for s in range(2)]
    vW = [[[va() for h in range(2)] for s in range(2)] for k in range(3)]
    st = [va(2) for t in range(4)]
    t0, t1, t2, t3 = va(), va(), va(), va()
    sMP, sFP, sOne, sA = S_T, S_T+1, S_T+2, S_T+3
    a("s_lshr_b32 s%d, s%d, 1" % (sMP, S_WAVE))
    a("s_and_b32 s%d, s%d, 1" % (sFP, S_WAVE))
    a("v_and_b32 %s, 15, v0" % vr(t0))
    a("v_lshrrev_b32 %s, 4, v0" % vr(t1))
    a("v_lshrrev_b32 %s, 1, %s" % (vr(t2), vr(t0)))
    a("v_xor_b32 %s, %s, %s" % (vr(t2), vr(t2), vr(t1)))
    a("v_lshlrev_b32 %s, 4, %s" % (vr(t2), vr(t2)))
    a("v_lshl_add_u32 %s, %s, 7, %s" % (vr(t2), vr(t0), vr(t2)))
    a("s_lshl_b32 s%d, s%d, 13" % (sA, sMP))
    a("v_add_u32 %s, s%d, %s" % (vr(t2), sA, vr(t2)))
    a("s_lshl_b32 s%d, s%d, 6" % (sA, sMP))
    a("v_xor_b32 %s, s%d, %s" % (vr(vX[0][0]), sA, vr(t2)))
    a("v_xor_b32 %s, 64, %s" % (vr(vX[0][1]), vr(vX[0][0])))
    for h in range(2): a("v_add_u32 %s, %d, %s" % (vr(vX[1][h]), 2*G1_STAGE, vr(vX[0][h])))
    a("v_lshrrev_b32 %s, 2, %s" % (vr(t2), vr(t0)))
    a("v_lshl_add_u32 %s, %s, 3, %s" % (vr(t2), vr(t1), vr(t2)))
    a("v_mul_u32_u24 %s, 320, %s" % (vr(t2), vr(t2)))
    a("v_and_b32 %s, 3, v0" % vr(t3))
    a("v_lshl_add_u32 %s, %s, 3, %s" % (vr(t2), vr(t3), vr(t2)))
    a("s_mul_i32 s%d, s%d, 10240" % (sA, sMP))
    a("s_add_u32 s%d, s%d, 16384" % (sA, sA))
    a("v_add_u32 %s, s%d, %s" % (vr(t2), sA, vr(t2)))
    a("v_and_b32 %s, 1, %s" % (vr(t3), vr(t1)))
    a("v_lshlrev_b32 %s, 5, %s" % (vr(t3), vr(t3)))
    a("s_mul_i32 s%d, s%d, 192" % (sA, sFP))
    a("v_add3_u32 %s, %s, s%d, %s" % (vr(vW[0][0][0]), vr(t2), sA, vr(t3)))
    a("v_sub_u32 %s, %s, %s" % (vr(vW[1][0][0]), vr(t2), vr(t3)))
    a("v_add_u32 %s, s%d, %s" % (vr(vW[1][0][0]), sA, vr(vW[1][0][0])))
    a("s_lshl_b32 s%d, s%d, 5" % (sA, sFP))
    a("v_xor_b32 %s, s%d, %s" % (vr(t3), sA, vr(t3)))
    a("v_add3_u32 %s, %s, %s, 64" % (vr(vW[2][0][0]), vr(t2), vr(t3)))
    a("v_add_u32 %s, 64, %s" % (vr(vW[2][0][0]), vr(vW[2][0][0])))
    a("s_mul_i32 s%d, s%d, -20480" % (sA, sMP))
    a("s_add_u32 s%d, s%d, 10240" % (sA, sA))
    for k in range(3):
        a("v_add_u32 %s, s%d, %s" % (vr(vW[k][0][1]), sA, vr(vW[k][0][0])))
        for h in range(2): a("v_add_u32 %s, %d, %s" % (vr(vW[k][1][h]), 2*G1_STAGE, vr(vW[k][0][h])))
    sSkip = S_T+6
    a("s_cmp_eq_u32 s%d, 10" % S_CB)
    a("s_cselect_b32 s%d, s%d, 0" % (sSkip, sFP))
    def stats_load():
        L = []
        L.append("s_lshl_b32 s%d, s%d, 1" % (sA, S_RB))
        L.append("s_add_u32 s%d, s%d, s%d" % (sA, sA, sMP))
        L.append("s_lshl_b32 s%d, s%d, 9" % (sA, sA))
        L.append("s_add_u32 s%d, s%d, 0x%x" % (sA, sA, WS_ST))
        L.append("v_lshlrev_b32 %s, 3, %s" % (vr(t2), vr(t0)))
        for t in range(4):
            L.append("buffer_load_dwordx2 %s, %s, s[%d:%d], s%d offen offset:%d sc1" % (vr(st[t], 2), vr(t2), SRD_WS, SRD_WS+3, sA, 128*t))
        L.append("s_mul_i32 s%d, s%d, 1280" % (sA, S_CB))
        L.append("s_add_u32 s%d, s%d, 0x%x" % (sA, sA, WS_CS))
        L.append("s_lshl_b32 s%d, s%d, 7" % (S_T+4, sFP))
        L.append("s_add_u32 s%d, s%d, s%d" % (S_T+4, S_T+4, sA))
        L.append("s_mul_i32 s%d, s%d, 768" % (S_T+5, sFP))
        L.append("s_add_u32 s%d, s%d, s%d" % (sA, sA, S_T+5))
        L.append("s_lshl_b32 s%d, s%d, 8" % (S_T+5, sSkip))
        L.append("s_sub_u32 s%d, s%d, s%d" % (S_T+5, sA, S_T+5))
        L.append("v_lshlrev_b32 %s, 5, %s" % (vr(t3), vr(t1)))
        for j in range(5):
            sb = S_T+4 if j == 4 else (sA if j < 2 else S_T+5)
            for k in range(2):
                L.append("buffer_load_dwordx4 %s, %s, s[%d:%d], s%d offen offset:%d sc1" % (vr(cs[j][k], 4), vr(t3), SRD_WS, SRD_WS+3, sb, 128*j + 16*k))
        return L
    nonce_issue(a, vN, t2)
    def loads(n):
        s, h = n >> 1, n & 1
        b = n & 1
        buf = s % G1_NB; se = buf >> 1; off = (buf & 1)*G1_STAGE
        L = []
        for t in range(4):
            L.append("ds_read_b128 %s, %s offset:%d" % (vr(xf[b][t], 4), vr(vX[se][h]), off + 2048*t))
        for j in range(5):
            k = 2 if j == 4 else (j & 1)
            o = off + (0 if j == 4 else 32*j)
            for e in range(2):
                L.append("ds_read_b64_tr_b16 %s, %s offset:%d" % (vr(wf[b][j]+2*e, 2), vr(vW[k][se][h]), o + 1280*e))
        return L
    if stamps: stamps(1)
    a("s_barrier")
    if stamps: stamps(2)
    for x in loads(0): a(x)
    for n in range(20):
        if stamps and n == 10: stamps(3)
        s, h = n >> 1, n & 1; b = n & 1
        if h == 1 and s+1 <= 9:
            a("s_waitcnt lgkmcnt(0)")
            a("s_barrier")
        L = loads(n+1) if n+1 < 20 else []
        if 'nods' in DBG: L = []
        if 'notr' in DBG: L = L[:4]
        if 'nox' in DBG: L = L[4:]
        li = 0
        G = []
        a("s_waitcnt lgkmcnt(8)")
        for j in range(5):
            if j == 1: a("s_waitcnt lgkmcnt(%d)" % min(li, 15))
            for t in range(4):
                c = "0" if n == 0 else vr(acc[j][t], 4)
                if 'nomfma' not in DBG: a("v_mfma_f32_16x16x32_bf16 %s, %s, %s, %s" % (vr(acc[j][t], 4), vr(wf[b][j], 4), vr(xf[b][t], 4), c))
                if li < len(L): a(L[li]); li += 1
                for _ in range(2):
                    if G:
                        x = G.pop(0); a(x)
                        if x.startswith("buffer"): break
    if stamps: stamps(4)
    a("s_lshl_b32 s%d, s%d, 9" % (sA, sMP))
    a("v_lshlrev_b32 %s, 3, %s" % (vr(t2), vr(t0)))
    a("v_add_u32 %s, s%d, %s" % (vr(t2), sA, vr(t2)))
    a("v_add_u32 %s, %d, %s" % (vr(t2), G1_MISC, vr(t2)))
    a("v_lshlrev_b32 %s, 5, %s" % (vr(t3), vr(t1)))
    a("v_add_u32 %s, %d, %s" % (vr(t3), G1_MISC + 1024, vr(t3)))
    u0, u1, u2 = vX[0][0], vX[0][1], vX[1][0]
    a("s_lshl_b32 s%d, s%d, 7" % (sA, sFP)); a("v_add_u32 %s, s%d, %s" % (vr(u0), sA, vr(t3)))
    a("s_mul_i32 s%d, s%d, 768" % (sA, sFP)); a("v_add_u32 %s, s%d, %s" % (vr(u1), sA, vr(t3)))
    a("s_lshl_b32 s%d, s%d, 8" % (sA, sSkip)); a("v_subrev_u32 %s, s%d, %s" % (vr(u2), sA, vr(u1)))
    a("s_waitcnt vmcnt(0)")
    a("s_barrier")
    for t in range(4): a("ds_read_b64 %s, %s offset:%d" % (vr(st[t], 2), vr(t2), 128*t))
    for j in (4, 0, 1, 2, 3):
        for k in range(2):
            a("ds_read_b128 %s, %s offset:%d" % (vr(cs[j][k], 4), vr(u0 if j == 4 else (u1 if j < 2 else u2)), 128*j + 16*k))
    nonce_finish(a, vN, t2)
    a("s_waitcnt lgkmcnt(0)")
    retry = a.newlabel("g1_retry"); chk = a.newlabel("g1_chk"); ok = a.newlabel("g1_ok")
    a.label(chk)
    tags_check(a, [st[t]+1 for t in range(4)] + [cs[j][k]+2 for j in range(5) for k in range(2)], t2, t3, retry)
    a("s_branch %s" % ok)
    a.label(retry)
    for x in stats_load(): a(x)
    a("s_waitcnt vmcnt(0)")
    a("s_branch %s" % chk)
    a.label(ok)
    if stamps: stamps(5)
    for t in range(4):
        a("v_and_b32 %s, 0xffff0000, %s" % (vr(st[t]+1), vr(st[t])))
        a("v_rcp_f32 %s, %s" % (vr(st[t]+1), vr(st[t]+1)))
        a("v_lshlrev_b32 %s, 16, %s" % (vr(st[t]), vr(st[t])))
        a("v_mul_f32 %s, -%s, %s" % (vr(st[t]), vr(st[t]), vr(st[t]+1)))
    a("v_lshlrev_b32 %s, 4, v0" % vr(t3))
    sB = S_T+4; sC = S_T+5
    a("s_lshl_b32 s%d, s%d, 1" % (sA, S_RB))
    a("s_add_u32 s%d, s%d, s%d" % (sA, sA, sMP))
    a("s_mul_i32 s%d, s%d, %d" % (sA, sA, 4*H_MT_STRIDE))
    a("s_mul_i32 s%d, s%d, 5120" % (sB, S_CB))
    a("s_add_u32 s%d, s%d, s%d" % (sA, sA, sB))
    a("s_mul_i32 s%d, s%d, 3072" % (sB, sFP))
    a("s_add_u32 s%d, s%d, s%d" % (sB, sB, sA))
    a("s_mul_i32 s%d, s%d, %d" % (sC, sFP, 2*H_MT_STRIDE))
    a("s_add_u32 s%d, s%d, s%d" % (sC, sC, sA))
    a("s_lshl_b32 s%d, s%d, 12" % (S_T+7, sMP))
    a("s_add_u32 s%d, s%d, %d" % (S_T+7, S_T+7, G1_MISC + 4096))
    a("v_add_u32 %s, s%d, %s" % (vr(u0), S_T+7, vr(t3)))
    a("s_lshl_b32 s%d, s%d, 3" % (S_T+7, sFP)); a("v_add_u32 %s, s%d, %s" % (vr(u1), S_T+7, vr(u0)))
    a("s_lshl_b32 s%d, s%d, 11" % (S_T+7, sFP)); a("v_add_u32 %s, s%d, %s" % (vr(u0), S_T+7, vr(u0)))
    pk = [xf[0][0], xf[0][1], xf[0][2], xf[0][3], xf[1][0], xf[1][1]]
    tp = [xf[1][2], xf[1][2]+2, xf[1][3], xf[1][3]+2]
    skip = a.newlabel("g1_skip")
    cnt = 0
    def cvt(j, t, dst):
        for k in range(2):
            T = tp[k + 2*(j & 1)]
            a("v_pk_mul_f32 %s, %s, %s op_sel_hi:[1,0]" % (vr(T, 2), vr(cs[j][k], 2), vr(st[t], 2)))
            a("v_pk_fma_f32 %s, %s, %s, %s op_sel:[0,1,0] op_sel_hi:[1,1,1]" % (vr(T, 2), vr(acc[j][t]+2*k, 2), vr(st[t], 2), vr(T, 2)))
            a("v_cvt_pk_bf16_f32 %s, %s, %s" % (vr(dst+k), vr(T), vr(T+1)))
            a("v_pk_max_i16 %s, %s, 0" % (vr(dst+k), vr(dst+k)))
    for t in range(4):
        d = wf[0][t]
        cvt(4, t, d)
        a("ds_write_b64 %s, %s offset:%d" % (vr(u1), vr(d, 2), 1024*t))
    for pr in (0, 2, 1):
        if pr == 1:
            a("s_cmp_lg_u32 s%d, 0" % (S_T+6))
            a("s_cbranch_scc1 %s" % skip)
        if pr == 2:
            a("s_waitcnt lgkmcnt(0)")
            a("s_barrier")
            for k in range(2): a("ds_read_b128 %s, %s offset:%d" % (vr(wf[1][k], 4), vr(u0), 1024*k))
            for k in range(2):
                a("s_waitcnt lgkmcnt(%d)" % (1-k))
                a("buffer_store_dwordx4 %s, %s, s[%d:%d], s%d offen offset:2048 %s" % (vr(wf[1][k], 4), vr(t3), SRD_WS, SRD_WS+3, sC, sc))
                if k == 0: a("s_add_u32 s%d, s%d, %d" % (sC, sC, H_MT_STRIDE))
            continue
        for t in range(4):
            d = pk[cnt % len(pk)]; cnt += 1
            cvt(2*pr, t, d); cvt(2*pr+1, t, d+2)
            a("s_add_u32 s%d, s%d, %d" % (sA, sB, t*H_MT_STRIDE))
            a("buffer_store_dwordx4 %s, %s, s[%d:%d], s%d offen offset:%d %s" % (vr(d, 4), vr(t3), SRD_WS, SRD_WS+3, sA, 1024*pr, sc))
    a.label(skip)
    if stamps: stamps(6)
    va.release(m)
```

```python
from gen_common import *
DBG = os.environ.get('DBG','').split(',')
G2_STAGE = 24576
G2_NB = 6
G2_OUT = G2_STAGE*G2_NB
S_RB, S_DB = 60, 63
S_ROT2 = 65
DEPTH = int(os.environ.get('DEPTH', '6'))
ROT = 3

def g2_helper_setup(a, va):
    vO = va(); t0 = va(); t1 = va()
    sH = 68; sG = 69; sL = 70; sX = 71
    a("s_sub_u32 s%d, s%d, 4" % (sH, S_WAVE))
    a("v_lshrrev_b32 %s, 3, v0" % vr(t0))
    a("v_bfe_u32 %s, v0, 4, 2" % vr(t1))
    a("v_lshlrev_b32 %s, 1, %s" % (vr(t1), vr(t1)))
    a("v_and_b32 %s, 7, v0" % vr(vO))
    a("v_xor_b32 %s, %s, %s" % (vr(vO), vr(vO), vr(t1)))
    a("v_lshlrev_b32 %s, 4, %s" % (vr(vO), vr(vO)))
    a("v_mul_u32_u24 %s, 1280, %s" % (vr(t0), vr(t0)))
    a("v_add_u32 %s, %s, %s" % (vr(vO), vr(vO), vr(t0)))
    a("s_mul_i32 s%d, s%d, %d" % (sG, sH, 48*1280))
    a("s_lshl_b32 s%d, s%d, 7" % (sX, S_DB))
    a("s_add_u32 s%d, s%d, s%d" % (sG, sG, sX))
    a("s_mul_i32 s%d, s%d, %d" % (sL, sH, 48*128))
    sK = 59
    a("s_mul_i32 s%d, s%d, %d" % (sK, S_ROT2, 192*1280))
    regs = [[va(4, 4) for i in range(6)] for k in range(3)]
    vL = va()
    a("v_lshlrev_b32 %s, 4, v0" % vr(vL))
    a("v_add_u32 %s, s%d, %s" % (vr(vL), sL, vr(vL)))
    def adv(st):
        a("s_add_u32 s%d, s%d, %d" % (sX, sK, st*192*1280))
        a("s_cmp_ge_u32 s%d, %d" % (sX, 1728*1280))
        a("s_cselect_b32 s%d, %d, 0" % (sH, 1728*1280))
        a("s_sub_u32 s%d, s%d, s%d" % (sX, sX, sH))
        a("s_add_u32 s%d, s%d, s%d" % (sX, sX, sG))
    def issue(st):
        buf = ((st + ROT) % G2_NB)*G2_STAGE
        adv(st)
        for i in range(6):
            if st < 6:
                a("s_add_u32 m0, s%d, %d" % (sL, buf + 1024*i))
                a("s_nop 0")
                a("buffer_load_dwordx4 %s, s[%d:%d], s%d offen lds" % (vr(vO), SRD_W2, SRD_W2+3, sX))
            else:
                a("buffer_load_dwordx4 %s, %s, s[%d:%d], s%d offen" % (vr(regs[st-6][i], 4), vr(vO), SRD_W2, SRD_W2+3, sX))
            if i < 5: a("s_add_u32 s%d, s%d, 10240" % (sX, sX))
    def put(st):
        buf = ((st + ROT) % G2_NB)*G2_STAGE
        a("v_add_u32 %s, %d, %s" % (vr(t0), buf, vr(vL)))
        for i in range(6): a("ds_write_b128 %s, %s offset:%d" % (vr(t0), vr(regs[st-6][i], 4), 1024*i))
    return issue, put

def g2_helper_loop(a, put, q):
    def after(st): return len(q) - 1 - max(i for i, t in enumerate(q) if t == ("w2", st))
    for b in range(9):
        if b < 6: a("s_waitcnt vmcnt(%d)" % after(b))
        else: a("s_waitcnt lgkmcnt(0)")
        a("s_barrier")
        if 6 <= b + 5 <= 8:
            a("s_waitcnt vmcnt(%d)" % after(b + 5))
            put(b + 5)
    a("s_barrier")

def g2_compute(a, va, h_wait=None, xa_poll=None, sc="", stamps=None):
    m = va.mark()
    acc4 = [[va(4, 4) for j in range(4)] for t in range(4)]
    wf = [[va(4, 4) for j in range(4)] for b in range(2)]
    hr = [[va(4, 4) for t in range(4)] for d in range(DEPTH)]
    xa = [[va(4, 4) for jj in range(2)] for t in range(2)]
    vW = [[va() for j in range(4)] for k in range(3)]
    vHt = [va() for t in range(4)]
    vH = va(); vXA = va(); t0, t1, t2, t3 = va(), va(), va(), va()
    vP = va()
    sMH, sKH = S_T, S_T+1; sA = S_T+2; sXA = S_T+3; sB0, sK, sHo, sWF = S_T+5, S_T+6, S_T+7, 68
    a("s_and_b32 s%d, s%d, 1" % (sMH, S_WAVE))
    a("s_lshr_b32 s%d, s%d, 1" % (sKH, S_WAVE))
    a("s_lshl_b32 s%d, s%d, 1" % (sWF, sMH)); a("s_add_u32 s%d, s%d, s%d" % (sWF, sWF, sKH))
    a("v_and_b32 %s, 15, v0" % vr(t0))
    a("v_lshrrev_b32 %s, 4, v0" % vr(t1))
    a("v_lshrrev_b32 %s, 2, %s" % (vr(t2), vr(t0)))
    a("v_lshl_add_u32 %s, %s, 2, %s" % (vr(t2), vr(t1), vr(t2)))
    a("v_bfe_u32 %s, %s, 1, 2" % (vr(t3), vr(t2)))
    a("v_lshlrev_b32 %s, 7, %s" % (vr(t2), vr(t2)))
    a("v_and_b32 %s, 3, v0" % vr(vH))
    a("v_lshl_add_u32 %s, %s, 3, %s" % (vr(t2), vr(vH), vr(t2)))
    a("s_lshl_b32 s%d, s%d, 12" % (sA, sKH))
    a("v_add_u32 %s, s%d, %s" % (vr(t2), sA, vr(t2)))
    for j in range(4):
        a("v_xor_b32 %s, %d, %s" % (vr(vH), j, vr(t3)))
        a("v_lshl_add_u32 %s, %s, 5, %s" % (vr(vW[0][j]), vr(vH), vr(t2)))
        for k in (1, 2): a("v_add_u32 %s, %d, %s" % (vr(vW[k][j]), 2*k*G2_STAGE, vr(vW[0][j])))
    a("v_lshlrev_b32 %s, 4, v0" % vr(vH))
    a("s_lshl_b32 s%d, s%d, 10" % (sA, sKH))
    a("v_add_u32 %s, s%d, %s" % (vr(vHt[0]), sA, vr(vH)))
    for t in range(1, 4): a("v_add_u32 %s, %d, %s" % (vr(vHt[t]), t*H_MT_STRIDE, vr(vHt[0])))
    a("s_lshl_b32 s%d, s%d, 1" % (sA, S_RB))
    a("s_add_u32 s%d, s%d, s%d" % (sA, sA, sMH))
    a("s_mul_i32 s%d, s%d, %d" % (sB0, sA, 4*H_MT_STRIDE))
    a("s_mul_i32 s%d, s%d, 6144" % (sK, S_ROT2))
    a("s_add_u32 s%d, s%d, s%d" % (sHo, sB0, sK))
    a("v_lshlrev_b32 %s, 15, %s" % (vr(vXA), vr(t1)))
    a("v_lshl_add_u32 %s, %s, 4, %s" % (vr(vXA), vr(t0), vr(vXA)))
    a("s_lshl_b32 s%d, s%d, 2" % (sA, S_RB))
    a("s_add_u32 s%d, s%d, s%d" % (sA, sA, sWF))
    a("s_lshl_b32 s%d, s%d, 9" % (sXA, sA))
    a("s_lshl_b32 s%d, s%d, 18" % (sA, S_DB))
    a("s_add_u32 s%d, s%d, s%d" % (sXA, sXA, sA))
    a("s_add_u32 s%d, s%d, 0x%x" % (sXA, sXA, WS_AT))
    q = []
    NS = 27
    def hload(n):
        L = []
        if n:
            L.append("s_add_u32 s%d, s%d, 2048" % (sK, sK))
            if n % 3 == 0:
                L.append("s_cmp_eq_u32 s%d, %d" % (sK, H_MT_STRIDE))
                L.append("s_cselect_b32 s%d, 0, s%d" % (sK, sK))
            L.append("s_add_u32 s%d, s%d, s%d" % (sHo, sB0, sK))
        for t in range(4):
            L.append(("buffer_load_dwordx4 %s, %s, s[%d:%d], s%d offen %s" % (vr(hr[n % DEPTH][t], 4), vr(vHt[t]), SRD_WS, SRD_WS+3, sHo, sc), ("h", n, t)))
        return L
    def emit(x):
        if isinstance(x, tuple): a(x[0]); q.append(x[1])
        else: a(x)
    def wait_for(tag):
        idx = max(i for i, tg in enumerate(q) if tg == tag)
        return len(q) - 1 - idx
    def xaload():
        L = []
        for jj in range(2):
            if jj: L.append("s_add_u32 s%d, s%d, %d" % (sXA, sXA, 4*32768))
            for t in range(2):
                L.append(("buffer_load_dwordx4 %s, %s, s[%d:%d], s%d offen offset:%d %s" % (vr(xa[t][jj], 4), vr(vXA), SRD_WS, SRD_WS+3, sXA, 256*t, sc), ("xa",)))
        L.append("s_sub_u32 s%d, s%d, %d" % (sXA, sXA, 4*32768))
        return L
    def wloads(n):
        st, s = divmod(n, 3); buf = (st + ROT) % G2_NB
        L = []
        for j in range(4):
            for e in range(2):
                L.append("ds_read_b64_tr_b16 %s, %s offset:%d" % (vr(wf[n & 1][j]+2*e, 2), vr(vW[buf >> 1][j]), (buf & 1)*G2_STAGE + 8192*s + 2048*e))
        return L
    a("s_barrier")
    for x in wloads(0): a(x)
    if h_wait is not None: h_wait(vP, t2)
    if stamps: stamps(1)
    RAMP = int(os.environ.get("RAMP", "2"))
    for n in range(RAMP):
        for x in hload(n): emit(x)
    nxt = RAMP
    if stamps: stamps(2)
    N_XA = NS - DEPTH + 1; N_POLL = N_XA - DEPTH
    for n in range(NS):
        b = n & 1
        if stamps and n in (1, 14): stamps(3 if n == 1 else 4)
        a("s_waitcnt lgkmcnt(0)")
        if (n + 1) % 3 == 0 and n + 1 < NS: a("s_barrier")
        L = wloads(n+1) if n + 1 < NS else []
        G = []
        for _ in range(2):
            if nxt <= min(n - 1 + DEPTH, NS - 1): G += hload(nxt); nxt += 1
        if n == N_POLL and xa_poll is not None: G = G + xa_poll.issue(vP, t3)
        if n == N_XA: G = G + xaload()
        k = 0
        for j in range(4):
            for t in range(4):
                if j == 0: a("s_waitcnt vmcnt(%d)" % wait_for(("h", n, t)))
                c = "0" if n == 0 else vr(acc4[t][j], 4)
                a("v_mfma_f32_16x16x32_bf16 %s, %s, %s, %s" % (vr(acc4[t][j], 4), vr(wf[b][j], 4), vr(hr[n % DEPTH][t], 4), c))
                if k < len(L): a(L[k])
                if k >= 8 or not L or len(G) > 14:
                    for _ in range(2):
                        if G:
                            x = G.pop(0); emit(x)
                            if isinstance(x, tuple): break
                k += 1
        for x in G: emit(x)
    if stamps: stamps(5)
    XB = 3*G2_STAGE
    a("s_lshl_b32 s%d, s%d, 13" % (sA, S_WAVE))
    a("s_add_u32 s%d, s%d, %d" % (sA, sA, XB))
    a("v_add_u32 %s, s%d, %s" % (vr(t2), sA, vr(vH)))
    a("v_xor_b32 %s, %d, %s" % (vr(vHt[0]), 2 << 13, vr(vH)))
    a("s_lshl_b32 s%d, s%d, 13" % (sA, S_WAVE))
    a("v_xor_b32 %s, s%d, %s" % (vr(vHt[0]), sA, vr(vHt[0])))
    a("v_add_u32 %s, %d, %s" % (vr(vHt[0]), XB, vr(vHt[0])))
    acc = [[hr[0][0] + 16*t + 4*j for j in range(4)] for t in range(2)]
    k1 = a.newlabel("g2_k1"); kd = a.newlabel("g2_kd")
    a("s_cmp_lg_u32 s%d, 0" % sKH); a("s_cbranch_scc1 %s" % k1)
    for kh in range(2):
        if kh: a.label(k1)
        for t in range(2):
            for j in range(4):
                a("ds_write_b128 %s, %s offset:%d" % (vr(t2), vr(acc4[2*(1-kh)+t][j], 4), 4096*t + 1024*j))
        a("s_waitcnt lgkmcnt(0)")
        a("s_barrier")
        for t in range(2):
            for j in range(4):
                a("ds_read_b128 %s, %s offset:%d" % (vr(acc[t][j], 4), vr(vHt[0]), 4096*t + 1024*j))
        for t in range(2):
            for j in range(4):
                a("s_waitcnt lgkmcnt(%d)" % (7 - 4*t - j))
                for k in range(2):
                    a("v_pk_add_f32 %s, %s, %s" % (vr(acc[t][j]+2*k, 2), vr(acc[t][j]+2*k, 2), vr(acc4[2*kh+t][j]+2*k, 2)))
        if kh == 0: a("s_branch %s" % kd)
    a.label(kd)
    a("s_waitcnt vmcnt(0)")
    if xa_poll is not None: xa_poll.finish(vP, t3, lambda: [emit(x) for x in xaload()])
    a("s_lshl_b32 s%d, s%d, 12" % (sA, sWF))
    a("s_add_u32 s%d, s%d, %d" % (sA, sA, G2_OUT))
    a("v_lshrrev_b32 %s, 1, %s" % (vr(t2), vr(t0)))
    a("v_xor_b32 %s, %s, %s" % (vr(t2), vr(t2), vr(t1)))
    a("v_lshlrev_b32 %s, 4, %s" % (vr(t2), vr(t2)))
    a("v_lshl_add_u32 %s, %s, 7, %s" % (vr(t2), vr(t0), vr(t2)))
    a("v_add_u32 %s, s%d, %s" % (vr(vW[0][0]), sA, vr(t2)))
    a("v_xor_b32 %s, 64, %s" % (vr(vW[0][1]), vr(vW[0][0])))
    T = [wf[0][0], wf[0][0]+2, wf[0][1], wf[0][1]+2]
    F = [[wf[1][2*t+jj] for jj in range(2)] for t in range(2)]
    for t in range(2):
        for jj in range(2):
            for e in range(2):
                for k in range(2):
                    a("v_cvt_pk_bf16_f32 %s, %s, %s" % (vr(F[t][jj]+2*e+k), vr(acc[t][2*jj+e]+2*k), vr(acc[t][2*jj+e]+2*k+1)))
    for op in ("v_permlane32_swap_b32", "v_permlane16_swap_b32"):
        a("s_nop 1")
        for t in range(2):
            for jj in range(2):
                for k in range(2): a("%s %s, %s" % (op, vr(F[t][jj]+k), vr(F[t][jj]+2+k)))
    a("s_nop 1")
    c = 0
    for t in range(2):
        for jj in range(2):
            for k in range(4):
                y, s_ = T[2*(c & 1)], T[2*(c & 1)+1]; c += 1
                x = xa[t][jj] + k; f = F[t][jj] + k
                a("v_lshlrev_b32 %s, 16, %s" % (vr(s_), vr(x)))
                a("v_and_b32 %s, 0xffff0000, %s" % (vr(s_+1), vr(x)))
                a("v_lshlrev_b32 %s, 16, %s" % (vr(y), vr(f)))
                a("v_and_b32 %s, 0xffff0000, %s" % (vr(y+1), vr(f)))
                a("v_pk_add_f32 %s, %s, %s" % (vr(y, 2), vr(y, 2), vr(s_, 2)))
                a("v_cvt_pk_bf16_f32 %s, %s, %s" % (vr(f), vr(y), vr(y+1)))
            a("ds_write_b128 %s, %s offset:%d" % (vr(vW[0][jj]), vr(F[t][jj], 4), 2048*t))
    a("v_lshrrev_b32 %s, 3, v0" % vr(t0))
    a("v_and_b32 %s, 7, v0" % vr(t2))
    a("v_xor_b32 %s, %s, %s" % (vr(t3), vr(t2), vr(t1)))
    a("v_lshlrev_b32 %s, 4, %s" % (vr(t3), vr(t3)))
    a("v_lshl_add_u32 %s, %s, 7, %s" % (vr(t3), vr(t0), vr(t3)))
    a("v_add_u32 %s, s%d, %s" % (vr(t3), sA, vr(t3)))
    a("v_xor_b32 %s, 64, %s" % (vr(vH), vr(t3)))
    a("v_mul_u32_u24 %s, 1280, %s" % (vr(t0), vr(t0)))
    a("v_lshl_add_u32 %s, %s, 4, %s" % (vr(t0), vr(t2), vr(t0)))
    a("s_lshl_b32 s%d, s%d, 2" % (sA, S_RB))
    a("s_add_u32 s%d, s%d, s%d" % (sA, sA, sWF))
    a("s_mul_i32 s%d, s%d, %d" % (sA, sA, 32*1280))
    a("s_lshl_b32 s%d, s%d, 7" % (sXA, S_DB))
    a("s_add_u32 s%d, s%d, s%d" % (sA, sA, sXA))
    a("s_waitcnt lgkmcnt(0)")
    for i in range(4): a("ds_read_b128 %s, %s offset:%d" % (vr(acc4[0][0] + 4*i, 4), vr(vH if i & 1 else t3), 1024*i))
    for i in range(4):
        a("s_waitcnt lgkmcnt(%d)" % (3-i))
        a("buffer_store_dwordx4 %s, %s, s[%d:%d], s%d offen" % (vr(acc4[0][0] + 4*i, 4), vr(t0), SRD_O, SRD_O+3, sA))
        if i < 3: a("s_add_u32 s%d, s%d, 10240" % (sA, sA))
    va.release(m)
```

```python
import sys
from gen_common import *
from role_stats import role_stats
import role_g1, role_g2, role_conv
from role_g1 import S_RB, S_CB, S_ROT1
from role_g2 import S_DB, S_ROT2
from role_conv import *
KN = "parallel_sum__ssm_conv_s4d__dense_activation_relu__prompt"
hdr = open("cdna_kernels/%s.s.ref" % KN).read().split("; Override launch")[0]
a = Asm()
S = Stamps(a, STAMPS, 0)
S2 = Stamps(a, STAMPS, 1)
a("s_cmp_ge_u32 s2, 256"); a("s_cbranch_scc1 k_end")
S.clear(); S(0)
load_args(a); wave_id(a, 1)
a("s_cmp_ge_u32 s2, 80"); a("s_cbranch_scc1 role_g")
hi = 0
va = VAlloc()
a("s_and_b32 s%d, s2, 7" % (S_T+2)); a("s_lshr_b32 s%d, s2, 3" % (S_T+3))
a("s_mul_i32 s%d, s%d, 10" % (S_CW, S_T+2)); a("s_add_u32 s%d, s%d, s%d" % (S_CW, S_CW, S_T+3))
a("s_or_b32 s%d, s2, s%d" % (S_T, S_WAVE))
a("s_memrealtime s[64:65]")
a("s_waitcnt lgkmcnt(0)")
a("s_cmp_lg_u32 s%d, 0" % S_T); a("s_cbranch_scc1 no_pub")
a("s_or_b32 s64, s64, 1")
a("v_mov_b32 v1, s64"); a("v_mov_b32 v2, 0")
a("s_mov_b64 exec, 1")
a("global_store_dword v2, v1, s[%d:%d] sc1" % (P_DBG, P_DBG+1))
a("s_mov_b64 exec, -1")
a.label("no_pub")
srd(a, SRD_X, P_U, X_BYTES); srd(a, SRD_WS, P_WS, 32 << 20); srd(a, SRD_W, P_W1, W_BYTES); srd(a, SRD_W2, P_W2, W_BYTES)
R = conv_issue_loads(a, va)
m0 = va.mark()
vN, vZ = va(), va()
a("s_and_b32 s%d, s2, 7" % (S_T+2)); a("s_lshr_b32 s%d, s2, 3" % (S_T+3))
a("s_lshl_b32 s64, s%d, 3" % (S_T+2)); a("s_add_u32 s64, s64, s%d" % (S_T+3)); a("s_lshl_b32 s64, s64, 3"); a("s_add_u32 s64, s64, s%d" % S_WAVE); a("s_lshl_b32 s64, s64, 2")
a("s_lshr_b32 s65, s%d, 1" % (S_T+2)); a("s_mul_i32 s65, s65, 7"); a("s_add_u32 s65, s65, s%d" % (S_T+3)); a("s_sub_u32 s65, s65, 3")
a("s_cmp_lt_u32 s%d, 3" % (S_T+3)); a("s_cselect_b32 s65, 99, s65")
a("s_cmp_lt_u32 s65, 27"); a("s_cselect_b32 s68, 1, 0")
a("s_sub_u32 s%d, 53, s65" % (S_T+4)); a("s_bitcmp1_b32 s2, 0"); a("s_cselect_b32 s65, s%d, s65" % (S_T+4))
a("s_cmp_ge_u32 s2, 64"); a("s_cselect_b32 s64, 4096, s64")
a("s_cmp_eq_u32 s68, 0"); a("s_cselect_b32 s65, 0x10000, s65")
st_fin = role_stats(a, va, 64, tag_s=S_NONCE, sc="sc1")
cs_fin = colsum_issue(a, va, 65)
nonce_issue(a, vN, vZ)
S(1)
xl = conv_issue_x(a, R)
def mid():
    S(2)
    a("s_waitcnt vmcnt(0)")
    nonce_finish(a, vN, vZ)
    a("s_cmp_ge_u32 s2, 64"); a("s_cbranch_scc1 no_st2")
    st_fin(0)
    a.label("no_st2")
    a(xl[0])
    a("s_cmp_eq_u32 s68, 0"); a("s_cbranch_scc1 no_cs2")
    cs_fin()
    a.label("no_cs2")
    if not os.environ.get("NOW2PF"):
        a("s_lshl_b32 s69, s2, 3"); a("s_add_u32 s69, s69, s%d" % S_WAVE); a("s_mul_i32 s69, s69, %d" % (27*128))
        a("v_lshlrev_b32 v%d, 7, v0" % vZ)
        a("s_mov_b32 exec_hi, 0"); a("s_mov_b32 exec_lo, 0x7ffffff")
        a("buffer_load_dword v%d, v%d, s[%d:%d], s69 offen" % (R["st"][0], vZ, SRD_W2, SRD_W2+3))
        a("s_mov_b64 exec, -1")
    S(3)
conv_kgen(a, va, R, 11, xload=xl, mid=mid, hook=lambda: conv_stats_load(a, va, R, "sc1"))
va.release(m0)
S(4)
m0 = va.mark(); t0, t1 = va(), va()
a.label("cv_chk")
a("s_waitcnt vmcnt(0)")
tags_check(a, [R["st"][i >> 1] + 2*(i & 1) + 1 for i in range(4)], t0, t1, "cv_retry")
va.release(m0)
S(5)
conv_make_u(a, va, R)
S(6)
conv_main(a, va, R, sc="sc1", stamps=S)
a.label("cv_skip")
a("s_waitcnt vmcnt(0)")
a("s_barrier")
a("s_cmp_lg_u32 s%d, 0" % S_WAVE); a("s_cbranch_scc1 cv_fin")
a("s_lshr_b32 s%d, s%d, 3" % (S_T, S_CW)); a("s_lshl_b32 s%d, s%d, 7" % (S_T, S_T))
a("s_and_b32 s%d, s%d, 7" % (S_T+1, S_CW)); a("s_lshl_b32 s%d, s%d, 2" % (S_T+1, S_T+1))
a("s_add_u32 s%d, s%d, s%d" % (S_T, S_T, S_T+1)); a("s_add_u32 s%d, s%d, 0x%x" % (S_T, S_T, WS_FL + 0x1000))
flag_store(a, S_T, 1, 2)
a.label("cv_fin")
S.flush({0:1, 4:3, 8:5, 9:6})
a("s_endpgm")
a.label("cv_retry")
conv_stats_load(a, va, R, "sc1")
a("s_branch cv_chk")
hi = max(hi, va.hi)
a.label("role_g")
sI = 64
a("s_sub_u32 s%d, s2, 80" % S_T)
a("s_lshr_b32 s%d, s%d, 3" % (sI, S_T))
a("s_and_b32 s%d, s%d, 1" % (S_T+1, S_T))
a("s_bfe_u32 s%d, s%d, 0x20001" % (S_T+2, S_T))
a("s_lshl_b32 s%d, s%d, 2" % (S_T+2, S_T+2))
a("s_lshr_b32 s%d, s%d, 2" % (S_T+3, sI))
a("s_mul_i32 s%d, s%d, 6" % (S_CB, S_T+1)); a("s_add_u32 s%d, s%d, s%d" % (S_CB, S_CB, S_T+3))
a("s_mul_i32 s%d, s%d, 5" % (S_DB, S_T+1)); a("s_add_u32 s%d, s%d, s%d" % (S_DB, S_DB, S_T+3))
a("s_and_b32 s%d, s%d, 3" % (S_RB, sI))
a("s_lshl_b32 s%d, s%d, 1" % (S_T+1, S_T+1)); a("s_add_u32 s%d, s%d, s%d" % (S_T+1, S_T+1, S_RB))
a("s_cmp_ge_u32 s%d, 20" % sI)
a("s_cselect_b32 s%d, 5, s%d" % (S_CB, S_CB))
a("s_cselect_b32 s%d, s%d, s%d" % (S_RB, S_T+1, S_RB))
a("s_mul_i32 s%d, s%d, 5" % (S_T+4, S_RB)); a("s_lshr_b32 s%d, s%d, 1" % (S_T+4, S_T+4))
a("s_lshl_b32 s%d, s%d, 1" % (S_T+3, S_T+3)); a("s_add_u32 s%d, s%d, s%d" % (S_T+4, S_T+4, S_T+3))
a("s_lshr_b32 s%d, s%d, 2" % (S_T+5, S_T+2)); a("s_add_u32 s%d, s%d, s%d" % (S_T+4, S_T+4, S_T+5))
a("s_and_b32 s%d, s2, 1" % (S_T+5)); a("s_add_u32 s%d, s%d, s%d" % (S_T+4, S_T+4, S_T+5))
if os.environ.get("NOROT"): a("s_mov_b32 s%d, 0" % (S_T+4))
for dst, md in ((S_ROT1, 10), (S_ROT2, 9)):
    a("s_sub_u32 s%d, s%d, %d" % (S_T+3, S_T+4, md)); a("s_cselect_b32 s%d, s%d, s%d" % (dst, S_T+4, S_T+3))
    a("s_sub_u32 s%d, s%d, %d" % (S_T+3, dst, md)); a("s_cselect_b32 s%d, s%d, s%d" % (dst, dst, S_T+3))
a("s_add_u32 s%d, s%d, s%d" % (S_RB, S_RB, S_T+2))
a("s_waitcnt lgkmcnt(0)")
srd(a, SRD_X, P_U, X_BYTES); srd(a, SRD_W, P_W1, W_BYTES); srd(a, SRD_WS, P_WS, 32 << 20)
srd(a, SRD_W2, P_W2, W_BYTES); srd(a, SRD_O, P_OUT, X_BYTES)
a("s_cmp_ge_u32 s%d, 4" % S_WAVE); a("s_cbranch_scc1 g_help")
va = VAlloc()
role_g1.g1_compute(a, va, sc="sc1", stamps=S)
a("s_waitcnt vmcnt(0)")
S(7)
a("s_barrier")
a("s_cmp_lg_u32 s%d, 0" % S_WAVE); a("s_cbranch_scc1 g_noflag")
a("s_lshl_b32 s%d, s%d, 7" % (S_T, S_RB)); a("s_lshl_b32 s%d, s%d, 2" % (S_T+1, S_CB))
a("s_add_u32 s%d, s%d, s%d" % (S_T, S_T, S_T+1)); a("s_add_u32 s%d, s%d, 0x%x" % (S_T, S_T, WS_FL))
flag_store(a, S_T, 1, 2)
a.label("g_noflag")
if STAMPS:
    S.flush({}); a("s_mov_b64 exec, -1"); S2.clear(); S2(0)
a("s_cmp_ge_u32 s%d, 20" % sI); a("s_cbranch_scc1 k_end")
sF = S_T+4
def h_wait(vP, t):
    a("v_min_u32 %s, 10, v0" % vr(t)); a("v_lshlrev_b32 %s, 2, %s" % (vr(t), vr(t)))
    a("s_lshl_b32 s%d, s%d, 7" % (sF, S_RB)); a("s_add_u32 s%d, s%d, 0x%x" % (sF, sF, WS_FL))
    a.label("h_poll")
    a("buffer_load_dword %s, %s, s[%d:%d], s%d offen sc1" % (vr(vP), vr(t), SRD_WS, SRD_WS+3, sF))
    a("s_waitcnt vmcnt(0)")
    a("v_cmp_ne_u32 vcc, s%d, %s" % (S_NONCE, vr(vP)))
    a("s_cbranch_vccnz h_poll")
class XP:
    def issue(s, vP, t):
        return ["v_and_b32 %s, 7, v0" % vr(t), "v_lshlrev_b32 %s, 2, %s" % (vr(t), vr(t)),
                "s_lshl_b32 s%d, s%d, 7" % (sF, S_DB), "s_add_u32 s%d, s%d, 0x%x" % (sF, sF, WS_FL + 0x1000),
                ("buffer_load_dword %s, %s, s[%d:%d], s%d offen sc1" % (vr(vP), vr(t), SRD_WS, SRD_WS+3, sF), ("poll",))]
    def finish(s, vP, t, reload):
        a("v_cmp_ne_u32 vcc, s%d, %s" % (S_NONCE, vr(vP)))
        a("s_cbranch_vccz xa_ok")
        a.label("xa_poll")
        a("buffer_load_dword %s, %s, s[%d:%d], s%d offen sc1" % (vr(vP), vr(t), SRD_WS, SRD_WS+3, sF))
        a("s_waitcnt vmcnt(0)")
        a("v_cmp_ne_u32 vcc, s%d, %s" % (S_NONCE, vr(vP)))
        a("s_cbranch_vccnz xa_poll")
        reload()
        a("s_waitcnt vmcnt(0)")
        a.label("xa_ok")
        S2(6)
role_g2.g2_compute(a, va, h_wait=h_wait, xa_poll=XP(), sc="sc1", stamps=S2)
S2.flush({0:11, 2:12, 5:13, 9:14})
a("s_endpgm")
hi = max(hi, va.hi)
a.label("g_help")
va = VAlloc()
issue2, put2 = role_g2.g2_helper_setup(a, va)
SCHED = eval(os.environ.get("W2S", "{6: [6], 7: [7, 0], 8: [8, 1], 9: [2, 3]}"))
q2 = []
def hook(b):
    r = []
    for st in SCHED.get(b, []): issue2(st); r += [("w2", st)]*6
    q2.extend(r)
    return r
role_g1.g1_helper(a, va, stamps=S, hook=hook)
a("s_barrier")
a("s_barrier")
a("s_cmp_ge_u32 s%d, 20" % sI); a("s_cbranch_scc1 g_help_end")
for st in range(9):
    if ("w2", st) not in q2: issue2(st); q2.extend([("w2", st)]*6)
role_g2.g2_helper_loop(a, put2, q2)
a.label("g_help_end")
a("s_waitcnt vmcnt(0)")
S.flush()
a.label("k_end"); a("s_endpgm")
hi = max(hi, va.hi)
out = hdr + "; @launch grid=(256,1,1) block=(512,1,1) lds=163840\n"
out += '.amdgcn_target "amdgcn-amd-amdhsa--gfx950"\n.text\n'
k = KN + "_kernel"
out += ".globl %s\n.p2align 8\n.type %s,@function\n%s:\n%s" % (k, k, k, a.text())
out += '.section .rodata,"a"\n.p2align 6\n' + kernel_desc(k, hi)
open(sys.argv[1], "w").write(out)
print("vgprs", hi, "lines", len(a.l))
```

```python
WS_H     = 0
H_MT_STRIDE = 54*1024
WS_ST    = 0x700000
WS_AT    = 0x710000
WS_STAMP = 0xA00000
WS_CS    = 0x708000
WS_FL    = 0x70C000
X_BYTES  = 2048*640*2
W_BYTES  = 640*1728*2
P_BYTES  = 640*128*2

class Asm:
    def __init__(s):
        s.l = []; s.uid = 0
    def __call__(s, t):
        for line in t.split("\n"):
            line = line.strip()
            if line: s.l.append("    " + line)
    def label(s, n): s.l.append(n + ":")
    def newlabel(s, p="L"):
        s.uid += 1; return "%s_%d" % (p, s.uid)
    def comment(s, t): s.l.append("    ; " + t)
    def text(s): return "\n".join(s.l) + "\n"

def vr(b, n=1):
    return "v%d" % b if n == 1 else "v[%d:%d]" % (b, b+n-1)
def sr(b, n=1):
    return "s%d" % b if n == 1 else "s[%d:%d]" % (b, b+n-1)

class VAlloc:
    def __init__(s, start=1, limit=256): s.n = start; s.limit = limit; s.hi = start
    def __call__(s, n=1, align=None):
        if align is None: align = 2 if n >= 2 else 1
        s.n = (s.n + align - 1)//align*align
        b = s.n; s.n += n; s.hi = max(s.hi, s.n)
        assert s.n <= s.limit, "out of vgprs"
        return b
    def mark(s): return s.n
    def release(s, m): s.n = m

S_WG   = 2
S_PTR  = 4
P_U, P_LOGA, P_AIM, P_CRE, P_CIM, P_LOGDT, P_DSK = 4, 6, 8, 10, 12, 14, 16
P_W1, P_W2, P_OUT, P_DBG = 20, 22, 24, 26
P_WS = 28
S_WAVE = 30
SRD_X  = 32
SRD_W  = 36
SRD_WS = 40
SRD_O  = 44
SRD_D  = 48
S_T = 52
SRD_W2 = 72
S_NONCE = 67

def load_args(a):
    a("s_load_dwordx16 s[4:19], s[0:1], 0")
    a("s_load_dwordx8 s[20:27], s[0:1], 64")
    a("s_load_dwordx2 s[28:29], s[0:1], 96")

def srd(a, d, p, nbytes):
    a("s_mov_b32 s%d, s%d" % (d, p))
    a("s_and_b32 s%d, s%d, 0xffff" % (d+1, p+1))
    a("s_mov_b32 s%d, 0x%x" % (d+2, nbytes))
    a("s_mov_b32 s%d, 0x20000" % (d+3))

def wave_id(a, vtmp):
    a("v_lshrrev_b32 %s, 6, v0" % vr(vtmp))
    a("v_and_b32 v0, 63, v0")
    a("v_readfirstlane_b32 s%d, %s" % (S_WAVE, vr(vtmp)))

S_STAMP = 80
class Stamps:
    def __init__(s, a, enable, area=0): s.a = a; s.en = enable; s.area = area; s.mx = 0
    def __call__(s, k):
        if not s.en: return
        assert k < 10
        s.a("%s s[%d:%d]" % (STAMPOP, S_STAMP+2*k, S_STAMP+2*k+1))
    def clear(s):
        if not s.en: return
        for k in range(10): s.a("s_mov_b32 s%d, 0" % (S_STAMP+2*k))
        s.a("s_memtime s[76:77]")
    def flush(s, dmap=None):
        if not s.en: return
        a = s.a
        if os.environ.get("DSTAMP"):
            a("s_waitcnt lgkmcnt(0) vmcnt(0)")
            a("%s s[%d:%d]" % (STAMPOP, S_STAMP+18, S_STAMP+19))
            a("s_waitcnt lgkmcnt(0)")
            a("s_mov_b64 exec, 1")
            a("v_mov_b32 v1, 0")
            for k, w in (dmap or {}).items():
                a("v_mov_b32 v2, s%d" % (S_STAMP+2*k))
                a("global_atomic_umax v1, v2, s[%d:%d] offset:%d" % (P_DBG, P_DBG+1, 4*w))
                a("s_nop 0")
            return
        a("s_lshl_b32 s%d, s%d, 3" % (S_T, S_WG))
        a("s_add_u32 s%d, s%d, s%d" % (S_T, S_T, S_WAVE))
        a("s_lshl_b32 s%d, s%d, 6" % (S_T, S_T))
        a("s_add_u32 s%d, s%d, 0x%x" % (S_T, S_T, WS_STAMP + s.area*0x20000))
        a("s_waitcnt lgkmcnt(0) vmcnt(0)")
        a("%s s[%d:%d]" % (STAMPOP, S_STAMP+18, S_STAMP+19))
        a("s_memtime s[78:79]")
        a("s_waitcnt lgkmcnt(0)")
        a("s_sub_u32 s76, s78, s76")
        a("s_mov_b64 exec, 1")
        a("v_mov_b32 v1, 0")
        for k in range(10):
            a("v_mov_b32 v%d, s%d" % (2+k, S_STAMP+2*k))
            a("buffer_store_dword v%d, v1, s[%d:%d], s%d offen offset:%d" % (2+k, SRD_WS, SRD_WS+3, S_T, 4*k))
        a("v_mov_b32 v12, s76")
        a("buffer_store_dword v12, v1, s[%d:%d], s%d offen offset:40" % (SRD_WS, SRD_WS+3, S_T))

def kernel_desc(name, vgprs, sgprs=102):
    acc = (vgprs + 3)//4*4
    return """.amdhsa_kernel %s
  .amdhsa_next_free_vgpr %d
  .amdhsa_next_free_sgpr %d
  .amdhsa_accum_offset %d
  .amdhsa_group_segment_fixed_size 0
  .amdhsa_kernarg_size 104
  .amdhsa_user_sgpr_count 2
  .amdhsa_user_sgpr_kernarg_segment_ptr 1
  .amdhsa_system_sgpr_workgroup_id_x 1
  .amdhsa_float_denorm_mode_32 3
.end_amdhsa_kernel
""" % (name, vgprs, sgprs, acc)

def interleave(a, mfmas, fillers, per_gap=None):
    fi = 0
    n = len(mfmas)
    for i, m in enumerate(mfmas):
        a(m)
        remaining_gaps = n - i
        want = -(-(len(fillers) - fi)//remaining_gaps) if per_gap is None else per_gap
        cnt = 0
        while fi < len(fillers) and cnt < want:
            a(fillers[fi]); fi += 1; cnt += 1
    while fi < len(fillers):
        a(fillers[fi]); fi += 1

import struct
import os
STAMPS = bool(int(os.environ.get('STAMPS','0')))
STAMPOP = 's_memtime' if os.environ.get('STAMPS') == '2' else 's_memrealtime'
def f2u(x): return struct.unpack("<I", struct.pack("<f", x))[0]

def nonce_issue(a, vN, vZ):
    a("v_mov_b32 %s, 0" % vr(vZ))
    a("global_load_dword %s, %s, s[%d:%d] sc1" % (vr(vN), vr(vZ), P_DBG, P_DBG+1))
def nonce_finish(a, vN, vZ):
    ok = a.newlabel("nz_ok"); lp = a.newlabel("nz_lp")
    a.label(lp)
    a("v_readfirstlane_b32 s%d, %s" % (S_NONCE, vr(vN)))
    a("s_cmp_lg_u32 s%d, 0" % S_NONCE)
    a("s_cbranch_scc1 %s" % ok)
    a("v_mov_b32 %s, 0" % vr(vZ))
    a("global_load_dword %s, %s, s[%d:%d] sc1" % (vr(vN), vr(vZ), P_DBG, P_DBG+1))
    a("s_waitcnt vmcnt(0)")
    a("s_branch %s" % lp)
    a.label(ok)
def tags_check(a, tags, t0, t1, fail):
    tags = list(tags)
    for op, t in (("v_min3_u32", t0), ("v_max3_u32", t1)):
        a("%s %s, %s, %s, %s" % (op, vr(t), vr(tags[0]), vr(tags[1 % len(tags)]), vr(tags[2 % len(tags)])))
        for i in range(3, len(tags), 2):
            a("%s %s, %s, %s, %s" % (op, vr(t), vr(t), vr(tags[i]), vr(tags[min(i+1, len(tags)-1)])))
    a("v_cmp_ne_u32 vcc, s%d, %s" % (S_NONCE, vr(t0)))
    a("s_cbranch_vccnz %s" % fail)
    a("v_cmp_ne_u32 vcc, s%d, %s" % (S_NONCE, vr(t1)))
    a("s_cbranch_vccnz %s" % fail)
def flag_store(a, soff_s, t0, t1):
    a("v_mov_b32 %s, s%d" % (vr(t0), S_NONCE))
    a("v_mov_b32 %s, 0" % vr(t1))
    a("s_mov_b64 exec, 1")
    a("buffer_store_dword %s, %s, s[%d:%d], s%d offen sc1" % (vr(t0), vr(t1), SRD_WS, SRD_WS+3, soff_s))
    a("s_mov_b64 exec, -1")
```

```python
WS_H     = 0
H_MT_STRIDE = 54*1024
WS_ST    = 0x700000
WS_AT    = 0x710000
WS_STAMP = 0xA00000
WS_CS    = 0x708000
WS_FL    = 0x70C000
X_BYTES  = 2048*640*2
W_BYTES  = 640*1728*2
P_BYTES  = 640*128*2

class Asm:
    def __init__(s):
        s.l = []; s.uid = 0
    def __call__(s, t):
        for line in t.split("\n"):
            line = line.strip()
            if line: s.l.append("    " + line)
    def label(s, n): s.l.append(n + ":")
    def newlabel(s, p="L"):
        s.uid += 1; return "%s_%d" % (p, s.uid)
    def comment(s, t): s.l.append("    ; " + t)
    def text(s): return "\n".join(s.l) + "\n"

def vr(b, n=1):
    return "v%d" % b if n == 1 else "v[%d:%d]" % (b, b+n-1)
def sr(b, n=1):
    return "s%d" % b if n == 1 else "s[%d:%d]" % (b, b+n-1)

class VAlloc:
    def __init__(s, start=1, limit=256): s.n = start; s.limit = limit; s.hi = start
    def __call__(s, n=1, align=None):
        if align is None: align = 2 if n >= 2 else 1
        s.n = (s.n + align - 1)//align*align
        b = s.n; s.n += n; s.hi = max(s.hi, s.n)
        assert s.n <= s.limit, "out of vgprs"
        return b
    def mark(s): return s.n
    def release(s, m): s.n = m

S_WG   = 2
S_PTR  = 4
P_U, P_LOGA, P_AIM, P_CRE, P_CIM, P_LOGDT, P_DSK = 4, 6, 8, 10, 12, 14, 16
P_W1, P_W2, P_OUT, P_DBG = 20, 22, 24, 26
P_WS = 28
S_WAVE = 30
SRD_X  = 32
SRD_W  = 36
SRD_WS = 40
SRD_O  = 44
SRD_D  = 48
S_T = 52
SRD_W2 = 72
S_NONCE = 67

def load_args(a):
    a("s_load_dwordx16 s[4:19], s[0:1], 0")
    a("s_load_dwordx8 s[20:27], s[0:1], 64")
    a("s_load_dwordx2 s[28:29], s[0:1], 96")

def srd(a, d, p, nbytes):
    a("s_mov_b32 s%d, s%d" % (d, p))
    a("s_and_b32 s%d, s%d, 0xffff" % (d+1, p+1))
    a("s_mov_b32 s%d, 0x%x" % (d+2, nbytes))
    a("s_mov_b32 s%d, 0x20000" % (d+3))

def wave_id(a, vtmp):
    a("v_lshrrev_b32 %s, 6, v0" % vr(vtmp))
    a("v_and_b32 v0, 63, v0")
    a("v_readfirstlane_b32 s%d, %s" % (S_WAVE, vr(vtmp)))

S_STAMP = 80
class Stamps:
    def __init__(s, a, enable, area=0): s.a = a; s.en = enable; s.area = area; s.mx = 0
    def __call__(s, k):
        if not s.en: return
        assert k < 10
        s.a("%s s[%d:%d]" % (STAMPOP, S_STAMP+2*k, S_STAMP+2*k+1))
    def clear(s):
        if not s.en: return
        for k in range(10): s.a("s_mov_b32 s%d, 0" % (S_STAMP+2*k))
        s.a("s_memtime s[76:77]")
    def flush(s, dmap=None):
        if not s.en: return
        a = s.a
        if os.environ.get("DSTAMP"):
            a("s_waitcnt lgkmcnt(0) vmcnt(0)")
            a("%s s[%d:%d]" % (STAMPOP, S_STAMP+18, S_STAMP+19))
            a("s_waitcnt lgkmcnt(0)")
            a("s_cmp_eq_u32 s%d, 0" % S_WAVE)
            sk = a.newlabel("ds_skip")
            a("s_cbranch_scc0 %s" % sk)
            a("v_mov_b32 v1, 0")
            a("s_mov_b64 exec, 1")
            for k, w in (dmap or {}).items():
                a("v_mov_b32 v2, s%d" % (S_STAMP+2*k))
                a("global_atomic_umax v1, v2, s[%d:%d] offset:%d" % (P_DBG, P_DBG+1, 4*w))
                a("s_nop 0")
            a.label(sk)
            return
        a("s_lshl_b32 s%d, s%d, 3" % (S_T, S_WG))
        a("s_add_u32 s%d, s%d, s%d" % (S_T, S_T, S_WAVE))
        a("s_lshl_b32 s%d, s%d, 6" % (S_T, S_T))
        a("s_add_u32 s%d, s%d, 0x%x" % (S_T, S_T, WS_STAMP + s.area*0x20000))
        a("s_waitcnt lgkmcnt(0) vmcnt(0)")
        a("%s s[%d:%d]" % (STAMPOP, S_STAMP+18, S_STAMP+19))
        a("s_memtime s[78:79]")
        a("s_waitcnt lgkmcnt(0)")
        a("s_sub_u32 s76, s78, s76")
        a("s_mov_b64 exec, 1")
        a("v_mov_b32 v1, 0")
        for k in range(10):
            a("v_mov_b32 v%d, s%d" % (2+k, S_STAMP+2*k))
            a("buffer_store_dword v%d, v1, s[%d:%d], s%d offen offset:%d" % (2+k, SRD_WS, SRD_WS+3, S_T, 4*k))
        a("v_mov_b32 v12, s76")
        a("buffer_store_dword v12, v1, s[%d:%d], s%d offen offset:40" % (SRD_WS, SRD_WS+3, S_T))

def kernel_desc(name, vgprs, sgprs=102):
    acc = (vgprs + 3)//4*4
    return """.amdhsa_kernel %s
  .amdhsa_next_free_vgpr %d
  .amdhsa_next_free_sgpr %d
  .amdhsa_accum_offset %d
  .amdhsa_group_segment_fixed_size 0
  .amdhsa_kernarg_size 104
  .amdhsa_user_sgpr_count 2
  .amdhsa_user_sgpr_kernarg_segment_ptr 1
  .amdhsa_system_sgpr_workgroup_id_x 1
  .amdhsa_float_denorm_mode_32 3
.end_amdhsa_kernel
""" % (name, vgprs, sgprs, acc)

def interleave(a, mfmas, fillers, per_gap=None):
    fi = 0
    n = len(mfmas)
    for i, m in enumerate(mfmas):
        a(m)
        remaining_gaps = n - i
        want = -(-(len(fillers) - fi)//remaining_gaps) if per_gap is None else per_gap
        cnt = 0
        while fi < len(fillers) and cnt < want:
            a(fillers[fi]); fi += 1; cnt += 1
    while fi < len(fillers):
        a(fillers[fi]); fi += 1

import struct
import os
STAMPS = bool(int(os.environ.get('STAMPS','0')))
STAMPOP = 's_memtime' if os.environ.get('STAMPS') == '2' else 's_memrealtime'
def f2u(x): return struct.unpack("<I", struct.pack("<f", x))[0]

def nonce_issue(a, vN, vZ):
    a("v_mov_b32 %s, 0" % vr(vZ))
    a("global_load_dword %s, %s, s[%d:%d] sc1" % (vr(vN), vr(vZ), P_DBG, P_DBG+1))
def nonce_finish(a, vN, vZ):
    ok = a.newlabel("nz_ok"); lp = a.newlabel("nz_lp")
    a.label(lp)
    a("v_readfirstlane_b32 s%d, %s" % (S_NONCE, vr(vN)))
    a("s_cmp_lg_u32 s%d, 0" % S_NONCE)
    a("s_cbranch_scc1 %s" % ok)
    a("v_mov_b32 %s, 0" % vr(vZ))
    a("global_load_dword %s, %s, s[%d:%d] sc1" % (vr(vN), vr(vZ), P_DBG, P_DBG+1))
    a("s_waitcnt vmcnt(0)")
    a("s_branch %s" % lp)
    a.label(ok)
def tags_check(a, tags, t0, t1, fail):
    tags = list(tags)
    for op, t in (("v_min3_u32", t0), ("v_max3_u32", t1)):
        a("%s %s, %s, %s, %s" % (op, vr(t), vr(tags[0]), vr(tags[1 % len(tags)]), vr(tags[2 % len(tags)])))
        for i in range(3, len(tags), 2):
            a("%s %s, %s, %s, %s" % (op, vr(t), vr(t), vr(tags[i]), vr(tags[min(i+1, len(tags)-1)])))
    a("v_cmp_ne_u32 vcc, s%d, %s" % (S_NONCE, vr(t0)))
    a("s_cbranch_vccnz %s" % fail)
    a("v_cmp_ne_u32 vcc, s%d, %s" % (S_NONCE, vr(t1)))
    a("s_cbranch_vccnz %s" % fail)
def flag_store(a, soff_s, t0, t1):
    a("v_mov_b32 %s, s%d" % (vr(t0), S_NONCE))
    a("v_mov_b32 %s, 0" % vr(t1))
    a("s_mov_b64 exec, 1")
    a("buffer_store_dword %s, %s, s[%d:%d], s%d offen sc1" % (vr(t0), vr(t1), SRD_WS, SRD_WS+3, soff_s))
    a("s_mov_b64 exec, -1")
```

```python
WS_H     = 0
H_MT_STRIDE = 54*1024
WS_ST    = 0x700000
WS_AT    = 0x710000
WS_STAMP = 0xA00000
WS_UT    = 0xB00000
UT_PS    = 40960 + 384
WS_CS    = 0x708000
WS_FL    = 0xE00000
WS_AF    = WS_FL + 0x10000
WS_UF    = WS_FL + 0x30000
X_BYTES  = 2048*640*2
W_BYTES  = 640*1728*2
P_BYTES  = 640*128*2

class Asm:
    def __init__(s):
        s.l = []; s.uid = 0
    def __call__(s, t):
        for line in t.split("\n"):
            line = line.strip()
            if line: s.l.append("    " + line)
    def label(s, n): s.l.append(n + ":")
    def newlabel(s, p="L"):
        s.uid += 1; return "%s_%d" % (p, s.uid)
    def comment(s, t): s.l.append("    ; " + t)
    def text(s): return "\n".join(s.l) + "\n"

def vr(b, n=1):
    return "v%d" % b if n == 1 else "v[%d:%d]" % (b, b+n-1)
def sr(b, n=1):
    return "s%d" % b if n == 1 else "s[%d:%d]" % (b, b+n-1)

class VAlloc:
    def __init__(s, start=1, limit=256): s.n = start; s.limit = limit; s.hi = start
    def __call__(s, n=1, align=None):
        if align is None: align = 2 if n >= 2 else 1
        s.n = (s.n + align - 1)//align*align
        b = s.n; s.n += n; s.hi = max(s.hi, s.n)
        assert s.n <= s.limit, "out of vgprs"
        return b
    def mark(s): return s.n
    def release(s, m): s.n = m

S_WG   = 2
S_PTR  = 4
P_U, P_LOGA, P_AIM, P_CRE, P_CIM, P_LOGDT, P_DSK = 4, 6, 8, 10, 12, 14, 16
P_W1, P_W2, P_OUT, P_DBG = 20, 22, 24, 26
P_WS = 28
S_WAVE = 30
SRD_X  = 32
SRD_W  = 36
SRD_WS = 40
SRD_O  = 44
SRD_D  = 48
S_T = 52
SRD_W2 = 72
S_NONCE = 67

def load_args(a):
    a("s_load_dwordx16 s[4:19], s[0:1], 0")
    a("s_load_dwordx8 s[20:27], s[0:1], 64")
    a("s_load_dwordx2 s[28:29], s[0:1], 96")

def srd(a, d, p, nbytes):
    a("s_mov_b32 s%d, s%d" % (d, p))
    a("s_and_b32 s%d, s%d, 0xffff" % (d+1, p+1))
    a("s_mov_b32 s%d, 0x%x" % (d+2, nbytes))
    a("s_mov_b32 s%d, 0x20000" % (d+3))

def wave_id(a, vtmp):
    a("v_lshrrev_b32 %s, 6, v0" % vr(vtmp))
    a("v_and_b32 v0, 63, v0")
    a("v_readfirstlane_b32 s%d, %s" % (S_WAVE, vr(vtmp)))

S_STAMP = 80
class Stamps:
    def __init__(s, a, enable, area=0): s.a = a; s.en = enable; s.area = area; s.mx = 0
    def __call__(s, k):
        if not s.en: return
        assert k < 10
        s.a("%s s[%d:%d]" % (STAMPOP, S_STAMP+2*k, S_STAMP+2*k+1))
    def clear(s):
        if not s.en: return
        for k in range(10): s.a("s_mov_b32 s%d, 0" % (S_STAMP+2*k))
        s.a("s_memtime s[76:77]")
    def flush(s, dmap=None):
        if not s.en: return
        a = s.a
        if os.environ.get("DSTAMP"):
            a("s_waitcnt lgkmcnt(0) vmcnt(0)")
            a("%s s[%d:%d]" % (STAMPOP, S_STAMP+18, S_STAMP+19))
            a("s_waitcnt lgkmcnt(0)")
            a("s_cmp_eq_u32 s%d, 0" % S_WAVE)
            sk = a.newlabel("ds_skip")
            a("s_cbranch_scc0 %s" % sk)
            a("v_mov_b32 v1, 0")
            a("s_mov_b64 exec, 1")
            for k, w in (dmap or {}).items():
                a("v_mov_b32 v2, s%d" % (S_STAMP+2*k))
                a("global_atomic_umax v1, v2, s[%d:%d] offset:%d" % (P_DBG, P_DBG+1, 4*w))
                a("s_nop 0")
            a.label(sk)
            return
        a("s_lshl_b32 s%d, s%d, 3" % (S_T, S_WG))
        a("s_add_u32 s%d, s%d, s%d" % (S_T, S_T, S_WAVE))
        a("s_lshl_b32 s%d, s%d, 6" % (S_T, S_T))
        a("s_add_u32 s%d, s%d, 0x%x" % (S_T, S_T, WS_STAMP + s.area*0x20000))
        a("s_waitcnt lgkmcnt(0) vmcnt(0)")
        a("%s s[%d:%d]" % (STAMPOP, S_STAMP+18, S_STAMP+19))
        a("s_memtime s[78:79]")
        a("s_waitcnt lgkmcnt(0)")
        a("s_sub_u32 s76, s78, s76")
        a("s_mov_b64 exec, 1")
        a("v_mov_b32 v1, 0")
        for k in range(10):
            a("v_mov_b32 v%d, s%d" % (2+k, S_STAMP+2*k))
            a("buffer_store_dword v%d, v1, s[%d:%d], s%d offen offset:%d" % (2+k, SRD_WS, SRD_WS+3, S_T, 4*k))
        a("v_mov_b32 v12, s76")
        a("buffer_store_dword v12, v1, s[%d:%d], s%d offen offset:40" % (SRD_WS, SRD_WS+3, S_T))

def kernel_desc(name, vgprs, sgprs=102):
    acc = (vgprs + 3)//4*4
    return """.amdhsa_kernel %s
  .amdhsa_next_free_vgpr %d
  .amdhsa_next_free_sgpr %d
  .amdhsa_accum_offset %d
  .amdhsa_group_segment_fixed_size 0
  .amdhsa_kernarg_size 104
  .amdhsa_user_sgpr_count 2
  .amdhsa_user_sgpr_kernarg_segment_ptr 1
  .amdhsa_system_sgpr_workgroup_id_x 1
  .amdhsa_float_denorm_mode_32 3
.end_amdhsa_kernel
""" % (name, vgprs, sgprs, acc)

def interleave(a, mfmas, fillers, per_gap=None):
    fi = 0
    n = len(mfmas)
    for i, m in enumerate(mfmas):
        a(m)
        remaining_gaps = n - i
        want = -(-(len(fillers) - fi)//remaining_gaps) if per_gap is None else per_gap
        cnt = 0
        while fi < len(fillers) and cnt < want:
            a(fillers[fi]); fi += 1; cnt += 1
    while fi < len(fillers):
        a(fillers[fi]); fi += 1

import struct
import os
STAMPS = bool(int(os.environ.get('STAMPS','0')))
STAMPOP = 's_memtime' if os.environ.get('STAMPS') == '2' else 's_memrealtime'
def f2u(x): return struct.unpack("<I", struct.pack("<f", x))[0]

def nonce_issue(a, vN, vZ):
    a("v_mov_b32 %s, 0" % vr(vZ))
    a("global_load_dword %s, %s, s[%d:%d] sc1" % (vr(vN), vr(vZ), P_DBG, P_DBG+1))
def nonce_finish(a, vN, vZ):
    ok = a.newlabel("nz_ok"); lp = a.newlabel("nz_lp")
    a.label(lp)
    a("v_readfirstlane_b32 s%d, %s" % (S_NONCE, vr(vN)))
    a("s_cmp_lg_u32 s%d, 0" % S_NONCE)
    a("s_cbranch_scc1 %s" % ok)
    a("v_mov_b32 %s, 0" % vr(vZ))
    a("global_load_dword %s, %s, s[%d:%d] sc1" % (vr(vN), vr(vZ), P_DBG, P_DBG+1))
    a("s_waitcnt vmcnt(0)")
    a("s_branch %s" % lp)
    a.label(ok)
def tags_check(a, tags, t0, t1, fail):
    tags = list(tags)
    for op, t in (("v_min3_u32", t0), ("v_max3_u32", t1)):
        a("%s %s, %s, %s, %s" % (op, vr(t), vr(tags[0]), vr(tags[1 % len(tags)]), vr(tags[2 % len(tags)])))
        for i in range(3, len(tags), 2):
            a("%s %s, %s, %s, %s" % (op, vr(t), vr(t), vr(tags[i]), vr(tags[min(i+1, len(tags)-1)])))
    a("v_cmp_ne_u32 vcc, s%d, %s" % (S_NONCE, vr(t0)))
    a("s_cbranch_vccnz %s" % fail)
    a("v_cmp_ne_u32 vcc, s%d, %s" % (S_NONCE, vr(t1)))
    a("s_cbranch_vccnz %s" % fail)
def flag_store(a, soff_s, t0, t1):
    a("v_mov_b32 %s, s%d" % (vr(t0), S_NONCE))
    a("v_mov_b32 %s, 0" % vr(t1))
    a("s_mov_b64 exec, 1")
    a("buffer_store_dword %s, %s, s[%d:%d], s%d offen sc1" % (vr(t0), vr(t1), SRD_WS, SRD_WS+3, soff_s))
    a("s_mov_b64 exec, -1")
```

```python
from gen_common import *
import math
PW = 15872
TOFF = 12800
REGB = 8448
UB = 8*PW
USTR = 4576
XO = 163584 - 1024 - 1280
S_CW = 66
LOG2E = 1.4426950408889634
L2E_HI = f2u(LOG2E); L2E_LO = f2u(LOG2E - struct.unpack("<f", struct.pack("<f", LOG2E))[0])

def exp_bf16(a, dst, src, t0, t1, sH, sL, sN):
    a("v_mul_f32 %s, s%d, %s" % (vr(t0), sH, vr(src)))
    a("v_fma_f32 %s, %s, s%d, -%s" % (vr(t1), vr(src), sH, vr(t0)))
    a("v_fmac_f32 %s, s%d, %s" % (vr(t1), sL, vr(src)))
    a("v_exp_f32 %s, %s" % (vr(t0), vr(t0)))
    a("v_mul_f32 %s, s%d, %s" % (vr(t1), sN, vr(t1)))
    a("v_fma_f32 %s, %s, %s, %s" % (vr(t0), vr(t0), vr(t1), vr(t0)))
    a("v_cvt_pk_bf16_f32 %s, %s, %s" % (vr(t0), vr(t0), vr(t0)))
    a("v_lshlrev_b32 %s, 16, %s" % (vr(dst), vr(t0)))

def cmul(a, z, x, y, t):
    a("v_pk_mul_f32 %s, %s, %s op_sel_hi:[1,0]" % (vr(t,2), vr(x,2), vr(y,2)))
    a("v_pk_fma_f32 %s, %s, %s, %s op_sel:[1,1,0] op_sel_hi:[0,1,1] neg_lo:[1,0,0]" % (vr(z,2), vr(x,2), vr(y,2), vr(t,2)))

def conv_issue_loads(a, va, sc=""):
    R = {}
    R["par"] = [va() for _ in range(4)]
    t = va(); R["t"] = t
    sD = S_T+8; R["sD"] = sD
    a("s_lshl_b32 s%d, s%d, 3" % (sD, S_CW))
    a("s_add_u32 s%d, s%d, s%d" % (sD, sD, S_WAVE))
    a("s_lshl_b32 s%d, s%d, 8" % (S_T, sD))
    a("v_lshlrev_b32 %s, 2, v0" % vr(t))
    a("v_add_u32 %s, s%d, %s" % (vr(t), S_T, vr(t)))
    for i, p in enumerate((P_LOGA, P_AIM, P_CRE, P_CIM)):
        a("global_load_dword %s, %s, s[%d:%d]" % (vr(R["par"][i]), vr(t), p, p+1))
    a("s_lshr_b32 s%d, s%d, 1" % (S_T, sD))
    a("s_lshl_b32 s%d, s%d, 2" % (S_T, S_T))
    a("s_load_dword s%d, s[%d:%d], s%d" % (sD+1, P_LOGDT, P_LOGDT+1, S_T))
    a("s_load_dword s%d, s[%d:%d], s%d" % (sD+2, P_DSK, P_DSK+1, S_T))
    return R

def producer_issue(a, va, s_row0):
    vX = va(20, 4); F = va(40, 2); vO = va(); vS = va(2); vT = va(2); vM = va(2); vQ = va(2); vU = va(2); vA = va()
    a("v_lshrrev_b32 %s, 4, v0" % vr(vT))
    a("v_add_u32 %s, s%d, %s" % (vr(vT), s_row0, vr(vT)))
    a("v_mul_u32_u24 %s, 1280, %s" % (vr(vO), vr(vT)))
    a("v_and_b32 %s, 15, v0" % vr(vT+1))
    a("v_lshl_add_u32 %s, %s, 4, %s" % (vr(vO), vr(vT+1), vr(vO)))
    for j in range(5):
        a("buffer_load_dwordx4 %s, %s, s[%d:%d], 0 offen offset:%d" % (vr(vX+4*j, 4), vr(vO), SRD_X, SRD_X+3, 256*j))
    def rowsum(v):
        for r in (8, 4, 2, 1):
            a("s_nop 1")
            a("v_add_f32_dpp %s, %s, %s row_ror:%d row_mask:0xf bank_mask:0xf" % (vr(v), vr(v), vr(v), r))
    def part1(nonce_cb):
        a("v_lshlrev_b32 %s, 3, %s" % (vr(vO), vr(vT)))
        for i in range(20):
            a("v_lshlrev_b32 %s, 16, %s" % (vr(F+2*i), vr(vX+i)))
            a("v_and_b32 %s, 0xffff0000, %s" % (vr(F+2*i+1), vr(vX+i)))
        a("v_pk_add_f32 %s, %s, %s" % (vr(vS,2), vr(F,2), vr(F+2,2)))
        a("v_pk_add_f32 %s, %s, %s" % (vr(vQ,2), vr(F+4,2), vr(F+6,2)))
        for i in range(4, 20):
            d = vQ if i & 1 else vS
            a("v_pk_add_f32 %s, %s, %s" % (vr(d,2), vr(d,2), vr(F+2*i,2)))
        a("v_pk_add_f32 %s, %s, %s" % (vr(vS,2), vr(vS,2), vr(vQ,2)))
        a("v_add_f32 %s, %s, %s" % (vr(vS), vr(vS), vr(vS+1)))
        rowsum(vS)
        a("v_mul_f32 %s, 0x%08x, %s" % (vr(vM), f2u(1.0/640), vr(vS)))
        tm = [vX, vX+2, vX+4, vX+6]
        for i in range(20):
            t = tm[i & 3]; d = vQ if i & 1 else vS
            a("v_pk_add_f32 %s, %s, %s op_sel_hi:[1,0] neg_lo:[0,1] neg_hi:[0,1]" % (vr(t,2), vr(F+2*i,2), vr(vM,2)))
            if i < 2: a("v_pk_mul_f32 %s, %s, %s" % (vr(d,2), vr(t,2), vr(t,2)))
            else: a("v_pk_fma_f32 %s, %s, %s, %s" % (vr(d,2), vr(t,2), vr(t,2), vr(d,2)))
        a("v_pk_add_f32 %s, %s, %s" % (vr(vQ,2), vr(vS,2), vr(vQ,2)))
        a("v_add_f32 %s, %s, %s" % (vr(vQ), vr(vQ), vr(vQ+1)))
        rowsum(vQ)
        a("v_mul_f32 %s, 0x%08x, %s" % (vr(vQ), f2u(1.0/640), vr(vQ)))
        a("v_cvt_pk_bf16_f32 %s, %s, %s" % (vr(vQ), vr(vQ), vr(vQ)))
        a("v_lshlrev_b32 %s, 16, %s" % (vr(vQ), vr(vQ)))
        a("v_add_f32 %s, 0x%08x, %s" % (vr(vQ), f2u(1e-5), vr(vQ)))
        a("v_cvt_pk_bf16_f32 %s, %s, %s" % (vr(vQ), vr(vQ), vr(vQ)))
        a("v_lshlrev_b32 %s, 16, %s" % (vr(vQ), vr(vQ)))
        a("v_sqrt_f32 %s, %s" % (vr(vQ), vr(vQ)))
        a("s_nop 0")
        a("v_cvt_pk_bf16_f32 %s, %s, %s" % (vr(vU), vr(vM), vr(vQ)))
        a("v_and_b32 %s, 0xffff0000, %s" % (vr(vM+1), vr(vU)))
        a("v_rcp_f32 %s, %s" % (vr(vM+1), vr(vM+1)))
        a("v_lshlrev_b32 %s, 16, %s" % (vr(vM), vr(vU)))
        a("v_and_b32 %s, 3, v0" % vr(vA))
        a("v_lshlrev_b32 %s, 1, %s" % (vr(vA), vr(vA)))
        a("v_xor_b32 %s, s%d, %s" % (vr(vA), S_WAVE, vr(vA)))
        a("v_lshlrev_b32 %s, 3, %s" % (vr(vA), vr(vA)))
        a("v_lshl_add_u32 %s, %s, 9, %s" % (vr(vA), vr(vT+1), vr(vA)))
        a("v_lshrrev_b32 %s, 4, v0" % vr(vT))
        a("v_lshl_add_u32 %s, %s, 7, %s" % (vr(vA), vr(vT), vr(vA)))
        a("s_mov_b32 s%d, 0x05040100" % S_T); a("s_mov_b32 s%d, 0x07060302" % (S_T+1))
        for i in range(20):
            a("v_pk_add_f32 %s, %s, %s op_sel_hi:[1,0] neg_lo:[0,1] neg_hi:[0,1]" % (vr(F+2*i,2), vr(F+2*i,2), vr(vM,2)))
        for i in range(20):
            a("v_pk_mul_f32 %s, %s, %s op_sel:[0,1] op_sel_hi:[1,1]" % (vr(F+2*i,2), vr(F+2*i,2), vr(vM,2)))
        for i in range(20):
            a("v_cvt_pk_bf16_f32 %s, %s, %s" % (vr(vX+i), vr(F+2*i), vr(F+2*i+1)))
        for op, prs in (("v_permlane32_swap_b32", ((0, 2), (1, 3))), ("v_permlane16_swap_b32", ((0, 1), (2, 3)))):
            a("s_nop 1")
            for j in range(5):
                for p, q in prs: a("%s %s, %s" % (op, vr(vX+4*j+p), vr(vX+4*j+q)))
        a("s_nop 1")
        for j in range(5):
            for e in range(2):
                o = F + 4*j + 2*e
                a("v_perm_b32 %s, %s, %s, s%d" % (vr(o), vr(vX+4*j+1), vr(vX+4*j), S_T+e))
                a("v_perm_b32 %s, %s, %s, s%d" % (vr(o+1), vr(vX+4*j+3), vr(vX+4*j+2), S_T+e))
                a("ds_write_b64 %s, %s offset:%d" % (vr(vA), vr(o, 2), 8192*j + 64*e))
        nonce_cb()
        a("v_mov_b32 %s, s%d" % (vr(vU+1), S_NONCE))
        a("v_cmp_eq_u32 vcc, 0, %s" % vr(vT+1))
        a("s_mov_b32 s%d, 0x%x" % (S_T, WS_ST))
        a("s_and_saveexec_b64 s[%d:%d], vcc" % (S_T+2, S_T+3))
        a("buffer_store_dwordx2 %s, %s, s[%d:%d], s%d offen sc1" % (vr(vU,2), vr(vO), SRD_WS, SRD_WS+3, S_T))
        a("s_mov_b64 exec, s[%d:%d]" % (S_T+2, S_T+3))
    def part2():
        a("v_lshrrev_b32 %s, 5, v0" % vr(vT))
        a("s_lshl_b32 s%d, s%d, 1" % (S_T, S_WAVE))
        a("v_add_u32 %s, s%d, %s" % (vr(vT), S_T, vr(vT)))
        a("v_xor_b32 %s, %s, v0" % (vr(vT), vr(vT)))
        a("v_and_b32 %s, 3, %s" % (vr(vT), vr(vT)))
        a("v_lshlrev_b32 %s, 4, %s" % (vr(vT), vr(vT)))
        a("v_lshrrev_b32 %s, 2, v0" % vr(vT+1))
        a("v_lshl_add_u32 %s, %s, 6, %s" % (vr(vT), vr(vT+1), vr(vT)))
        a("s_mul_i32 s%d, s%d, %d" % (S_T, S_WAVE, 80*64))
        a("v_add_u32 %s, s%d, %s" % (vr(vT), S_T, vr(vT)))
        a("v_xor_b32 %s, 32, %s" % (vr(vA), vr(vT)))
        for i in range(5): a("ds_read_b128 %s, %s offset:%d" % (vr(vX+4*i, 4), vr(vA if i & 1 else vT), 1024*i))
        a("v_lshlrev_b32 %s, 4, v0" % vr(vO))
        a("s_lshr_b32 s%d, s%d, 5" % (S_T, s_row0)); a("s_mul_i32 s%d, s%d, %d" % (S_T, S_T, UT_PS))
        a("s_mul_i32 s%d, s%d, %d" % (S_T+1, S_WAVE, 80*64))
        a("s_add_u32 s%d, s%d, s%d" % (S_T, S_T, S_T+1)); a("s_add_u32 s%d, s%d, 0x%x" % (S_T, S_T, WS_UT))
        a("s_waitcnt lgkmcnt(0)")
        a("s_barrier")
        for i in range(5):
            if not os.environ.get("NOUT"): a("buffer_store_dwordx4 %s, %s, s[%d:%d], s%d offen offset:%d %s" % (vr(vX+4*i, 4), vr(vO), SRD_WS, SRD_WS+3, S_T, 1024*(i & 3), os.environ.get("UTSC", "sc1")))
            if i == 3: a("s_add_u32 s%d, s%d, 4096" % (S_T, S_T))
    return part1, part2

def colsum_issue(a, va, s_blk, S_T=69):
    W = [va(4, 4) for _ in range(5)]; D = va(4, 4); I = va(4, 4); t0 = va(); t1 = va()
    a("s_mul_i32 s%d, s%d, %d" % (S_T, S_WAVE, 80*3456))
    a("s_lshl_b32 s%d, s%d, 6" % (S_T+1, s_blk))
    a("s_add_u32 s%d, s%d, s%d" % (S_T, S_T, S_T+1))
    a("v_lshrrev_b32 %s, 2, v0" % vr(t0))
    a("v_mul_u32_u24 %s, 3456, %s" % (vr(t0), vr(t0)))
    a("v_and_b32 %s, 3, v0" % vr(t1))
    a("v_lshl_add_u32 %s, %s, 4, %s" % (vr(t0), vr(t1), vr(t0)))
    if os.environ.get("NOCS"): a("s_mov_b32 s%d, 0x400000" % S_T)
    for i in range(5):
        a("buffer_load_dwordx4 %s, %s, s[%d:%d], s%d offen" % (vr(W[i], 4), vr(t0), SRD_W, SRD_W+3, S_T))
        if i < 4: a("s_add_u32 s%d, s%d, %d" % (S_T, S_T, 16*3456))
    def finish():
        a("v_and_b32 %s, 15, v0" % vr(t0))
        a("v_and_b32 %s, 1, v0" % vr(t1))
        a("v_lshlrev_b32 %s, 4, %s" % (vr(t1), vr(t1)))
        a("v_mov_b32 %s, 0x3f80" % vr(D))
        a("v_lshlrev_b32 %s, %s, %s" % (vr(t1), vr(t1), vr(D)))
        a("v_lshrrev_b32 %s, 1, %s" % (vr(t0), vr(t0)))
        for k in range(4):
            a("v_cmp_eq_u32 vcc, %d, %s" % (k, vr(t0)))
            a("s_nop 1")
            a("v_cndmask_b32 %s, 0, %s, vcc" % (vr(I+k), vr(t1)))
        a("s_nop 1")
        for i in range(5):
            a("v_mfma_f32_16x16x32_bf16 %s, %s, %s, %s" % (vr(D, 4), vr(I, 4), vr(W[i], 4), "0" if i == 0 else vr(D, 4)))
        a("v_and_b32 %s, 3, v0" % vr(t0))
        a("v_lshlrev_b32 %s, 5, %s" % (vr(t0), vr(t0)))
        a("v_lshrrev_b32 %s, 4, v0" % vr(t1))
        a("v_lshl_add_u32 %s, %s, 4, %s" % (vr(t0), vr(t1), vr(t0)))
        a("s_lshl_b32 s%d, s%d, 7" % (S_T, S_WAVE))
        a("s_add_u32 s%d, s%d, %d" % (S_T, S_T, XO))
        a("v_add_u32 %s, s%d, %s" % (vr(t0), S_T, vr(t0)))
        a("s_nop 3")
        for r in (4, 8):
            for k in range(4):
                a("v_add_f32_dpp %s, %s, %s row_ror:%d row_mask:0xf bank_mask:0xf" % (vr(D+k), vr(D+k), vr(D+k), r))
        a("s_mov_b32 exec_lo, 0x000f000f"); a("s_mov_b32 exec_hi, 0")
        a("ds_write_b128 %s, %s" % (vr(t0), vr(D, 4)))
        a("s_mov_b64 exec, -1")
        done = a.newlabel("cs_done"); last = a.newlabel("cs_last")
        a("v_mov_b32 %s, %d" % (vr(t0), XO + 1024)); a("v_mov_b32 %s, 1" % vr(t1))
        a("s_cmp_eq_u32 s%d, 7" % S_WAVE)
        a("s_cbranch_scc1 %s" % last)
        a("s_mov_b64 exec, 1")
        a("ds_add_u32 %s, %s" % (vr(t0), vr(t1)))
        a("s_mov_b64 exec, -1")
        a("s_branch %s" % done)
        a.label(last)
        a("ds_read_b32 %s, %s" % (vr(t1), vr(t0)))
        a("s_waitcnt lgkmcnt(0)")
        a("v_readfirstlane_b32 s%d, %s" % (S_T, vr(t1)))
        a("s_cmp_lg_u32 s%d, 7" % S_T)
        a("s_cbranch_scc1 %s" % last)
        a("v_and_b32 %s, 15, v0" % vr(t0))
        a("v_lshlrev_b32 %s, 3, %s" % (vr(t1), vr(t0)))
        a("v_add_u32 %s, %d, %s" % (vr(t1), XO, vr(t1)))
        for k in range(8): a("ds_read_b64 %s, %s offset:%d" % (vr(W[k >> 1] + 2*(k & 1), 2), vr(t1), 128*k))
        a("v_lshlrev_b32 %s, 4, %s" % (vr(t0), vr(t0)))
        a("s_lshl_b32 s%d, s%d, 8" % (S_T, s_blk))
        a("s_add_u32 s%d, s%d, 0x%x" % (S_T, S_T, WS_CS))
        a("v_mov_b32 %s, s%d" % (vr(D+2), S_NONCE)); a("v_mov_b32 %s, s%d" % (vr(D+3), S_NONCE))
        a("s_waitcnt lgkmcnt(0)")
        a("v_pk_add_f32 %s, %s, %s" % (vr(D, 2), vr(W[0], 2), vr(W[0]+2, 2)))
        for k in range(2, 8): a("v_pk_add_f32 %s, %s, %s" % (vr(D, 2), vr(D, 2), vr(W[k >> 1] + 2*(k & 1), 2)))
        a("s_mov_b64 exec, 0xffff")
        a("buffer_store_dwordx4 %s, %s, s[%d:%d], s%d offen sc1" % (vr(D, 4), vr(t0), SRD_WS, SRD_WS+3, S_T))
        a("s_mov_b64 exec, -1")
        a.label(done)
    return finish

def conv_kgen(a, va, R, vm_params, stamps=None, hooks=None):
    m = va.mark()
    sD = R["sD"]; sH, sL, sN, sB = S_T, S_T+1, S_T+2, S_T+3
    D = va(16, 4)
    fa = [va(4, 4) for _ in range(2)]; fb = [va(4, 4) for _ in range(2)]
    dt = va(); E1, E8, E256, Y, T = va(2), va(2), va(2), va(2), va(2)
    X = [va(2) for _ in range(8)]
    t0, t1, t2, t3 = va(), va(), va(), va()
    vW = va(); vR = va(); pk = [va() for _ in range(4)]
    a("s_mov_b32 s%d, 0x%08x" % (sH, L2E_HI)); a("s_mov_b32 s%d, 0x%08x" % (sL, L2E_LO)); a("s_mov_b32 s%d, 0x%08x" % (sN, f2u(math.log(2.0))))
    a("s_mul_i32 s%d, s%d, %d" % (sB, S_WAVE, PW))
    a("v_lshlrev_b32 %s, 2, v0" % vr(vW))
    a("v_add_u32 %s, s%d, %s" % (vr(vW), sB, vr(vW)))
    a("v_and_b32 %s, 31, v0" % vr(t0))
    a("v_mul_u32_u24 %s, 272, %s" % (vr(t0), vr(t0)))
    a("v_lshrrev_b32 %s, 5, v0" % vr(t1))
    a("v_lshl_add_u32 %s, %s, 4, %s" % (vr(t0), vr(t1), vr(t0)))
    a("v_add_u32 %s, s%d, %s" % (vr(vR), sB, vr(t0)))
    a("s_waitcnt lgkmcnt(0)")
    a("s_and_b32 s%d, s%d, 1" % (sB+1, sD))
    a("s_lshl_b32 s%d, s%d, 4" % (sB+1, sB+1))
    a("s_lshr_b32 s%d, s%d, s%d" % (sD+1, sD+1, sB+1)); a("s_lshl_b32 s%d, s%d, 16" % (sD+1, sD+1))
    a("s_lshr_b32 s%d, s%d, s%d" % (sD+2, sD+2, sB+1)); a("s_lshl_b32 s%d, s%d, 16" % (sD+2, sD+2))
    a("v_mov_b32 %s, s%d" % (vr(t2), sD+1))
    exp_bf16(a, dt, t2, t0, t1, sH, sL, sN)
    if vm_params is not None: a("s_waitcnt vmcnt(%d)" % vm_params)
    if stamps: stamps(2)
    cnt = [0]
    def put(row, z, neg):
        p = pk[cnt[0] % 4]; cnt[0] += 1
        a("v_cvt_pk_bf16_f32 %s, %s, %s%s" % (vr(p), vr(z), "-" if neg else "", vr(z+1)))
        a("ds_write_b32 %s, %s offset:%d" % (vr(vW), vr(p), row*272))
    for ps in range(2):
        def unp(dst, src):
            if ps == 0: a("v_lshlrev_b32 %s, 16, %s" % (vr(dst), vr(src)))
            else: a("v_and_b32 %s, 0xffff0000, %s" % (vr(dst), vr(src)))
        par = R["par"]
        hooks(ps, 'start', t0, t1)
        unp(t2, par[0])
        exp_bf16(a, t2, t2, t0, t1, sH, sL, sN)
        a("v_mul_f32 %s, %s, %s" % (vr(t2), vr(t2), vr(dt)))
        a("v_mul_f32 %s, s%d, %s" % (vr(t2), sH, vr(t2)))
        unp(t3, par[1])
        a("v_mul_f32 %s, %s, %s" % (vr(t3), vr(t3), vr(dt)))
        a("v_mul_f32 %s, 0.15915494, %s" % (vr(t3), vr(t3)))
        for E, sc_ in ((E1, 1.0), (E8, 8.0), (E256, 256.0)):
            a("v_mul_f32 %s, 0x%08x, %s" % (vr(t0), f2u(-sc_), vr(t2)))
            a("v_mul_f32 %s, 0x%08x, %s" % (vr(t1), f2u(sc_), vr(t3)))
            a("v_exp_f32 %s, %s" % (vr(t0), vr(t0)))
            a("v_fract_f32 %s, %s" % (vr(t1), vr(t1)))
            a("v_cos_f32 %s, %s" % (vr(E), vr(t1)))
            a("v_sin_f32 %s, %s" % (vr(E+1), vr(t1)))
            a("s_nop 0")
            a("v_mul_f32 %s, %s, %s" % (vr(E), vr(E), vr(t0)))
            a("v_mul_f32 %s, %s, %s" % (vr(E+1), vr(E+1), vr(t0)))
        unp(X[0], par[2]); unp(X[0]+1, par[3])
        a("v_add_f32 %s, %s, %s" % (vr(t0), vr(dt), vr(dt)))
        a("v_mul_f32 %s, %s, %s" % (vr(X[0]), vr(X[0]), vr(t0)))
        a("v_mul_f32 %s, %s, %s" % (vr(X[0]+1), vr(X[0]+1), vr(t0)))
        if ps == 1: a("s_waitcnt lgkmcnt(0)")
        a("v_mov_b32 %s, 0x3f80" % vr(pk[3]))
        a("ds_write_b32 %s, %s offset:0" % (vr(vW), vr(pk[3])))
        put(1, E8, False)
        cmul(a, Y, E8, E8, T); put(2, Y, False)
        for q in range(3, 32):
            hooks(ps, q, t0, t1)
            cmul(a, Y, Y, E8, T); put(q, Y, False)
        hooks(ps, 'e8', t0, t1)
        put(32, X[0], True)
        for i in range(1, 8):
            cmul(a, X[i], X[i-1], E1, T); put(32+i, X[i], True)
        for k, i in enumerate((0, 2, 4, 6)):
            cmul(a, X[i], X[i], E256, T); put(40+k, X[i], True)
        for k in range(2):
            for kk, i in enumerate((0, 4)):
                cmul(a, X[i], X[i], E256, T); put(44+2*k+kk, X[i], True)
        for k in range(5):
            cmul(a, X[0], X[0], E256, T); put(48+k, X[0], True)
        a("s_waitcnt lgkmcnt(0)")
        a("ds_read_b128 %s, %s offset:%d" % (vr(fa[0], 4), vr(vR), 32*272))
        a("ds_read_b128 %s, %s offset:%d" % (vr(fb[0], 4), vr(vR), 0))
        for s in range(8):
            b = s & 1
            if s < 7:
                a("ds_read_b128 %s, %s offset:%d" % (vr(fa[b^1], 4), vr(vR), 32*272 + 32*(s+1)))
                a("ds_read_b128 %s, %s offset:%d" % (vr(fb[b^1], 4), vr(vR), 32*(s+1)))
                a("s_waitcnt lgkmcnt(2)")
            else: a("s_waitcnt lgkmcnt(0)")
            c = "0" if (ps == 0 and s == 0) else vr(D, 16)
            a("v_mfma_f32_32x32x16_bf16 %s, %s, %s, %s" % (vr(D, 16), vr(fa[b], 4), vr(fb[b], 4), c))
    hooks(2, 'start', t0, t1)
    if stamps: stamps(3)
    q, h = t0, t1
    a("v_and_b32 %s, 31, v0" % vr(q)); a("v_lshrrev_b32 %s, 5, v0" % vr(h))
    a("s_add_u32 s%d, s%d, %d" % (sB+1, sB, TOFF))
    a0, a1, a2, a3 = pk
    a("v_lshlrev_b32 %s, 5, %s" % (vr(a0), vr(q)))
    a("v_lshl_add_u32 %s, %s, 4, %s" % (vr(a0), vr(h), vr(a0)))
    a("v_add_u32 %s, s%d, %s" % (vr(a0), sB+1, vr(a0)))
    a("v_cmp_eq_u32 vcc, 0, %s" % vr(h))
    a("v_lshlrev_b32 %s, 4, %s" % (vr(t2), vr(q)))
    a("v_lshlrev_b32 %s, 3, %s" % (vr(t3), vr(q)))
    a("v_add_u32 %s, %d, %s" % (vr(t2), 256*4, vr(t2)))
    a("v_add_u32 %s, %d, %s" % (vr(t3), 384*4, vr(t3)))
    a("v_cndmask_b32 %s, %s, %s, vcc" % (vr(a1), vr(t3), vr(t2)))
    a("v_add_u32 %s, 8, %s" % (vr(t2), vr(t2)))
    a("v_add_u32 %s, 256, %s" % (vr(t3), vr(t3)))
    a("v_cndmask_b32 %s, %s, %s, vcc" % (vr(a2), vr(t3), vr(t2)))
    a("v_add_u32 %s, s%d, %s" % (vr(a1), sB+1, vr(a1)))
    a("v_add_u32 %s, s%d, %s" % (vr(a2), sB+1, vr(a2)))
    a("v_lshlrev_b32 %s, 2, %s" % (vr(a3), vr(q)))
    a("v_lshl_add_u32 %s, %s, 9, %s" % (vr(a3), vr(h), vr(a3)))
    a("v_add_u32 %s, s%d, %s" % (vr(a3), sB+1, vr(a3)))
    a("s_mov_b64 exec, 1")
    a("v_add_f32 %s, s%d, %s" % (vr(D), sD+2, vr(D)))
    a("s_mov_b64 exec, -1")
    a("ds_write_b128 %s, %s" % (vr(a0), vr(D, 4)))
    a("ds_write_b64 %s, %s" % (vr(a1), vr(D+4, 2)))
    a("ds_write_b64 %s, %s" % (vr(a2), vr(D+6, 2)))
    for p in range(4): a("ds_write_b32 %s, %s offset:%d" % (vr(a3), vr(D+8+p), 2048 + 128*p))
    lo, qq = t0, t1
    a("v_and_b32 %s, 15, v0" % vr(lo)); a("v_lshrrev_b32 %s, 4, v0" % vr(qq))
    a("v_lshlrev_b32 %s, 6, %s" % (vr(a0), vr(lo)))
    a("v_lshl_add_u32 %s, %s, 4, %s" % (vr(a0), vr(qq), vr(a0)))
    a("v_add_u32 %s, s%d, %s" % (vr(a0), sB+1, vr(a0)))
    a("v_lshlrev_b32 %s, 5, %s" % (vr(a1), vr(lo)))
    a("v_lshl_add_u32 %s, %s, 3, %s" % (vr(a1), vr(qq), vr(a1)))
    a("v_add_u32 %s, s%d, %s" % (vr(a1), sB+1, vr(a1)))
    a("v_and_b32 %s, 31, v0" % vr(t2)); a("v_lshrrev_b32 %s, 5, v0" % vr(t3))
    a("v_lshlrev_b32 %s, 4, %s" % (vr(a2), vr(t2)))
    a("v_lshl_add_u32 %s, %s, 3, %s" % (vr(a2), vr(t3), vr(a2)))
    a("v_add_u32 %s, s%d, %s" % (vr(a2), sB+1, vr(a2)))
    a("v_lshlrev_b32 %s, 3, v0" % vr(a3))
    a("v_add_u32 %s, s%d, %s" % (vr(a3), sB+1, vr(a3)))
    a("v_mov_b32 %s, s%d" % (vr(vR), sB+1))
    r0 = D; r1 = D+8; r2 = D+12; r3 = fa[0]; rz = fa[1]
    a("s_waitcnt lgkmcnt(0)")
    a("ds_read_b128 %s, %s" % (vr(r0, 4), vr(a0)))
    a("ds_read_b128 %s, %s offset:16" % (vr(r0+4, 4), vr(a0)))
    a("ds_read_b64 %s, %s offset:1024" % (vr(r1, 2), vr(a1)))
    a("ds_read_b64 %s, %s offset:1032" % (vr(r1+2, 2), vr(a1)))
    a("ds_read_b64 %s, %s offset:1536" % (vr(r2, 2), vr(a2)))
    a("ds_read_b32 %s, %s offset:1544" % (vr(r2+2), vr(a2)))
    a("ds_read_b64 %s, %s offset:2048" % (vr(r3, 2), vr(a3)))
    a("ds_read_b32 %s, %s offset:2056" % (vr(r3+2), vr(a3)))
    a("ds_read_b128 %s, %s" % (vr(rz, 4), vr(vR)))
    a("v_mul_u32_u24 %s, %d, %s" % (vr(a0), 4*528, vr(qq)))
    a("v_lshl_add_u32 %s, %s, 3, %s" % (vr(a0), vr(lo), vr(a0)))
    a("v_add_u32 %s, s%d, %s" % (vr(a0), sB, vr(a0)))
    a("v_mul_u32_u24 %s, %d, %s" % (vr(a2), 8*528, vr(t3)))
    a("v_lshl_add_u32 %s, %s, 3, %s" % (vr(a2), vr(t2), vr(a2)))
    a("v_add_u32 %s, s%d, %s" % (vr(a2), sB, vr(a2)))
    a("v_lshlrev_b32 %s, 3, v0" % vr(a3))
    a("v_add_u32 %s, s%d, %s" % (vr(a3), sB, vr(a3)))
    a("v_mul_u32_u24 %s, 528, %s" % (vr(a1), vr(lo)))
    a("v_add_u32 %s, s%d, %s" % (vr(a1), sB, vr(a1)))
    a("v_cmp_eq_u32 vcc, 63, v0")
    a("s_waitcnt lgkmcnt(0)")
    a("s_nop 1")
    a("v_cndmask_b32 %s, %s, %s, vcc" % (vr(r0+6), vr(r0+6), vr(r0+5)))
    a("v_cndmask_b32 %s, %s, %s, vcc" % (vr(r0+5), vr(r0+5), vr(r0+4)))
    a("v_cndmask_b32 %s, %s, %s, vcc" % (vr(r1+3), vr(r1+3), vr(r1+2)))
    W = X + [E1, E8, E256, Y]
    wc = [0]
    def win(adr, off, v3, v2, v1, v0_):
        p = W[wc[0] % len(W)]; wc[0] += 1
        a("v_cvt_pk_bf16_f32 %s, %s, %s" % (vr(p), vr(v3), vr(v2)))
        a("v_cvt_pk_bf16_f32 %s, %s, %s" % (vr(p+1), vr(v1), vr(v0_)))
        a("ds_write_b64 %s, %s offset:%d" % (vr(adr), vr(p, 2), off))
        return p
    for i in range(4): win(a0, i*528 + 8, r0+i+3, r0+i+2, r0+i+1, r0+i)
    K1 = [r1, r1, r1+1, r1+2, r1+2, r1+2, r1+3]
    for i in range(4): win(a0, i*528 + 8 + 128, K1[i+3], K1[i+2], K1[i+1], K1[i])
    K2 = [r2]*3 + [r2+1]*3 + [r2+2]*5
    for i in range(7):
        p = win(a2, i*528 + 8 + 256, K2[i+3], K2[i+2], K2[i+1], K2[i])
    a("ds_write_b64 %s, %s offset:%d" % (vr(a2), vr(p, 2), 7*528 + 8 + 256))
    K3 = [r3]*5 + [r3+1]*7 + [r3+2]*7
    for arr, ph in enumerate((0, 2, 3, 4, 5, 9, 10, 11)):
        win(a3, REGB + arr*544, K3[ph+3], K3[ph+2], K3[ph+1], K3[ph])
    win(a3, REGB + 8, r3+2, r3+2, r3+2, r3+2)
    p = T
    a("v_mov_b32 %s, 0" % vr(rz+3))
    a("v_cvt_pk_bf16_f32 %s, %s, %s" % (vr(t2), vr(rz), vr(rz+3)))
    a("v_cvt_pk_bf16_f32 %s, %s, %s" % (vr(t3), vr(rz+1), vr(rz)))
    a("v_cvt_pk_bf16_f32 %s, %s, %s" % (vr(rz+1), vr(rz+2), vr(rz+1)))
    a("v_cmp_eq_u32 vcc, 13, %s" % vr(lo)); a("s_nop 1")
    a("v_cndmask_b32 %s, 0, %s, vcc" % (vr(p), vr(t2)))
    a("v_cmp_eq_u32 vcc, 14, %s" % vr(lo)); a("s_nop 1")
    a("v_cndmask_b32 %s, %s, %s, vcc" % (vr(p), vr(p), vr(t3)))
    a("v_cmp_eq_u32 vcc, 15, %s" % vr(lo)); a("s_nop 1")
    a("v_cndmask_b32 %s, %s, %s, vcc" % (vr(p), vr(p), vr(rz+1)))
    a("v_cndmask_b32 %s, 0, %s, vcc" % (vr(p+1), vr(t2)))
    a("ds_write_b64 %s, %s" % (vr(a1), vr(p, 2)))
    va.release(m)

def conv_main(a, va, R, sc="", stamps=None, pre=None):
    m = va.mark()
    sD = R["sD"]
    acc = [va(4, 4) for _ in range(8)]
    A = [[va(4, 4) for _ in range(8)] for _ in range(2)]
    B = [[va(4, 4) for _ in range(8)] for _ in range(2)]
    aA = [va(), va()]; aB = [va(), va()]; aX = [va(), va()]; aU = va(); aO = va()
    t0, t1, t2, t3, t4 = va(), va(), va(), va(), va()
    sB = S_T
    a("s_mul_i32 s%d, s%d, %d" % (sB, S_WAVE, PW))
    a("s_mov_b32 s%d, 0x44432100" % (sB+1))
    a("v_and_b32 %s, 15, v0" % vr(t0))
    a("v_lshrrev_b32 %s, 4, v0" % vr(t1))
    a("v_mov_b32 %s, 0x7654" % vr(t4))
    for e in range(2):
        a("v_lshlrev_b32 %s, 3, %s" % (vr(t2), vr(t1)))
        a("v_sub_u32 %s, %s, %s" % (vr(t2), vr(t0), vr(t2)))
        a("v_add_u32 %s, %d, %s" % (vr(t2), 13 - 4*e + 16, vr(t2)))
        a("v_lshrrev_b32 %s, 4, %s" % (vr(t3), vr(t2)))
        a("v_and_b32 %s, 15, %s" % (vr(t2), vr(t2)))
        a("v_mul_u32_u24 %s, 528, %s" % (vr(aA[e]), vr(t2)))
        a("v_lshl_add_u32 %s, %s, 3, %s" % (vr(aA[e]), vr(t3), vr(aA[e])))
        a("v_add_u32 %s, s%d, %s" % (vr(aA[e]), sB, vr(aA[e])))
        a("v_cmp_gt_u32 vcc, 8, %s" % vr(t2))
        a("v_mov_b32 %s, s%d" % (vr(aX[e]), sB+1))
        a("v_and_b32 %s, 7, %s" % (vr(aB[e]), vr(t2)))
        a("v_cndmask_b32 %s, %s, %s, vcc" % (vr(aX[e]), vr(t4), vr(aX[e])))
        a("v_lshlrev_b32 %s, 2, %s" % (vr(aB[e]), vr(aB[e])))
        a("v_bfe_u32 %s, %s, %s, 4" % (vr(aB[e]), vr(aX[e]), vr(aB[e])))
        a("v_mul_u32_u24 %s, 544, %s" % (vr(aB[e]), vr(aB[e])))
        a("v_cmp_lt_u32 vcc, 11, %s" % vr(t2))
        a("v_lshl_add_u32 %s, %s, 3, %s" % (vr(aB[e]), vr(t3), vr(aB[e])))
        a("v_add_u32 %s, s%d, %s" % (vr(aB[e]), sB, vr(aB[e])))
        a("v_cndmask_b32 %s, 0, 8, vcc" % vr(t2))
        a("v_add_u32 %s, %d, %s" % (vr(aB[e]), REGB - 8, vr(aB[e])))
        a("v_add_u32 %s, %s, %s" % (vr(aB[e]), vr(t2), vr(aB[e])))
        a("v_cmp_eq_u32 vcc, 0, %s" % vr(t3))
        a("v_add_u32 %s, 512, %s" % (vr(t2), vr(aA[e])))
        a("s_nop 0")
        a("v_cndmask_b32 %s, %s, %s, vcc" % (vr(aX[e]), vr(aB[e]), vr(t2)))
    a("s_mul_i32 s%d, s%d, %d" % (sB+1, S_WAVE, USTR))
    a("s_add_u32 s%d, s%d, %d" % (sB+1, sB+1, UB))
    a("v_lshlrev_b32 %s, 5, %s" % (vr(t2), vr(t0)))
    a("v_lshl_add_u32 %s, %s, 4, %s" % (vr(aU), vr(t1), vr(t2)))
    a("v_add_u32 %s, s%d, %s" % (vr(aU), sB+1, vr(aU)))
    a("v_lshl_add_u32 %s, %s, 3, %s" % (vr(aO), vr(t1), vr(t2)))
    a("v_add_u32 %s, s%d, %s" % (vr(aO), sB+1, vr(aO)))
    pre()
    a("s_waitcnt lgkmcnt(0)")
    def loads(r):
        b = r & 1; L = []
        for i in range(8):
            t = 8*i + r
            L.append("ds_read_b128 %s, %s offset:%d" % (vr(B[b][i], 4), vr(aU), 512*i + 64*(7-r)))
            for e in range(2):
                if t <= 31: adr, off = aA[e], 16*t
                elif t == 32: adr, off = aX[e], 0
                else: adr, off = aB[e], 16*(t-32)
                L.append("ds_read_b64 %s, %s offset:%d" % (vr(A[b][i]+2*e, 2), vr(adr), off))
        return L
    if stamps: stamps(7)
    for x in loads(0): a(x)
    for r in range(8):
        b = r & 1
        L = loads(r+1) if r < 7 else []
        a("s_waitcnt lgkmcnt(0)")
        li = 0
        for mm in range(8):
            for i in range(mm, 8):
                c = "0" if (r == 0 and mm == 0) else vr(acc[i], 4)
                a("v_mfma_f32_16x16x32_bf16 %s, %s, %s, %s" % (vr(acc[i], 4), vr(A[b][mm], 4), vr(B[b][i-mm], 4), c))
                if li < len(L): a(L[li]); li += 1
    if stamps: stamps(8)
    a("s_nop 7")
    for i in range(8):
        o = B[0][i]
        for k in range(2): a("v_cvt_pk_bf16_f32 %s, %s, %s" % (vr(o+k), vr(acc[i]+2*k), vr(acc[i]+2*k+1)))
        if i == 6: a("s_nop 4")
        a("ds_write_b64 %s, %s offset:%d" % (vr(aO), vr(o, 2), 480 + 512*i))
    a("s_mul_i32 s%d, s%d, %d" % (sB+1, S_WAVE, USTR))
    a("s_add_u32 s%d, s%d, %d" % (sB+1, sB+1, UB + 480))
    a("v_lshlrev_b32 %s, 4, v0" % vr(t2))
    a("v_add_u32 %s, s%d, %s" % (vr(t3), sB+1, vr(t2)))
    a("s_lshl_b32 s%d, s%d, 12" % (sB, sD))
    a("s_add_u32 s%d, s%d, 0x%x" % (sB, sB, WS_AT))
    a("s_waitcnt lgkmcnt(0)")
    for i in range(4): a("ds_read_b128 %s, %s offset:%d" % (vr(B[1][4+i], 4), vr(t3), 1024*i))
    for i in range(4):
        a("s_waitcnt lgkmcnt(%d)" % (3-i))
        a("buffer_store_dwordx4 %s, %s, s[%d:%d], s%d offen offset:%d %s" % (vr(B[1][4+i], 4), vr(t2), SRD_WS, SRD_WS+3, sB, 1024*i, sc))
    va.release(m)
```

```python
from gen_common import *
DBG = os.environ.get('DBG','').split(',')
G1_STAGE = 36864
G1_NB = 4
G1_MISC = G1_STAGE*G1_NB
S_RB, S_CB = 60, 61
S_ROT1 = 62
HST = os.environ.get('HST', 'htouch')

def g1_helper(a, va, stamps=False, hook=None):
    m = va.mark()
    vXo = [va() for _ in range(4)]; vWo = [va() for _ in range(5)]; t0 = va(); t1 = va(); t2 = va()
    sH = S_T; sA = S_T+1; sXs = S_T+2; sWs = S_T+3; sM = S_T+4; sK = S_ROT1
    a("s_sub_u32 s%d, s%d, 4" % (sH, S_WAVE))
    a("s_lshl_b32 s%d, s%d, 7" % (sA, S_RB))
    a("s_lshl_b32 s%d, s%d, 5" % (sM, sH))
    a("s_add_u32 s%d, s%d, s%d" % (sA, sA, sM))
    a("v_lshrrev_b32 %s, 3, v0" % vr(t0))
    a("v_and_b32 %s, 7, v0" % vr(t1))
    for i in range(4):
        a("v_add_u32 %s, %d, %s" % (vr(t2), 8*i, vr(t0)))
        a("v_bfe_u32 %s, %s, 1, 3" % (vr(vXo[i]), vr(t2)))
        a("v_xor_b32 %s, %s, %s" % (vr(vXo[i]), vr(vXo[i]), vr(t1)))
        a("v_lshlrev_b32 %s, 4, %s" % (vr(vXo[i]), vr(vXo[i])))
        a("v_add_u32 %s, s%d, %s" % (vr(t2), sA, vr(t2)))
        a("v_mul_u32_u24 %s, 1280, %s" % (vr(t2), vr(t2)))
        a("v_add_u32 %s, %s, %s" % (vr(vXo[i]), vr(vXo[i]), vr(t2)))
        if i: a("v_subrev_u32 %s, %d, %s" % (vr(vXo[i]), 1024*i, vr(vXo[i])))
    a("s_mul_i32 s%d, s%d, 320" % (sA, sH))
    a("s_mul_i32 s%d, s%d, 320" % (sM, S_CB))
    for i in range(5):
        a("v_add_u32 %s, s%d, v0" % (vr(t0), sA))
        if i: a("v_add_u32 %s, %d, %s" % (vr(t0), 64*i, vr(t0)))
        a("v_mul_u32_u24 %s, 3277, %s" % (vr(t1), vr(t0)))
        a("v_lshrrev_b32 %s, 16, %s" % (vr(t1), vr(t1)))
        a("v_mul_u32_u24 %s, 20, %s" % (vr(t2), vr(t1)))
        a("v_sub_u32 %s, %s, %s" % (vr(t0), vr(t0), vr(t2)))
        a("v_bfe_u32 %s, %s, 3, 1" % (vr(t2), vr(t1)))
        a("v_lshlrev_b32 %s, 1, %s" % (vr(t2), vr(t2)))
        a("v_xor_b32 %s, %s, %s" % (vr(t0), vr(t0), vr(t2)))
        a("v_lshlrev_b32 %s, 4, %s" % (vr(t0), vr(t0)))
        a("v_mul_u32_u24 %s, 3456, %s" % (vr(t1), vr(t1)))
        a("v_add3_u32 %s, %s, %s, s%d" % (vr(vWo[i]), vr(t0), vr(t1), sM))
        if 0 < i < 4: a("v_subrev_u32 %s, %d, %s" % (vr(vWo[i]), 1024*i, vr(vWo[i])))
    a("s_lshl_b32 s%d, s%d, 12" % (sA, sH))
    a("s_mul_i32 s%d, s%d, 5120" % (sM, sH))
    a("s_add_u32 s%d, s%d, 16384" % (sM, sM))
    def issue(st):
        buf = (st % G1_NB)*G1_STAGE
        if st:
            a("s_add_u32 s%d, s%d, 1" % (sK, sK))
            a("s_cmp_eq_u32 s%d, 10" % sK)
            a("s_cselect_b32 s%d, 0, s%d" % (sK, sK))
        a("s_lshl_b32 s%d, s%d, 7" % (sXs, sK))
        a("s_mul_i32 s%d, s%d, %d" % (sWs, sK, 64*3456))
        a("s_add_u32 m0, s%d, %d" % (sA, buf))
        a("s_nop 0")
        for i in range(4):
            a("buffer_load_dwordx4 %s, s[%d:%d], s%d offen offset:%d lds" % (vr(vXo[i]), SRD_X, SRD_X+3, sXs, 1024*i))
        a("s_add_u32 m0, s%d, %d" % (sM, buf))
        a("s_nop 0")
        for i in range(4):
            a("buffer_load_dwordx4 %s, s[%d:%d], s%d offen offset:%d lds" % (vr(vWo[i]), SRD_W, SRD_W+3, sWs, 1024*i))
        a("s_add_u32 m0, s%d, %d" % (sM, buf+4096))
        a("s_nop 0")
        a("buffer_load_dwordx4 %s, s[%d:%d], s%d offen lds" % (vr(vWo[4]), SRD_W, SRD_W+3, sWs))
    if stamps: stamps(1)
    PRE = int(os.environ.get("G1PRE", "2"))
    AHEAD = int(os.environ.get("AHEAD", "3")); AH0 = int(os.environ.get("AH0", "4")); GRB = int(os.environ.get("GRB", "8"))
    q = []
    def iss(st): issue(st); q.extend([st]*9)
    for st in range(PRE): iss(st)
    nxt = PRE
    for b in range(10):
        idx = max(i for i, t in enumerate(q) if t == b)
        a("s_waitcnt vmcnt(%d)" % (len(q) - 1 - idx))
        if stamps and b in (0, 1, 2, 3, 5, 7, 9): stamps({0:2, 1:3, 2:4, 3:5, 5:6, 7:7, 9:8}[b])
        a("s_barrier")
        while nxt <= min(9, b + (AHEAD if b >= AH0 else 2)): iss(nxt); nxt += 1
        if b == GRB:
            a("v_lshlrev_b32 %s, 4, v0" % vr(t0))
            a("s_lshl_b32 s%d, s%d, 10" % (sXs, S_RB)); a("s_add_u32 s%d, s%d, 0x%x" % (sXs, sXs, WS_ST))
            a("s_mul_i32 s%d, s%d, 1280" % (sWs, S_CB)); a("s_add_u32 s%d, s%d, 0x%x" % (sWs, sWs, WS_CS - 1024))
            a("s_lshl_b32 s%d, s%d, 10" % (S_T+5, sH)); a("s_add_u32 s%d, s%d, s%d" % (sWs, sWs, S_T+5))
            a("s_cmp_eq_u32 s%d, 0" % sH); a("s_cselect_b32 s%d, s%d, s%d" % (sWs, sXs, sWs))
            a("s_add_u32 m0, s%d, %d" % (S_T+5, G1_MISC))
            a("s_nop 0")
            a("buffer_load_dwordx4 %s, s[%d:%d], s%d offen sc1 lds" % (vr(t0), SRD_WS, SRD_WS+3, sWs))
            q.append("gr")
        if hook is not None: q.extend(hook(b))
    idx = q.index("gr")
    a("s_waitcnt vmcnt(%d)" % (len(q) - 1 - idx))
    a("s_barrier")

def g1_compute(a, va, stats_wait=None, sc="", stamps=False):
    m = va.mark()
    acc = [[va(4, 4) for t in range(4)] for j in range(5)]
    xf = [[va(4, 4) for t in range(4)] for b in range(2)]
    wf = [[va(4, 4) for j in range(5)] for b in range(2)]
    cs = [[va(4, 4) for k in range(2)] for j in range(5)]
    vN = va()
    vX = [[va() for h in range(2)] for s in range(2)]
    vW = [[[va() for h in range(2)] for s in range(2)] for k in range(3)]
    st = [va(2) for t in range(4)]
    t0, t1, t2, t3 = va(), va(), va(), va()
    sMP, sFP, sOne, sA = S_T, S_T+1, S_T+2, S_T+3
    a("s_lshr_b32 s%d, s%d, 1" % (sMP, S_WAVE))
    a("s_and_b32 s%d, s%d, 1" % (sFP, S_WAVE))
    a("v_and_b32 %s, 15, v0" % vr(t0))
    a("v_lshrrev_b32 %s, 4, v0" % vr(t1))
    a("v_lshrrev_b32 %s, 1, %s" % (vr(t2), vr(t0)))
    a("v_xor_b32 %s, %s, %s" % (vr(t2), vr(t2), vr(t1)))
    a("v_lshlrev_b32 %s, 4, %s" % (vr(t2), vr(t2)))
    a("v_lshl_add_u32 %s, %s, 7, %s" % (vr(t2), vr(t0), vr(t2)))
    a("s_lshl_b32 s%d, s%d, 13" % (sA, sMP))
    a("v_add_u32 %s, s%d, %s" % (vr(t2), sA, vr(t2)))
    a("s_lshl_b32 s%d, s%d, 6" % (sA, sMP))
    a("v_xor_b32 %s, s%d, %s" % (vr(vX[0][0]), sA, vr(t2)))
    a("v_xor_b32 %s, 64, %s" % (vr(vX[0][1]), vr(vX[0][0])))
    for h in range(2): a("v_add_u32 %s, %d, %s" % (vr(vX[1][h]), 2*G1_STAGE, vr(vX[0][h])))
    a("v_lshrrev_b32 %s, 2, %s" % (vr(t2), vr(t0)))
    a("v_lshl_add_u32 %s, %s, 3, %s" % (vr(t2), vr(t1), vr(t2)))
    a("v_mul_u32_u24 %s, 320, %s" % (vr(t2), vr(t2)))
    a("v_and_b32 %s, 3, v0" % vr(t3))
    a("v_lshl_add_u32 %s, %s, 3, %s" % (vr(t2), vr(t3), vr(t2)))
    a("s_mul_i32 s%d, s%d, 10240" % (sA, sMP))
    a("s_add_u32 s%d, s%d, 16384" % (sA, sA))
    a("v_add_u32 %s, s%d, %s" % (vr(t2), sA, vr(t2)))
    a("v_and_b32 %s, 1, %s" % (vr(t3), vr(t1)))
    a("v_lshlrev_b32 %s, 5, %s" % (vr(t3), vr(t3)))
    a("s_mul_i32 s%d, s%d, 192" % (sA, sFP))
    a("v_add3_u32 %s, %s, s%d, %s" % (vr(vW[0][0][0]), vr(t2), sA, vr(t3)))
    a("v_sub_u32 %s, %s, %s" % (vr(vW[1][0][0]), vr(t2), vr(t3)))
    a("v_add_u32 %s, s%d, %s" % (vr(vW[1][0][0]), sA, vr(vW[1][0][0])))
    a("s_lshl_b32 s%d, s%d, 5" % (sA, sFP))
    a("v_xor_b32 %s, s%d, %s" % (vr(t3), sA, vr(t3)))
    a("v_add3_u32 %s, %s, %s, 64" % (vr(vW[2][0][0]), vr(t2), vr(t3)))
    a("v_add_u32 %s, 64, %s" % (vr(vW[2][0][0]), vr(vW[2][0][0])))
    a("s_mul_i32 s%d, s%d, -20480" % (sA, sMP))
    a("s_add_u32 s%d, s%d, 10240" % (sA, sA))
    for k in range(3):
        a("v_add_u32 %s, s%d, %s" % (vr(vW[k][0][1]), sA, vr(vW[k][0][0])))
        for h in range(2): a("v_add_u32 %s, %d, %s" % (vr(vW[k][1][h]), 2*G1_STAGE, vr(vW[k][0][h])))
    sSkip = S_T+6
    a("s_cmp_eq_u32 s%d, 10" % S_CB)
    a("s_cselect_b32 s%d, s%d, 0" % (sSkip, sFP))
    def stats_load():
        L = []
        L.append("s_lshl_b32 s%d, s%d, 1" % (sA, S_RB))
        L.append("s_add_u32 s%d, s%d, s%d" % (sA, sA, sMP))
        L.append("s_lshl_b32 s%d, s%d, 9" % (sA, sA))
        L.append("s_add_u32 s%d, s%d, 0x%x" % (sA, sA, WS_ST))
        L.append("v_lshlrev_b32 %s, 3, %s" % (vr(t2), vr(t0)))
        for t in range(4):
            L.append("buffer_load_dwordx2 %s, %s, s[%d:%d], s%d offen offset:%d sc1" % (vr(st[t], 2), vr(t2), SRD_WS, SRD_WS+3, sA, 128*t))
        L.append("s_mul_i32 s%d, s%d, 1280" % (sA, S_CB))
        L.append("s_add_u32 s%d, s%d, 0x%x" % (sA, sA, WS_CS))
        L.append("s_lshl_b32 s%d, s%d, 7" % (S_T+4, sFP))
        L.append("s_add_u32 s%d, s%d, s%d" % (S_T+4, S_T+4, sA))
        L.append("s_mul_i32 s%d, s%d, 768" % (S_T+5, sFP))
        L.append("s_add_u32 s%d, s%d, s%d" % (sA, sA, S_T+5))
        L.append("s_lshl_b32 s%d, s%d, 8" % (S_T+5, sSkip))
        L.append("s_sub_u32 s%d, s%d, s%d" % (S_T+5, sA, S_T+5))
        L.append("v_lshlrev_b32 %s, 5, %s" % (vr(t3), vr(t1)))
        for j in range(5):
            sb = S_T+4 if j == 4 else (sA if j < 2 else S_T+5)
            for k in range(2):
                L.append("buffer_load_dwordx4 %s, %s, s[%d:%d], s%d offen offset:%d sc1" % (vr(cs[j][k], 4), vr(t3), SRD_WS, SRD_WS+3, sb, 128*j + 16*k))
        return L
    def loads(n):
        s, h = n >> 1, n & 1
        b = n & 1
        buf = s % G1_NB; se = buf >> 1; off = (buf & 1)*G1_STAGE
        L = []
        for t in range(4):
            L.append("ds_read_b128 %s, %s offset:%d" % (vr(xf[b][t], 4), vr(vX[se][h]), off + 2048*t))
        for j in range(5):
            k = 2 if j == 4 else (j & 1)
            o = off + (0 if j == 4 else 32*j)
            for e in range(2):
                L.append("ds_read_b64_tr_b16 %s, %s offset:%d" % (vr(wf[b][j]+2*e, 2), vr(vW[k][se][h]), o + 1280*e))
        return L
    g0, g1, g2, g3 = va(), va(), va(), va()
    a("s_lshl_b32 s%d, s%d, 9" % (sA, sMP))
    a("v_lshlrev_b32 %s, 3, %s" % (vr(g3), vr(t0)))
    a("v_add_u32 %s, s%d, %s" % (vr(g3), sA, vr(g3)))
    a("v_add_u32 %s, %d, %s" % (vr(g3), G1_MISC, vr(g3)))
    a("v_lshlrev_b32 %s, 5, %s" % (vr(t3), vr(t1)))
    a("v_add_u32 %s, %d, %s" % (vr(t3), G1_MISC + 1024, vr(t3)))
    a("s_lshl_b32 s%d, s%d, 7" % (sA, sFP)); a("v_add_u32 %s, s%d, %s" % (vr(g0), sA, vr(t3)))
    a("s_mul_i32 s%d, s%d, 768" % (sA, sFP)); a("v_add_u32 %s, s%d, %s" % (vr(g1), sA, vr(t3)))
    a("s_lshl_b32 s%d, s%d, 8" % (sA, sSkip)); a("v_subrev_u32 %s, s%d, %s" % (vr(g2), sA, vr(g1)))
    GL = ["ds_read_b64 %s, %s offset:%d" % (vr(st[t], 2), vr(g3), 128*t) for t in range(4)]
    for j in (4, 0, 1, 2, 3):
        for k in range(2):
            GL.append("ds_read_b128 %s, %s offset:%d" % (vr(cs[j][k], 4), vr(g0 if j == 4 else (g1 if j < 2 else g2)), 128*j + 16*k))
    if stamps: stamps(1)
    a("s_barrier")
    if stamps: stamps(2)
    for x in loads(0): a(x)
    for n in range(20):
        if stamps and n == 10: stamps(3)
        s, h = n >> 1, n & 1; b = n & 1
        if h == 1 and s+1 <= 9:
            a("s_waitcnt lgkmcnt(0)")
            a("s_barrier")
        if n == 19: a("s_barrier")
        L = loads(n+1) if n+1 < 20 else GL
        if n == 10: nonce_issue(a, vN, t2)
        if 'nods' in DBG: L = []
        if 'notr' in DBG: L = L[:4]
        if 'nox' in DBG: L = L[4:]
        li = 0
        G = []
        a("s_waitcnt lgkmcnt(8)")
        for j in range(5):
            if j == 1: a("s_waitcnt lgkmcnt(%d)" % min(li, 15))
            for t in range(4):
                c = "0" if n == 0 else vr(acc[j][t], 4)
                if 'nomfma' not in DBG: a("v_mfma_f32_16x16x32_bf16 %s, %s, %s, %s" % (vr(acc[j][t], 4), vr(wf[b][j], 4), vr(xf[b][t], 4), c))
                if li < len(L): a(L[li]); li += 1
                for _ in range(2):
                    if G:
                        x = G.pop(0); a(x)
                        if x.startswith("buffer"): break
    if stamps: stamps(4)
    u0, u1, u2 = vX[0][0], vX[0][1], vX[1][0]
    a("s_waitcnt vmcnt(0)")
    nonce_finish(a, vN, t2)
    a("s_waitcnt lgkmcnt(0)")
    retry = a.newlabel("g1_retry"); chk = a.newlabel("g1_chk"); ok = a.newlabel("g1_ok")
    a.label(chk)
    tags_check(a, [st[t]+1 for t in range(4)] + [cs[j][k]+2 for j in range(5) for k in range(2)], t2, t3, retry)
    a("s_branch %s" % ok)
    a.label(retry)
    for x in stats_load(): a(x)
    a("s_waitcnt vmcnt(0)")
    a("s_branch %s" % chk)
    a.label(ok)
    if stamps: stamps(5)
    for t in range(4):
        a("v_and_b32 %s, 0xffff0000, %s" % (vr(st[t]+1), vr(st[t])))
        a("v_rcp_f32 %s, %s" % (vr(st[t]+1), vr(st[t]+1)))
        a("v_lshlrev_b32 %s, 16, %s" % (vr(st[t]), vr(st[t])))
        a("v_mul_f32 %s, -%s, %s" % (vr(st[t]), vr(st[t]), vr(st[t]+1)))
    a("v_lshlrev_b32 %s, 4, v0" % vr(t3))
    sB = S_T+4; sC = S_T+5
    a("s_lshl_b32 s%d, s%d, 1" % (sA, S_RB))
    a("s_add_u32 s%d, s%d, s%d" % (sA, sA, sMP))
    a("s_mul_i32 s%d, s%d, %d" % (sA, sA, 4*H_MT_STRIDE))
    a("s_mul_i32 s%d, s%d, 5120" % (sB, S_CB))
    a("s_add_u32 s%d, s%d, s%d" % (sA, sA, sB))
    a("s_mul_i32 s%d, s%d, 3072" % (sB, sFP))
    a("s_add_u32 s%d, s%d, s%d" % (sB, sB, sA))
    a("s_mul_i32 s%d, s%d, %d" % (sC, sFP, 2*H_MT_STRIDE))
    a("s_add_u32 s%d, s%d, s%d" % (sC, sC, sA))
    a("s_lshl_b32 s%d, s%d, 12" % (S_T+7, sMP))
    a("s_add_u32 s%d, s%d, %d" % (S_T+7, S_T+7, G1_MISC + 4096))
    a("v_add_u32 %s, s%d, %s" % (vr(u0), S_T+7, vr(t3)))
    a("s_lshl_b32 s%d, s%d, 3" % (S_T+7, sFP)); a("v_add_u32 %s, s%d, %s" % (vr(u1), S_T+7, vr(u0)))
    a("s_lshl_b32 s%d, s%d, 11" % (S_T+7, sFP)); a("v_add_u32 %s, s%d, %s" % (vr(u0), S_T+7, vr(u0)))
    pk = [xf[0][0], xf[0][1], xf[0][2], xf[0][3], xf[1][0], xf[1][1]]
    tp = [xf[1][2], xf[1][2]+2, xf[1][3], xf[1][3]+2]
    skip = a.newlabel("g1_skip")
    cnt = 0
    def cvt(j, t, dst):
        for k in range(2):
            T = tp[k + 2*(j & 1)]
            a("v_pk_mul_f32 %s, %s, %s op_sel_hi:[1,0]" % (vr(T, 2), vr(cs[j][k], 2), vr(st[t], 2)))
            a("v_pk_fma_f32 %s, %s, %s, %s op_sel:[0,1,0] op_sel_hi:[1,1,1]" % (vr(T, 2), vr(acc[j][t]+2*k, 2), vr(st[t], 2), vr(T, 2)))
            a("v_cvt_pk_bf16_f32 %s, %s, %s" % (vr(dst+k), vr(T), vr(T+1)))
            a("v_pk_max_i16 %s, %s, 0" % (vr(dst+k), vr(dst+k)))
    for t in range(4):
        d = wf[0][t]
        cvt(4, t, d)
        a("ds_write_b64 %s, %s offset:%d" % (vr(u1), vr(d, 2), 1024*t))
    for pr in (0, 2, 1):
        if pr == 1:
            a("s_cmp_lg_u32 s%d, 0" % (S_T+6))
            a("s_cbranch_scc1 %s" % skip)
        if pr == 2:
            a("s_waitcnt lgkmcnt(0)")
            a("s_barrier")
            for k in range(2): a("ds_read_b128 %s, %s offset:%d" % (vr(wf[1][k], 4), vr(u0), 1024*k))
            for k in range(2):
                a("s_waitcnt lgkmcnt(%d)" % (1-k))
                for x in (["", sc] if HST == "double" else [sc]):
                    a("buffer_store_dwordx4 %s, %s, s[%d:%d], s%d offen offset:2048 %s" % (vr(wf[1][k], 4), vr(t3), SRD_WS, SRD_WS+3, sC, x))
                if k == 0: a("s_add_u32 s%d, s%d, %d" % (sC, sC, H_MT_STRIDE))
            continue
        for t in range(4):
            d = pk[cnt % len(pk)]; cnt += 1
            cvt(2*pr, t, d); cvt(2*pr+1, t, d+2)
            a("s_add_u32 s%d, s%d, %d" % (sA, sB, t*H_MT_STRIDE))
            for x in (["", sc] if HST == "double" else [sc]):
                a("buffer_store_dwordx4 %s, %s, s[%d:%d], s%d offen offset:%d %s" % (vr(d, 4), vr(t3), SRD_WS, SRD_WS+3, sA, 1024*pr, x))
    a.label(skip)
    def touch():
        a("v_mul_u32_u24 %s, %d, %s" % (vr(t2), H_MT_STRIDE, vr(t1)))
        a("v_lshl_add_u32 %s, %s, 7, %s" % (vr(t2), vr(t0), vr(t2)))
        a("buffer_load_dword %s, %s, s[%d:%d], s%d offen %s" % ("v1", vr(t2), SRD_WS, SRD_WS+3, sB, sc))
        a("v_lshrrev_b32 %s, 3, %s" % (vr(t3), vr(t0)))
        a("v_mul_u32_u24 %s, %d, %s" % (vr(t3), H_MT_STRIDE, vr(t3)))
        a("v_and_b32 %s, 7, v0" % vr(t2))
        a("v_lshl_add_u32 %s, %s, 7, %s" % (vr(t2), vr(t2), vr(t3)))
        a("s_sub_u32 s%d, s%d, %d" % (sC, sC, H_MT_STRIDE))
        a("s_mov_b64 exec, 0xffff")
        a("buffer_load_dword %s, %s, s[%d:%d], s%d offen offset:2048 %s" % ("v2", vr(t2), SRD_WS, SRD_WS+3, sC, sc))
        a("s_mov_b64 exec, -1")
    if stamps: stamps(6)
    va.release(m)
    return touch
```

```python
from gen_common import *
DBG = os.environ.get('DBG','').split(',')
G2_STAGE = 24576
G2_NB = 6
G2_OUT = G2_STAGE*G2_NB
S_RB, S_DB = 60, 63
S_ROT2 = 65
DEPTH = int(os.environ.get('DEPTH', '6'))
ROT = 3

def g2_helper_setup(a, va):
    vO = va(); t0 = va(); t1 = va()
    sH = 68; sG = 69; sL = 70; sX = 71
    a("s_sub_u32 s%d, s%d, 4" % (sH, S_WAVE))
    a("v_lshrrev_b32 %s, 3, v0" % vr(t0))
    a("v_bfe_u32 %s, v0, 4, 2" % vr(t1))
    a("v_lshlrev_b32 %s, 1, %s" % (vr(t1), vr(t1)))
    a("v_and_b32 %s, 7, v0" % vr(vO))
    a("v_xor_b32 %s, %s, %s" % (vr(vO), vr(vO), vr(t1)))
    a("v_lshlrev_b32 %s, 4, %s" % (vr(vO), vr(vO)))
    a("v_mul_u32_u24 %s, 1280, %s" % (vr(t0), vr(t0)))
    a("v_add_u32 %s, %s, %s" % (vr(vO), vr(vO), vr(t0)))
    a("s_mul_i32 s%d, s%d, %d" % (sG, sH, 48*1280))
    a("s_lshl_b32 s%d, s%d, 7" % (sX, S_DB))
    a("s_add_u32 s%d, s%d, s%d" % (sG, sG, sX))
    a("s_mul_i32 s%d, s%d, %d" % (sL, sH, 48*128))
    sK = 59
    a("s_mul_i32 s%d, s%d, %d" % (sK, S_ROT2, 192*1280))
    regs = [[va(4, 4) for i in range(6)] for k in range(3)]
    vL = va()
    a("v_lshlrev_b32 %s, 4, v0" % vr(vL))
    a("v_add_u32 %s, s%d, %s" % (vr(vL), sL, vr(vL)))
    def adv(st):
        a("s_add_u32 s%d, s%d, %d" % (sX, sK, st*192*1280))
        a("s_cmp_ge_u32 s%d, %d" % (sX, 1728*1280))
        a("s_cselect_b32 s%d, %d, 0" % (sH, 1728*1280))
        a("s_sub_u32 s%d, s%d, s%d" % (sX, sX, sH))
        a("s_add_u32 s%d, s%d, s%d" % (sX, sX, sG))
    def issue(st):
        buf = ((st + ROT) % G2_NB)*G2_STAGE
        adv(st)
        for i in range(6):
            if st < 6:
                a("s_add_u32 m0, s%d, %d" % (sL, buf + 1024*i))
                a("s_nop 0")
                a("buffer_load_dwordx4 %s, s[%d:%d], s%d offen lds" % (vr(vO), SRD_W2, SRD_W2+3, sX))
            else:
                a("buffer_load_dwordx4 %s, %s, s[%d:%d], s%d offen" % (vr(regs[st-6][i], 4), vr(vO), SRD_W2, SRD_W2+3, sX))
            if i < 5: a("s_add_u32 s%d, s%d, 10240" % (sX, sX))
    def put(st):
        buf = ((st + ROT) % G2_NB)*G2_STAGE
        a("v_add_u32 %s, %d, %s" % (vr(t0), buf, vr(vL)))
        for i in range(6): a("ds_write_b128 %s, %s offset:%d" % (vr(t0), vr(regs[st-6][i], 4), 1024*i))
    return issue, put

def g2_helper_loop(a, put, q, tail):
    def after(st): return len(q) - 1 - max(i for i, t in enumerate(q) if t == ("w2", st))
    PUT0 = int(os.environ.get("PUT0", "3"))
    for b in range(6):
        a("s_waitcnt vmcnt(%d)" % after(b))
        a("s_barrier")
        if PUT0 <= b < PUT0 + 3:
            a("s_waitcnt vmcnt(%d)" % after(b - PUT0 + 6))
            put(b - PUT0 + 6)
    tail()
    a("s_barrier")

def g2_helper_tail(a, va):
    X = [[va(4, 4) for jj in range(2)] for t in range(2)]
    F = [[va(4, 4) for jj in range(2)] for t in range(2)]
    T = [va(2) for _ in range(4)]
    vN, vP, t0, t1, t2 = va(), va(), va(), va(), va()
    sH, sA, sB, sL = 68, 69, 70, 71
    a("s_sub_u32 s%d, s%d, 4" % (sH, S_WAVE))
    nonce_issue(a, vN, t0)
    a("v_and_b32 %s, 15, v0" % vr(t0)); a("v_lshrrev_b32 %s, 4, v0" % vr(t1))
    a("v_mul_u32_u24 %s, 1280, %s" % (vr(t2), vr(t0)))
    a("v_lshl_add_u32 %s, %s, 4, %s" % (vr(t2), vr(t1), vr(t2)))
    a("s_lshl_b32 s%d, s%d, 2" % (sA, S_RB)); a("s_add_u32 s%d, s%d, s%d" % (sA, sA, sH))
    a("s_lshl_b32 s%d, s%d, 6" % (sB, sA))
    a("s_mul_i32 s%d, s%d, %d" % (sA, sA, 32*1280))
    a("s_lshl_b32 s%d, s%d, 7" % (sL, S_DB)); a("s_add_u32 s%d, s%d, s%d" % (sA, sA, sL))
    for t in range(2):
        for jj in range(2):
            a("buffer_load_dwordx4 %s, %s, s[%d:%d], s%d offen offset:%d" % (vr(X[t][jj], 4), vr(t2), SRD_X, SRD_X+3, sA, 64*jj))
        if t == 0: a("s_add_u32 s%d, s%d, %d" % (sA, sA, 16*1280))
    a("s_lshl_b32 s%d, s%d, 18" % (sA, S_DB)); a("s_add_u32 s%d, s%d, s%d" % (sB, sB, sA)); a("s_add_u32 s%d, s%d, 0x%x" % (sB, sB, WS_AT))
    a("s_lshl_b32 s%d, s%d, 10" % (sA, S_DB)); a("s_add_u32 s%d, s%d, 0x%x" % (sA, sA, WS_AF))
    a("s_lshl_b32 s%d, s%d, 12" % (sL, sH)); a("s_add_u32 s%d, s%d, %d" % (sL, sL, G2_OUT))
    a("v_lshrrev_b32 %s, 2, %s" % (vr(t2), vr(t0)))
    a("v_lshl_add_u32 %s, %s, 2, %s" % (vr(t1), vr(t1), vr(t2)))
    a("v_lshlrev_b32 %s, 6, %s" % (vr(t1), vr(t1)))
    a("v_and_b32 %s, 3, v0" % vr(t0))
    a("v_lshl_add_u32 %s, %s, 3, %s" % (vr(t1), vr(t0), vr(t1)))
    a("v_add_u32 %s, s%d, %s" % (vr(t1), sL, vr(t1)))
    a("v_lshrrev_b32 %s, 2, v0" % vr(t2))
    a("v_lshlrev_b32 %s, 12, %s" % (vr(t2), vr(t2)))
    a("v_lshl_add_u32 %s, %s, 4, %s" % (vr(t2), vr(t0), vr(t2)))
    a("s_waitcnt lgkmcnt(0)")
    a("s_barrier")
    sSt, sCn = 58, 59
    a("s_mov_b32 s%d, 0" % sSt); a("s_mov_b32 s%d, %d" % (sCn, 2))
    PS = 0
    a("s_waitcnt vmcnt(0)")
    nonce_finish(a, vN, t0)
    a("s_sub_u32 s%d, s%d, %d" % (sCn, sCn, PS))
    a("v_lshrrev_b32 %s, 3, v0" % vr(vP)); a("v_and_b32 %s, 7, v0" % vr(t0))
    a("v_lshlrev_b32 %s, 2, %s" % (vr(t0), vr(t0))); a("v_lshl_add_u32 %s, %s, 7, %s" % (vr(t0), vr(vP), vr(t0)))
    a.label("a_poll")
    a("buffer_load_dword %s, %s, s[%d:%d], s%d offen sc1" % (vr(vP), vr(t0), SRD_WS, SRD_WS+3, sA))
    a.label("a_next")
    a("s_cmp_eq_u32 s%d, 0" % sCn); a("s_cbranch_scc1 a_nobar")
    a("s_barrier"); a("s_sub_u32 s%d, s%d, 1" % (sCn, sCn))
    a.label("a_nobar")
    a("s_cmp_eq_u32 s%d, 1" % sSt); a("s_cbranch_scc1 a_work")
    a("s_waitcnt vmcnt(0)")
    a("v_cmp_ne_u32 vcc, s%d, %s" % (S_NONCE, vr(vP)))
    a("s_cbranch_vccnz a_poll")
    for i in range(4):
        a("s_add_u32 m0, s%d, %d" % (sL, 1024*i))
        a("s_nop 0")
        a("buffer_load_dwordx4 %s, s[%d:%d], s%d offen sc1 lds" % (vr(t2), SRD_WS, SRD_WS+3, sB))
        if i < 3: a("s_add_u32 s%d, s%d, 0x10000" % (sB, sB))
    a("s_mov_b32 s%d, 1" % sSt)
    a("s_branch a_next")
    a.label("a_work")
    a("v_lshlrev_b32 %s, 4, v0" % vr(t0))
    a("v_add_u32 %s, s%d, %s" % (vr(t0), sL, vr(t0)))
    a("s_waitcnt vmcnt(0)")
    for t in range(2):
        for j in range(4):
            a("ds_read_b64_tr_b16 %s, %s offset:%d" % (vr(F[t][j >> 1] + 2*(j & 1), 2), vr(t1), 1024*j + 32*t))
    a("s_waitcnt lgkmcnt(0)")
    for op in ("v_permlane32_swap_b32", "v_permlane16_swap_b32"):
        a("s_nop 1")
        for t in range(2):
            for jj in range(2):
                for k in range(2): a("%s %s, %s" % (op, vr(F[t][jj]+k), vr(F[t][jj]+2+k)))
    a("s_nop 1")
    c = 0
    for t in range(2):
        for jj in range(2):
            for k in range(4):
                y, s_ = T[2*(c & 1)], T[2*(c & 1)+1]; c += 1
                x = X[t][jj] + k; f = F[t][jj] + k
                a("v_lshlrev_b32 %s, 16, %s" % (vr(s_), vr(x)))
                a("v_and_b32 %s, 0xffff0000, %s" % (vr(s_+1), vr(x)))
                a("v_lshlrev_b32 %s, 16, %s" % (vr(y), vr(f)))
                a("v_and_b32 %s, 0xffff0000, %s" % (vr(y+1), vr(f)))
                a("v_pk_add_f32 %s, %s, %s" % (vr(y, 2), vr(y, 2), vr(s_, 2)))
                a("v_cvt_pk_bf16_f32 %s, %s, %s" % (vr(f), vr(y), vr(y+1)))
            a("ds_write_b128 %s, %s offset:%d" % (vr(t0), vr(F[t][jj], 4), 1024*(2*t+jj)))
    a.label("a_rest")
    a("s_cmp_eq_u32 s%d, 0" % sCn); a("s_cbranch_scc1 a_done")
    a("s_barrier"); a("s_sub_u32 s%d, s%d, 1" % (sCn, sCn))
    a("s_branch a_rest")
    a.label("a_done")
    a("s_waitcnt lgkmcnt(0)")

def g2_compute(a, va, h_wait=None, xa_poll=None, sc="", stamps=None):
    m = va.mark()
    acc4 = [[va(4, 4) for j in range(4)] for t in range(4)]
    wf = [[va(4, 4) for j in range(4)] for b in range(2)]
    hr = [[va(4, 4) for t in range(4)] for d in range(DEPTH)]
    xa = [[va(4, 4) for jj in range(2)] for t in range(2)]
    vW = [[va() for j in range(4)] for k in range(3)]
    vHt = [va() for t in range(4)]
    vH = va(); vXA = va(); t0, t1, t2, t3 = va(), va(), va(), va()
    vP = va()
    sMH, sKH = S_T, S_T+1; sA = S_T+2; sXA = S_T+3; sB0, sK, sHo, sWF = S_T+5, S_T+6, S_T+7, 68
    a("s_and_b32 s%d, s%d, 1" % (sMH, S_WAVE))
    a("s_lshr_b32 s%d, s%d, 1" % (sKH, S_WAVE))
    a("s_lshl_b32 s%d, s%d, 1" % (sWF, sMH)); a("s_add_u32 s%d, s%d, s%d" % (sWF, sWF, sKH))
    a("v_and_b32 %s, 15, v0" % vr(t0))
    a("v_lshrrev_b32 %s, 4, v0" % vr(t1))
    a("v_lshrrev_b32 %s, 2, %s" % (vr(t2), vr(t0)))
    a("v_lshl_add_u32 %s, %s, 2, %s" % (vr(t2), vr(t1), vr(t2)))
    a("v_bfe_u32 %s, %s, 1, 2" % (vr(t3), vr(t2)))
    a("v_lshlrev_b32 %s, 7, %s" % (vr(t2), vr(t2)))
    a("v_and_b32 %s, 3, v0" % vr(vH))
    a("v_lshl_add_u32 %s, %s, 3, %s" % (vr(t2), vr(vH), vr(t2)))
    a("s_lshl_b32 s%d, s%d, 12" % (sA, sKH))
    a("v_add_u32 %s, s%d, %s" % (vr(t2), sA, vr(t2)))
    for j in range(4):
        a("v_xor_b32 %s, %d, %s" % (vr(vH), j, vr(t3)))
        a("v_lshl_add_u32 %s, %s, 5, %s" % (vr(vW[0][j]), vr(vH), vr(t2)))
        for k in (1, 2): a("v_add_u32 %s, %d, %s" % (vr(vW[k][j]), 2*k*G2_STAGE, vr(vW[0][j])))
    a("v_lshlrev_b32 %s, 4, v0" % vr(vH))
    a("s_lshl_b32 s%d, s%d, 10" % (sA, sKH))
    a("v_add_u32 %s, s%d, %s" % (vr(vHt[0]), sA, vr(vH)))
    for t in range(1, 4): a("v_add_u32 %s, %d, %s" % (vr(vHt[t]), t*H_MT_STRIDE, vr(vHt[0])))
    a("s_lshl_b32 s%d, s%d, 1" % (sA, S_RB))
    a("s_add_u32 s%d, s%d, s%d" % (sA, sA, sMH))
    a("s_mul_i32 s%d, s%d, %d" % (sB0, sA, 4*H_MT_STRIDE))
    a("s_mul_i32 s%d, s%d, 6144" % (sK, S_ROT2))
    a("s_add_u32 s%d, s%d, s%d" % (sHo, sB0, sK))
    a("s_lshl_b32 s%d, s%d, 12" % (sA, sWF))
    a("s_add_u32 s%d, s%d, %d" % (sA, sA, G2_OUT))
    a("v_add_u32 %s, s%d, %s" % (vr(vXA), sA, vr(vH)))
    q = []
    NS = 27
    def hload(n):
        L = []
        if n:
            L.append("s_add_u32 s%d, s%d, 2048" % (sK, sK))
            if n % 3 == 0:
                L.append("s_cmp_eq_u32 s%d, %d" % (sK, H_MT_STRIDE))
                L.append("s_cselect_b32 s%d, 0, s%d" % (sK, sK))
            L.append("s_add_u32 s%d, s%d, s%d" % (sHo, sB0, sK))
        for t in range(4):
            L.append(("buffer_load_dwordx4 %s, %s, s[%d:%d], s%d offen %s" % (vr(hr[n % DEPTH][t], 4), vr(vHt[t]), SRD_WS, SRD_WS+3, sHo, sc), ("h", n, t)))
        return L
    def emit(x):
        if isinstance(x, tuple): a(x[0]); q.append(x[1])
        else: a(x)
    def wait_for(tag):
        idx = max(i for i, tg in enumerate(q) if tg == tag)
        return len(q) - 1 - idx
    def wloads(n):
        st, s = divmod(n, 3); buf = (st + ROT) % G2_NB
        L = []
        for j in range(4):
            for e in range(2):
                L.append("ds_read_b64_tr_b16 %s, %s offset:%d" % (vr(wf[n & 1][j]+2*e, 2), vr(vW[buf >> 1][j]), (buf & 1)*G2_STAGE + 8192*s + 2048*e))
        return L
    a("s_barrier")
    for x in wloads(0): a(x)
    if h_wait is not None: h_wait(vP, t2)
    if stamps: stamps(1)
    RAMP = int(os.environ.get("RAMP", "4"))
    for n in range(RAMP):
        for x in hload(n): emit(x)
    nxt = RAMP
    N_XA = NS - DEPTH + 1; N_POLL = N_XA - DEPTH
    for n in range(NS):
        b = n & 1
        if stamps and n in (1, 4, 7, 10, 14, 20): stamps({1:2, 4:3, 7:4, 10:5, 14:6, 20:7}[n])
        a("s_waitcnt lgkmcnt(0)")
        if (n + 1) % 3 == 0 and n + 1 < NS: a("s_barrier")
        L = wloads(n+1) if n + 1 < NS else []
        G = []
        for _ in range(2):
            if nxt <= min(n - 1 + DEPTH, NS - 1): G += hload(nxt); nxt += 1
        k = 0
        for j in range(4):
            for t in range(4):
                if j == 0: a("s_waitcnt vmcnt(%d)" % wait_for(("h", n, t)))
                c = "0" if n == 0 else vr(acc4[t][j], 4)
                a("v_mfma_f32_16x16x32_bf16 %s, %s, %s, %s" % (vr(acc4[t][j], 4), vr(wf[b][j], 4), vr(hr[n % DEPTH][t], 4), c))
                if k < len(L): a(L[k])
                if k >= 8 or not L or len(G) > 14:
                    for _ in range(2):
                        if G:
                            x = G.pop(0); emit(x)
                            if isinstance(x, tuple): break
                k += 1
        for x in G: emit(x)
    if stamps: stamps(8)
    XB = 3*G2_STAGE
    a("s_lshl_b32 s%d, s%d, 13" % (sA, S_WAVE))
    a("s_add_u32 s%d, s%d, %d" % (sA, sA, XB))
    a("v_add_u32 %s, s%d, %s" % (vr(t2), sA, vr(vH)))
    a("v_xor_b32 %s, %d, %s" % (vr(vHt[0]), 2 << 13, vr(vH)))
    a("s_lshl_b32 s%d, s%d, 13" % (sA, S_WAVE))
    a("v_xor_b32 %s, s%d, %s" % (vr(vHt[0]), sA, vr(vHt[0])))
    a("v_add_u32 %s, %d, %s" % (vr(vHt[0]), XB, vr(vHt[0])))
    acc = [[hr[0][0] + 16*t + 4*j for j in range(4)] for t in range(2)]
    k1 = a.newlabel("g2_k1"); kd = a.newlabel("g2_kd")
    a("s_cmp_lg_u32 s%d, 0" % sKH); a("s_cbranch_scc1 %s" % k1)
    for kh in range(2):
        if kh: a.label(k1)
        for t in range(2):
            for j in range(4):
                a("ds_write_b128 %s, %s offset:%d" % (vr(t2), vr(acc4[2*(1-kh)+t][j], 4), 4096*t + 1024*j))
        a("s_waitcnt lgkmcnt(0)")
        a("s_barrier")
        for t in range(2):
            for j in range(4):
                a("ds_read_b128 %s, %s offset:%d" % (vr(acc[t][j], 4), vr(vHt[0]), 4096*t + 1024*j))
        for t in range(2):
            for jj in range(2): a("ds_read_b128 %s, %s offset:%d" % (vr(xa[t][jj], 4), vr(vXA), 1024*(2*t+jj)))
        for t in range(2):
            for j in range(4):
                a("s_waitcnt lgkmcnt(%d)" % (11 - 4*t - j))
                for k in range(2):
                    a("v_pk_add_f32 %s, %s, %s" % (vr(acc[t][j]+2*k, 2), vr(acc[t][j]+2*k, 2), vr(acc4[2*kh+t][j]+2*k, 2)))
        if kh == 0: a("s_branch %s" % kd)
    a.label(kd)
    a("v_mul_u32_u24 %s, 1280, %s" % (vr(t2), vr(t0)))
    a("v_lshl_add_u32 %s, %s, 4, %s" % (vr(t2), vr(t1), vr(t2)))
    a("s_lshl_b32 s%d, s%d, 2" % (sA, S_RB))
    a("s_add_u32 s%d, s%d, s%d" % (sA, sA, sWF))
    a("s_mul_i32 s%d, s%d, %d" % (sA, sA, 32*1280))
    a("s_lshl_b32 s%d, s%d, 7" % (sXA, S_DB))
    a("s_add_u32 s%d, s%d, s%d" % (sA, sA, sXA))
    T = [wf[0][0], wf[0][0]+2, wf[0][1], wf[0][1]+2]
    F = [[wf[1][2*t+jj] for jj in range(2)] for t in range(2)]
    for t in range(2):
        for jj in range(2):
            for e in range(2):
                for k in range(2):
                    a("v_cvt_pk_bf16_f32 %s, %s, %s" % (vr(F[t][jj]+2*e+k), vr(acc[t][2*jj+e]+2*k), vr(acc[t][2*jj+e]+2*k+1)))
    for op in ("v_permlane32_swap_b32", "v_permlane16_swap_b32"):
        a("s_nop 1")
        for t in range(2):
            for jj in range(2):
                for k in range(2): a("%s %s, %s" % (op, vr(F[t][jj]+k), vr(F[t][jj]+2+k)))
    a("s_waitcnt lgkmcnt(0)")
    c = 0
    for t in range(2):
        for jj in range(2):
            for k in range(4):
                y, s_ = T[2*(c & 1)], T[2*(c & 1)+1]; c += 1
                x = xa[t][jj] + k; f = F[t][jj] + k
                a("v_lshlrev_b32 %s, 16, %s" % (vr(s_), vr(x)))
                a("v_and_b32 %s, 0xffff0000, %s" % (vr(s_+1), vr(x)))
                a("v_lshlrev_b32 %s, 16, %s" % (vr(y), vr(f)))
                a("v_and_b32 %s, 0xffff0000, %s" % (vr(y+1), vr(f)))
                a("v_pk_add_f32 %s, %s, %s" % (vr(y, 2), vr(y, 2), vr(s_, 2)))
                a("v_cvt_pk_bf16_f32 %s, %s, %s" % (vr(f), vr(y), vr(y+1)))
            a("buffer_store_dwordx4 %s, %s, s[%d:%d], s%d offen offset:%d" % (vr(F[t][jj], 4), vr(t2), SRD_O, SRD_O+3, sA, 64*jj))
        if t == 0: a("s_add_u32 s%d, s%d, %d" % (sA, sA, 16*1280))
    va.release(m)
```

```python
import sys
from gen_common import *
import role_g1, role_g2, role_conv
from role_g1 import S_RB, S_CB, S_ROT1
from role_g2 import S_DB, S_ROT2
from role_conv import *
KN = "parallel_sum__ssm_conv_s4d__dense_activation_relu__prompt"
hdr = open("cdna_kernels/%s.s.ref" % KN).read().split("; Override launch")[0]
a = Asm()
S = Stamps(a, STAMPS, 0)
S2 = Stamps(a, STAMPS, 1)
a("s_cmp_ge_u32 s2, 256"); a("s_cbranch_scc1 k_end")
S.clear(); S(0)
load_args(a); wave_id(a, 1)
a("s_cmp_ge_u32 s2, 80"); a("s_cbranch_scc1 role_g")
hi = 0
va = VAlloc()
a("s_and_b32 s%d, s2, 7" % (S_T+2)); a("s_lshr_b32 s%d, s2, 3" % (S_T+3))
a("s_mul_i32 s%d, s%d, 10" % (S_CW, S_T+2)); a("s_add_u32 s%d, s%d, s%d" % (S_CW, S_CW, S_T+3))
a("s_or_b32 s%d, s2, s%d" % (S_T, S_WAVE))
a("s_memrealtime s[64:65]")
a("s_waitcnt lgkmcnt(0)")
a("s_cmp_lg_u32 s%d, 0" % S_T); a("s_cbranch_scc1 no_pub")
a("s_or_b32 s64, s64, 1")
a("v_mov_b32 v1, s64"); a("v_mov_b32 v2, 0")
a("s_mov_b64 exec, 1")
a("global_store_dword v2, v1, s[%d:%d] sc1" % (P_DBG, P_DBG+1))
a("s_mov_b64 exec, -1")
a.label("no_pub")
if os.environ.get("TW"):
    for i, p in enumerate((P_U, P_LOGA, P_AIM, P_CRE, P_CIM, P_W1, P_W2)): a("s_load_dword s%d, s[%d:%d], 0" % (69, p, p+1))
    for off in (WS_ST, WS_UT, WS_UT + 0x200000, WS_FL, WS_AT + 0x100000): a("s_load_dword s%d, s[%d:%d], 0x%x" % (69, P_WS, P_WS+1, off & 0xfffff) if off < 0x100000 else "s_mov_b32 s70, 0x%x\ns_load_dword s69, s[%d:%d], s70" % (off, P_WS, P_WS+1))
srd(a, SRD_X, P_U, X_BYTES); srd(a, SRD_WS, P_WS, 32 << 20); srd(a, SRD_W, P_W1, W_BYTES); srd(a, SRD_W2, P_W2, W_BYTES)
vN, vZ, vP = va(), va(), va()
a("s_and_b32 s%d, s2, 7" % (S_T+2)); a("s_lshr_b32 s%d, s2, 3" % (S_T+3))
a("s_lshl_b32 s64, s%d, 3" % (S_T+2)); a("s_add_u32 s64, s64, s%d" % (S_T+3)); a("s_lshl_b32 s64, s64, 3"); a("s_add_u32 s64, s64, s%d" % S_WAVE); a("s_lshl_b32 s64, s64, 2")
a("s_cmp_ge_u32 s2, 64"); a("s_cselect_b32 s64, 4096, s64")
par = [va() for _ in range(5)]
csr = va.mark(); va(36)
m0 = va.mark()
p1, p2 = producer_issue(a, va, 64)
m1 = va.mark(); va.release(par[0])
R = conv_issue_loads(a, va)
va.release(m1)
a("s_lshr_b32 s65, s%d, 1" % (S_T+2)); a("s_mul_i32 s65, s65, 7"); a("s_add_u32 s65, s65, s%d" % (S_T+3)); a("s_sub_u32 s65, s65, 3")
a("s_cmp_lt_u32 s%d, 3" % (S_T+3)); a("s_cselect_b32 s65, 99, s65")
a("s_cmp_lt_u32 s65, 27"); a("s_cselect_b32 s68, 1, 0")
a("s_sub_u32 s%d, 53, s65" % (S_T+4)); a("s_bitcmp1_b32 s2, 0"); a("s_cselect_b32 s65, s%d, s65" % (S_T+4))
a("s_cmp_eq_u32 s68, 0"); a("s_cselect_b32 s65, 0x10000, s65")
z = va(2); a("v_mov_b32 v%d, %d" % (z, XO + 1024)); a("v_mov_b32 v%d, 0" % (z+1))
a("ds_write_b32 v%d, v%d" % (z, z+1))
a("s_waitcnt vmcnt(4)")
S(1)
nonce_issue(a, vN, vZ)
m1 = va.mark(); va.release(csr)
cs1 = colsum_issue(a, va, 65)
assert va.mark() <= m0
va.release(m1)
def ncb():
    a("s_waitcnt vmcnt(5)")
    nonce_finish(a, vN, vZ)
a("s_cmp_ge_u32 s2, 64"); a("s_cbranch_scc1 no_p1")
p1(ncb)
S(2)
a("s_waitcnt lgkmcnt(0)")
a("s_barrier")
p2()
S(3)
a("s_branch p1_done")
a.label("no_p1")
ncb()
a("s_waitcnt lgkmcnt(0)")
a("s_barrier")
a.label("p1_done")
va.release(m0)
S(4)
a("s_mul_i32 s69, s%d, %d" % (S_WAVE, USTR)); a("s_add_u32 s69, s69, %d" % UB)
a("v_lshlrev_b32 v%d, 3, v0" % vZ); a("v_add_u32 v%d, s69, v%d" % (vZ, vZ))
z = va(2); a("v_mov_b32 v%d, 0" % z); a("v_mov_b32 v%d, 0" % (z+1))
a("s_mov_b32 exec_hi, 0x0fffffff")
a("ds_write_b64 v%d, v[%d:%d]" % (vZ, z, z+1))
a("s_mov_b32 exec_hi, -1")
va.release(m0)
FQ = os.environ.get("FQ", "16"); PQ = os.environ.get("PQ", "start"); CQ = os.environ.get("CQ", "e8")
def hooks(ps, w, t0, t1):
    if ps == 0 and str(w) == FQ:
        a("s_waitcnt vmcnt(0)")
        a("s_cmp_ge_u32 s2, 64"); a("s_cbranch_scc1 no_uf")
        a("s_lshl_b32 s69, s%d, 3" % S_WAVE); a("s_and_b32 s70, s2, 7"); a("s_add_u32 s69, s69, s70"); a("s_lshl_b32 s69, s69, 7")
        a("s_lshr_b32 s70, s2, 3"); a("s_lshl_b32 s70, s70, 2")
        a("s_add_u32 s69, s69, s70"); a("s_add_u32 s69, s69, 0x%x" % WS_UF)
        flag_store(a, 69, t0, t1)
        a.label("no_uf")
        a("s_cmp_eq_u32 s68, 0"); a("s_cbranch_scc1 no_cs1")
        cs1()
        a.label("no_cs1")
        S(5)
    if ps == 1 and str(w) == PQ:
        a("s_and_b32 s69, s2, 7"); a("s_lshl_b32 s69, s69, 10"); a("s_add_u32 s69, s69, 0x%x" % WS_UF)
        a("v_lshrrev_b32 %s, 3, v0" % vr(t0)); a("v_and_b32 v%d, 7, v0" % vZ)
        a("v_lshlrev_b32 v%d, 2, v%d" % (vZ, vZ)); a("v_lshl_add_u32 v%d, %s, 7, v%d" % (vZ, vr(t0), vZ))
        a("buffer_load_dword v%d, v%d, s[%d:%d], s69 offen sc1" % (vP, vZ, SRD_WS, SRD_WS+3))
    if ps == 1 and str(w) == CQ:
        a("s_waitcnt vmcnt(0)")
        a("v_cmp_ne_u32 vcc, s%d, v%d" % (S_NONCE, vP))
        a("s_mov_b32 s71, 0")
        a("s_cbranch_vccnz u_later")
        u_dma(t0)
        a("s_mov_b32 s71, 1")
        a.label("u_later")
        if TCH == "cq": w2_touch(t0, t1)
TCH = os.environ.get("TCH", "main")
def w2_touch(t0, t1):
    sk = a.newlabel("no_tch")
    a("s_cmp_ge_u32 s%d, 4" % S_WAVE); a("s_cbranch_scc1 %s" % sk)
    a("s_lshr_b32 s63, s2, 3"); a("s_lshl_b32 s63, s63, 2"); a("s_add_u32 s63, s63, s%d" % S_WAVE); a("s_mul_i32 s63, s63, 216")
    if os.environ.get("XLOC"):
        a("s_lshl_b32 s63, s63, 8")
        a("v_lshlrev_b32 %s, 7, v0" % vr(t0))
        a("s_mov_b32 exec_hi, 0x003fffff")
        for i in range(8):
            a("buffer_load_dword v%d, %s, s[%d:%d], s63 offen" % (par[0], vr(t0), SRD_W2, SRD_W2+3))
            a("s_add_u32 s63, s63, %d" % (54*128))
    a("s_and_b32 s70, s2, 1"); a("s_mul_i32 s70, s70, 640")
    a("s_mov_b32 exec_hi, 0x003fffff")
    for i in range(0 if os.environ.get("XLOC") else 4):
        a("v_add_u32 %s, s63, v0" % vr(t0))
        if i: a("v_add_u32 %s, %d, %s" % (vr(t0), 54*i, vr(t0)))
        a("v_mul_u32_u24 %s, 52429, %s" % (vr(t1), vr(t0)))
        a("v_lshrrev_b32 %s, 18, %s" % (vr(t1), vr(t1)))
        a("v_mul_u32_u24 %s, 640, %s" % (vr(t1), vr(t1)))
        a("v_lshl_add_u32 %s, %s, 7, %s" % (vr(t0), vr(t0), vr(t1)))
        a("buffer_load_dword v%d, %s, s[%d:%d], s70 offen" % (par[0], vr(t0), SRD_W2, SRD_W2+3))
    a("s_mov_b32 exec_hi, -1")
    a.label(sk)
def u_dma(t0):
    a("s_mul_i32 s70, s%d, %d" % (S_WAVE, USTR)); a("s_add_u32 m0, s70, %d" % (UB + 480))
    a("s_lshl_b32 s70, s%d, 6" % R["sD"]); a("s_add_u32 s70, s70, 0x%x" % WS_UT)
    a("v_lshrrev_b32 %s, 2, v0" % vr(t0)); a("v_mul_u32_u24 %s, %d, %s" % (vr(t0), UT_PS, vr(t0)))
    a("v_and_b32 v%d, 3, v0" % vP); a("v_lshl_add_u32 %s, v%d, 4, %s" % (vr(t0), vP, vr(t0)))
    for i in range(4):
        a("buffer_load_dwordx4 %s, s[%d:%d], s70 offen offset:%d sc1 lds" % (vr(t0), SRD_WS, SRD_WS+3, 1024*i))
        if i < 3: a("s_add_u32 s70, s70, %d" % (16*UT_PS - 1024))
conv_kgen(a, va, R, None, hooks=hooks)
va.release(m0)
S(6)
a("s_cmp_eq_u32 s71, 1"); a("s_cbranch_scc1 u_done")
a.label("u_poll")
a("buffer_load_dword v%d, v%d, s[%d:%d], s69 offen sc1" % (vP, vZ, SRD_WS, SRD_WS+3))
a("s_waitcnt vmcnt(0)")
a("v_cmp_ne_u32 vcc, s%d, v%d" % (S_NONCE, vP))
a("s_cbranch_vccnz u_poll")
u_dma(vN)
a("s_waitcnt vmcnt(0)")
a.label("u_done")
def pre():
    if TCH == "cq":
        a("s_cmp_ge_u32 s%d, 4" % S_WAVE); a("s_cbranch_scc1 u_w0")
        a("s_waitcnt vmcnt(%d)" % (8 if os.environ.get("XLOC") else 4)); a("s_branch u_w1")
        a.label("u_w0"); a("s_waitcnt vmcnt(0)"); a.label("u_w1")
    else:
        a("s_waitcnt vmcnt(0)")
        if TCH == "main": w2_touch(vN, vZ)
conv_main(a, va, R, sc="sc1", stamps=S, pre=pre)
a("s_lshl_b32 s%d, s%d, 7" % (S_T, S_CW)); a("s_lshl_b32 s%d, s%d, 2" % (S_T+1, S_WAVE))
a("s_add_u32 s%d, s%d, s%d" % (S_T, S_T, S_T+1)); a("s_add_u32 s%d, s%d, 0x%x" % (S_T, S_T, WS_AF))
a("s_waitcnt vmcnt(0)")
flag_store(a, S_T, 1, 2)
S.flush({0:1, 4:3, 8:5, 9:6})
a("s_endpgm")
hi = max(hi, va.hi)
a.label("role_g")
sI = 64
a("s_sub_u32 s%d, s2, 80" % S_T)
a("s_lshr_b32 s%d, s%d, 3" % (sI, S_T))
if not os.environ.get('XLOC'):
    a("s_and_b32 s%d, s%d, 1" % (S_T+1, S_T))
    a("s_bfe_u32 s%d, s%d, 0x20001" % (S_T+2, S_T))
    a("s_lshl_b32 s%d, s%d, 2" % (S_T+2, S_T+2))
    a("s_lshr_b32 s%d, s%d, 2" % (S_T+3, sI))
    a("s_mul_i32 s%d, s%d, 6" % (S_CB, S_T+1)); a("s_add_u32 s%d, s%d, s%d" % (S_CB, S_CB, S_T+3))
    a("s_mul_i32 s%d, s%d, 5" % (S_DB, S_T+1)); a("s_add_u32 s%d, s%d, s%d" % (S_DB, S_DB, S_T+3))
    a("s_and_b32 s%d, s%d, 3" % (S_RB, sI))
    a("s_lshl_b32 s%d, s%d, 1" % (S_T+1, S_T+1)); a("s_add_u32 s%d, s%d, s%d" % (S_T+1, S_T+1, S_RB))
    a("s_cmp_ge_u32 s%d, 20" % sI)
    a("s_cselect_b32 s%d, 5, s%d" % (S_CB, S_CB))
    a("s_cselect_b32 s%d, s%d, s%d" % (S_RB, S_T+1, S_RB))
    a("s_mul_i32 s%d, s%d, 5" % (S_T+4, S_RB)); a("s_lshr_b32 s%d, s%d, 1" % (S_T+4, S_T+4))
    a("s_and_b32 s%d, s%d, 1" % (S_T+5, sI)); a("s_mul_i32 s%d, s%d, 5" % (S_T+5, S_T+5)); a("s_add_u32 s%d, s%d, %d" % (S_T+5, S_T+5, int(os.environ.get("XO5", "1"))))
    a("s_lshl_b32 s%d, s%d, 1" % (S_T+3, S_T+3)); a("s_add_u32 s%d, s%d, s%d" % (S_T+4, S_T+4, S_T+3))
    a("s_cmp_ge_u32 s%d, 20" % sI); a("s_cselect_b32 s%d, s%d, s%d" % (S_T+4, S_T+5, S_T+4))
    a("s_lshr_b32 s%d, s%d, 2" % (S_T+5, S_T+2)); a("s_add_u32 s%d, s%d, s%d" % (S_T+4, S_T+4, S_T+5))
    a("s_and_b32 s%d, s2, 1" % (S_T+5)); a("s_add_u32 s%d, s%d, s%d" % (S_T+4, S_T+4, S_T+5))
    if os.environ.get("NOROT"): a("s_mov_b32 s%d, 0" % (S_T+4))
    for dst, md in ((S_ROT1, 10), (S_ROT2, 9)):
        a("s_sub_u32 s%d, s%d, %d" % (S_T+3, S_T+4, md)); a("s_cselect_b32 s%d, s%d, s%d" % (dst, S_T+4, S_T+3))
        a("s_sub_u32 s%d, s%d, %d" % (S_T+3, dst, md)); a("s_cselect_b32 s%d, s%d, s%d" % (dst, dst, S_T+3))
    a("s_add_u32 s%d, s%d, s%d" % (S_RB, S_RB, S_T+2))
else:
    a("s_and_b32 s%d, s%d, 7" % (S_T+2, S_T))
    a("s_and_b32 s%d, s%d, 1" % (S_T+1, sI))
    a("s_lshl_b32 s%d, s%d, 1" % (S_RB, S_T+2)); a("s_add_u32 s%d, s%d, s%d" % (S_RB, S_RB, S_T+1))
    a("s_lshr_b32 s%d, s%d, 1" % (S_CB, sI)); a("s_mov_b32 s%d, s%d" % (S_DB, S_CB))
    a("s_mul_i32 s%d, s%d, 5" % (S_T+4, S_T+1)); a("s_add_u32 s%d, s%d, s%d" % (S_T+4, S_T+4, S_CB))
    a("s_mul_i32 s%d, s%d, %d" % (S_T+2, S_T+2, int(os.environ.get("XR", "1")))); a("s_add_u32 s%d, s%d, s%d" % (S_T+4, S_T+4, S_T+2))
    for dst, md in ((S_ROT1, 10), (S_ROT2, 9)):
        a("s_mov_b32 s%d, s%d" % (dst, S_T+4))
        for _ in range(4):
            a("s_sub_u32 s%d, s%d, %d" % (S_T+3, dst, md)); a("s_cselect_b32 s%d, s%d, s%d" % (dst, dst, S_T+3))
a("s_waitcnt lgkmcnt(0)")
srd(a, SRD_X, P_U, X_BYTES); srd(a, SRD_W, P_W1, W_BYTES); srd(a, SRD_WS, P_WS, 32 << 20)
srd(a, SRD_W2, P_W2, W_BYTES); srd(a, SRD_O, P_OUT, X_BYTES)
a("s_cmp_ge_u32 s%d, 4" % S_WAVE); a("s_cbranch_scc1 g_help")
va = VAlloc()
if os.environ.get("TWG"):
    a("v_mov_b32 v1, 0")
    a("s_mul_i32 s%d, s%d, %d" % (S_T, S_RB, 8*H_MT_STRIDE))
    a("buffer_load_dword v2, v1, s[%d:%d], s%d offen" % (SRD_WS, SRD_WS+3, S_T))
    a("s_add_u32 s%d, s%d, %d" % (S_T, S_T, 8*H_MT_STRIDE - 4))
    a("buffer_load_dword v2, v1, s[%d:%d], s%d offen" % (SRD_WS, SRD_WS+3, S_T))
    a("s_mov_b32 s%d, 0x%x" % (S_T, WS_FL + 0x50000))
    a("buffer_load_dword v2, v1, s[%d:%d], s%d offen" % (SRD_WS, SRD_WS+3, S_T))
    a("s_lshl_b32 s%d, s%d, 18" % (S_T, S_DB)); a("s_add_u32 s%d, s%d, 0x%x" % (S_T, S_T, WS_AT))
    a("buffer_load_dword v2, v1, s[%d:%d], s%d offen" % (SRD_WS, SRD_WS+3, S_T))
    a("s_mul_i32 s%d, s%d, %d" % (S_T, S_RB, 128*1280))
    a("buffer_load_dword v2, v1, s[%d:%d], s%d offen" % (SRD_O, SRD_O+3, S_T))
    a("buffer_load_dword v2, v1, s[%d:%d], 0 offen" % (SRD_W2, SRD_W2+3))

touch = role_g1.g1_compute(a, va, sc="sc1", stamps=S)
a("s_barrier")
a("s_waitcnt vmcnt(0)")
S(7)
a("s_barrier")
a("s_cmp_lg_u32 s%d, 0" % S_WAVE); a("s_cbranch_scc1 g_noflag")
a("s_lshl_b32 s%d, s%d, 11" % (S_T, S_RB)); a("s_lshl_b32 s%d, s%d, 7" % (S_T+1, S_CB))
a("s_add_u32 s%d, s%d, s%d" % (S_T, S_T, S_T+1)); a("s_add_u32 s%d, s%d, 0x%x" % (S_T, S_T, WS_FL))
flag_store(a, S_T, 1, 2)
a.label("g_noflag")
if STAMPS:
    S.flush({}); a("s_mov_b64 exec, -1"); S2.clear(); S2(0)
if role_g1.HST == "touch": touch()
a("s_cmp_ge_u32 s%d, 20" % sI); a("s_cbranch_scc1 k_wait")
sF = S_T+4
def h_wait(vP, t):
    a("v_min_u32 %s, 10, v0" % vr(t)); a("v_lshlrev_b32 %s, 7, %s" % (vr(t), vr(t)))
    a("s_lshl_b32 s%d, s%d, 11" % (sF, S_RB)); a("s_add_u32 s%d, s%d, 0x%x" % (sF, sF, WS_FL))
    a.label("h_poll")
    a("buffer_load_dword %s, %s, s[%d:%d], s%d offen sc1" % (vr(vP), vr(t), SRD_WS, SRD_WS+3, sF))
    a("s_waitcnt vmcnt(0)")
    a("v_cmp_ne_u32 vcc, s%d, %s" % (S_NONCE, vr(vP)))
    a("s_cbranch_vccnz h_poll")
role_g2.g2_compute(a, va, h_wait=h_wait, sc="sc1", stamps=S2)
S2.flush({0:11, 2:12, 5:13, 9:14})
a("s_endpgm")
hi = max(hi, va.hi)
a.label("g_help")
va = VAlloc()
issue2, put2 = role_g2.g2_helper_setup(a, va)
SCHED = eval(os.environ.get("W2S", "{8: [0], 9: [1], 11: [2, 3, 4]}"))
q2 = []
def hook(b):
    r = []
    for st in SCHED.get(b, []): issue2(st); r += [("w2", st)]*6
    q2.extend(r)
    return r
role_g1.g1_helper(a, va, stamps=S, hook=hook)
a("s_barrier"); hook(10)
a("s_barrier"); hook(11)
a("s_barrier")
if role_g1.HST == "htouch":
    tt = va(); td = va()
    a("s_lshl_b32 s%d, s%d, 2" % (S_T, S_RB)); a("s_add_u32 s%d, s%d, s%d" % (S_T, S_T, S_WAVE)); a("s_sub_u32 s%d, s%d, 4" % (S_T, S_T))
    a("s_mul_i32 s%d, s%d, %d" % (S_T, S_T, 2*H_MT_STRIDE)); a("s_mul_i32 s%d, s%d, 5120" % (S_T+1, S_CB)); a("s_add_u32 s%d, s%d, s%d" % (S_T, S_T, S_T+1))
    a("v_lshlrev_b32 v%d, 7, v0" % tt)
    a("s_mov_b32 exec_hi, 0xff")
    for i in range(2):
        a("buffer_load_dword v%d, v%d, s[%d:%d], s%d offen sc1" % (td, tt, SRD_WS, SRD_WS+3, S_T))
        a("s_add_u32 s%d, s%d, %d" % (S_T, S_T, H_MT_STRIDE))
    a("s_mov_b32 exec_hi, -1")
    q2.extend([("t",)]*2)
a("s_cmp_ge_u32 s%d, 20" % sI); a("s_cbranch_scc1 g_help_end")
for st in range(9):
    if ("w2", st) not in q2: issue2(st); q2.extend([("w2", st)]*6)
role_g2.g2_helper_loop(a, put2, q2, lambda: role_g2.g2_helper_tail(a, va))
a.label("g_help_end")
a("s_waitcnt vmcnt(0)")
S.flush()
a.label("k_wait"); a("s_waitcnt vmcnt(0)")
a.label("k_end"); a("s_endpgm")
hi = max(hi, va.hi)
out = hdr + "; @launch grid=(256,1,1) block=(512,1,1) lds=163840\n"
out += '.amdgcn_target "amdgcn-amd-amdhsa--gfx950"\n.text\n'
k = KN + "_kernel"
out += ".globl %s\n.p2align 8\n.type %s,@function\n%s:\n%s" % (k, k, k, a.text())
out += '.section .rodata,"a"\n.p2align 6\n' + kernel_desc(k, hi)
open(sys.argv[1], "w").write(out)
print("vgprs", hi, "lines", len(a.l))
```

```python
from gen_common import *
DBG = os.environ.get('DBG','').split(',')
G2_STAGE = 24576
G2_NB = 6
G2_OUT = G2_STAGE*G2_NB
S_RB, S_DB = 60, 63
S_ROT2 = 65
DEPTH = int(os.environ.get('DEPTH', '6'))
ROT = 3

def g2_helper_setup(a, va):
    vO = va(); t0 = va(); t1 = va()
    sH = 68; sG = 69; sL = 70; sX = 71
    a("s_sub_u32 s%d, s%d, 4" % (sH, S_WAVE))
    a("v_lshrrev_b32 %s, 3, v0" % vr(t0))
    a("v_bfe_u32 %s, v0, 4, 2" % vr(t1))
    a("v_lshlrev_b32 %s, 1, %s" % (vr(t1), vr(t1)))
    a("v_and_b32 %s, 7, v0" % vr(vO))
    a("v_xor_b32 %s, %s, %s" % (vr(vO), vr(vO), vr(t1)))
    a("v_lshlrev_b32 %s, 4, %s" % (vr(vO), vr(vO)))
    a("v_mul_u32_u24 %s, 1280, %s" % (vr(t0), vr(t0)))
    a("v_add_u32 %s, %s, %s" % (vr(vO), vr(vO), vr(t0)))
    a("s_mul_i32 s%d, s%d, %d" % (sG, sH, 48*1280))
    a("s_lshl_b32 s%d, s%d, 7" % (sX, S_DB))
    a("s_add_u32 s%d, s%d, s%d" % (sG, sG, sX))
    a("s_mul_i32 s%d, s%d, %d" % (sL, sH, 48*128))
    sK = 59
    a("s_mul_i32 s%d, s%d, %d" % (sK, S_ROT2, 192*1280))
    regs = [[va(4, 4) for i in range(6)] for k in range(3)]
    vL = va()
    a("v_lshlrev_b32 %s, 4, v0" % vr(vL))
    a("v_add_u32 %s, s%d, %s" % (vr(vL), sL, vr(vL)))
    def adv(st):
        a("s_add_u32 s%d, s%d, %d" % (sX, sK, st*192*1280))
        a("s_cmp_ge_u32 s%d, %d" % (sX, 1728*1280))
        a("s_cselect_b32 s%d, %d, 0" % (sH, 1728*1280))
        a("s_sub_u32 s%d, s%d, s%d" % (sX, sX, sH))
        a("s_add_u32 s%d, s%d, s%d" % (sX, sX, sG))
    def issue(st):
        buf = ((st + ROT) % G2_NB)*G2_STAGE
        adv(st)
        for i in range(6):
            if st < 6:
                a("s_add_u32 m0, s%d, %d" % (sL, buf + 1024*i))
                a("s_nop 0")
                a("buffer_load_dwordx4 %s, s[%d:%d], s%d offen lds" % (vr(vO), SRD_W2, SRD_W2+3, sX))
            else:
                a("buffer_load_dwordx4 %s, %s, s[%d:%d], s%d offen" % (vr(regs[st-6][i], 4), vr(vO), SRD_W2, SRD_W2+3, sX))
            if i < 5: a("s_add_u32 s%d, s%d, 10240" % (sX, sX))
    def put(st):
        buf = ((st + ROT) % G2_NB)*G2_STAGE
        a("v_add_u32 %s, %d, %s" % (vr(t0), buf, vr(vL)))
        for i in range(6): a("ds_write_b128 %s, %s offset:%d" % (vr(t0), vr(regs[st-6][i], 4), 1024*i))
    return issue, put

def g2_helper_loop(a, put, q):
    def after(st): return len(q) - 1 - max(i for i, t in enumerate(q) if t == ("w2", st))
    PUT0 = int(os.environ.get("PUT0", "3"))
    for b in range(9):
        if b < 6: a("s_waitcnt vmcnt(%d)" % after(b))
        else: a("s_waitcnt lgkmcnt(0)")
        a("s_barrier")
        if PUT0 <= b < PUT0 + 3:
            a("s_waitcnt vmcnt(%d)" % after(b - PUT0 + 6))
            put(b - PUT0 + 6)
    a("s_barrier")

def g2_compute(a, va, h_wait=None, xa_poll=None, sc="", stamps=None):
    m = va.mark()
    acc4 = [[va(4, 4) for j in range(4)] for t in range(4)]
    wf = [[va(4, 4) for j in range(4)] for b in range(2)]
    hr = [[va(4, 4) for t in range(4)] for d in range(DEPTH)]
    xa = [va(4, 4) for j in range(4)]
    SE = [va(4, 4) for e in range(2)]
    vW = [[va() for j in range(4)] for k in range(3)]
    vHt = [va() for t in range(4)]
    vH = va(); vXA = va(); t0, t1, t2, t3 = va(), va(), va(), va()
    vP = va()
    sMH, sKH = S_T, S_T+1; sA = S_T+2; sXA = S_T+3; sB0, sK, sHo, sWF = S_T+5, S_T+6, S_T+7, 68
    a("s_and_b32 s%d, s%d, 1" % (sMH, S_WAVE))
    a("s_lshr_b32 s%d, s%d, 1" % (sKH, S_WAVE))
    a("s_lshl_b32 s%d, s%d, 1" % (sWF, sMH)); a("s_add_u32 s%d, s%d, s%d" % (sWF, sWF, sKH))
    a("v_and_b32 %s, 15, v0" % vr(t0))
    a("v_lshrrev_b32 %s, 4, v0" % vr(t1))
    xf = [hr[DEPTH-1][t] for t in range(4)]
    a("v_mul_u32_u24 %s, 1280, %s" % (vr(t2), vr(t0)))
    a("v_lshl_add_u32 %s, %s, 4, %s" % (vr(t2), vr(t1), vr(t2)))
    a("s_lshl_b32 s%d, s%d, 1" % (sA, S_RB)); a("s_add_u32 s%d, s%d, s%d" % (sA, sA, sMH))
    a("s_mul_i32 s%d, s%d, %d" % (sXA, sA, 64*1280))
    a("s_lshl_b32 s%d, s%d, 1" % (sWF+1, S_DB)); a("s_add_u32 s%d, s%d, s%d" % (sWF+1, sWF+1, sKH)); a("s_lshl_b32 s%d, s%d, 6" % (sWF+1, sWF+1))
    a("s_add_u32 s%d, s%d, s%d" % (sXA, sXA, sWF+1))
    for t in range(4):
        a("buffer_load_dwordx4 %s, %s, s[%d:%d], s%d offen" % (vr(xf[t], 4), vr(t2), SRD_X, SRD_X+3, sXA))
        if t < 3: a("s_add_u32 s%d, s%d, %d" % (sXA, sXA, 16*1280))
    vQ = va()
    h_wait[0](vP, vQ)
    a("v_lshrrev_b32 %s, 2, %s" % (vr(t2), vr(t0)))
    a("v_lshl_add_u32 %s, %s, 2, %s" % (vr(t2), vr(t1), vr(t2)))
    a("v_bfe_u32 %s, %s, 1, 2" % (vr(t3), vr(t2)))
    a("v_lshlrev_b32 %s, 7, %s" % (vr(t2), vr(t2)))
    a("v_and_b32 %s, 3, v0" % vr(vH))
    a("v_lshl_add_u32 %s, %s, 3, %s" % (vr(t2), vr(vH), vr(t2)))
    a("s_lshl_b32 s%d, s%d, 12" % (sA, sKH))
    a("v_add_u32 %s, s%d, %s" % (vr(t2), sA, vr(t2)))
    for j in range(4):
        a("v_xor_b32 %s, %d, %s" % (vr(vH), j, vr(t3)))
        a("v_lshl_add_u32 %s, %s, 5, %s" % (vr(vW[0][j]), vr(vH), vr(t2)))
        for k in (1, 2): a("v_add_u32 %s, %d, %s" % (vr(vW[k][j]), 2*k*G2_STAGE, vr(vW[0][j])))
    a("v_lshlrev_b32 %s, 4, v0" % vr(vH))
    a("s_lshl_b32 s%d, s%d, 10" % (sA, sKH))
    a("v_add_u32 %s, s%d, %s" % (vr(vHt[0]), sA, vr(vH)))
    for t in range(1, 4): a("v_add_u32 %s, %d, %s" % (vr(vHt[t]), t*H_MT_STRIDE, vr(vHt[0])))
    a("s_lshl_b32 s%d, s%d, 1" % (sA, S_RB))
    a("s_add_u32 s%d, s%d, s%d" % (sA, sA, sMH))
    a("s_mul_i32 s%d, s%d, %d" % (sB0, sA, 4*H_MT_STRIDE))
    a("s_mul_i32 s%d, s%d, 6144" % (sK, S_ROT2))
    a("s_add_u32 s%d, s%d, s%d" % (sHo, sB0, sK))
    for e in range(2):
        a("v_lshlrev_b32 %s, 3, %s" % (vr(t2), vr(t1)))
        a("v_sub_u32 %s, %s, %s" % (vr(t2), vr(t0), vr(t2)))
        a("v_add_u32 %s, %d, %s" % (vr(t2), 16*e, vr(t2)))
        a("v_and_b32 %s, 1, %s" % (vr(t3), vr(t2)))
        a("v_lshlrev_b32 %s, 4, %s" % (vr(t3), vr(t3)))
        a("v_mov_b32 %s, 0x3f80" % vr(vXA))
        a("v_lshlrev_b32 %s, %s, %s" % (vr(t3), vr(t3), vr(vXA)))
        a("v_lshrrev_b32 %s, 1, %s" % (vr(t2), vr(t2)))
        for p in range(4):
            a("v_cmp_eq_u32 vcc, %d, %s" % (p, vr(t2)))
            a("s_nop 1")
            a("v_cndmask_b32 %s, 0, %s, vcc" % (vr(SE[e]+p), vr(t3)))
    a("v_lshlrev_b32 %s, 12, %s" % (vr(vXA), vr(t0)))
    a("v_lshl_add_u32 %s, %s, 4, %s" % (vr(vXA), vr(t1), vr(vXA)))
    a("s_lshl_b32 s%d, s%d, 2" % (sXA, S_RB)); a("s_add_u32 s%d, s%d, s%d" % (sXA, sXA, sWF)); a("s_lshl_b32 s%d, s%d, 6" % (sXA, sXA))
    a("s_lshl_b32 s%d, s%d, 18" % (sWF+1, S_DB)); a("s_add_u32 s%d, s%d, s%d" % (sXA, sXA, sWF+1))
    a("s_add_u32 s%d, s%d, 0x%x" % (sXA, sXA, WS_AT))
    q = []
    NS = 27
    def hload(n):
        L = []
        if n:
            L.append("s_add_u32 s%d, s%d, 2048" % (sK, sK))
            if n % 3 == 0:
                L.append("s_cmp_eq_u32 s%d, %d" % (sK, H_MT_STRIDE))
                L.append("s_cselect_b32 s%d, 0, s%d" % (sK, sK))
            L.append("s_add_u32 s%d, s%d, s%d" % (sHo, sB0, sK))
        for t in range(4):
            L.append(("buffer_load_dwordx4 %s, %s, s[%d:%d], s%d offen %s" % (vr(hr[n % DEPTH][t], 4), vr(vHt[t]), SRD_WS, SRD_WS+3, sHo, sc), ("h", n, t)))
        return L
    def emit(x):
        if isinstance(x, tuple): a(x[0]); q.append(x[1])
        else: a(x)
    def wait_for(tag):
        idx = max(i for i, tg in enumerate(q) if tg == tag)
        return len(q) - 1 - idx
    def xaload():
        L = []
        for j in range(4):
            L.append(("buffer_load_dwordx4 %s, %s, s[%d:%d], s%d offen %s" % (vr(xa[j], 4), vr(vXA), SRD_WS, SRD_WS+3, sXA, sc), ("xa",)))
            L.append("s_add_u32 s%d, s%d, 0x10000" % (sXA, sXA) if j < 3 else "s_sub_u32 s%d, s%d, 0x30000" % (sXA, sXA))
        return L
    def wloads(n):
        st, s = divmod(n, 3); buf = (st + ROT) % G2_NB
        L = []
        for j in range(4):
            for e in range(2):
                L.append("ds_read_b64_tr_b16 %s, %s offset:%d" % (vr(wf[n & 1][j]+2*e, 2), vr(vW[buf >> 1][j]), (buf & 1)*G2_STAGE + 8192*s + 2048*e))
        return L
    a("s_barrier")
    for x in wloads(0): a(x)
    i1_ = a.newlabel("g2_i1"); id_ = a.newlabel("g2_id")
    a("s_waitcnt vmcnt(1)")
    a("s_cmp_lg_u32 s%d, 0" % sKH); a("s_cbranch_scc1 %s" % i1_)
    for kh in range(2):
        if kh: a.label(i1_)
        for e in range(2):
            for t in range(4):
                a("v_mfma_f32_16x16x32_bf16 %s, %s, %s, 0" % (vr(acc4[t][2*kh+e], 4), vr(SE[e], 4), vr(xf[t], 4)))
                for k in range(4): a("v_mov_b32 %s, 0" % vr(acc4[t][2*(1-kh)+e]+k))
        if kh == 0: a("s_branch %s" % id_)
    a.label(id_)
    h_wait[1](vP, vQ)
    if stamps: stamps(1)
    RAMP = int(os.environ.get("RAMP", "4"))
    for n in range(RAMP):
        for x in hload(n): emit(x)
    nxt = RAMP
    N_XA = int(os.environ.get('NXA', '24')); N_POLL = int(os.environ.get('NPOLL', '21'))
    for n in range(NS):
        b = n & 1
        if stamps and n in (1, 4, 7, 10, 14, 20): stamps({1:2, 4:3, 7:4, 10:5, 14:6, 20:7}[n])
        a("s_waitcnt lgkmcnt(0)")
        if (n + 1) % 3 == 0 and n + 1 < NS: a("s_barrier")
        L = wloads(n+1) if n + 1 < NS else []
        G = []
        for _ in range(2):
            if nxt <= min(n - 1 + DEPTH, NS - 1): G += hload(nxt); nxt += 1
        if n == N_POLL: G = G + xa_poll.issue(vP, t3)
        if n == N_XA:
            assert not G
            a("s_waitcnt vmcnt(%d)" % wait_for(("poll",)))
            G = G + xaload()
        k = 0
        for j in range(4):
            for t in range(4):
                if j == 0: a("s_waitcnt vmcnt(%d)" % wait_for(("h", n, t)))
                c = vr(acc4[t][j], 4)
                a("v_mfma_f32_16x16x32_bf16 %s, %s, %s, %s" % (vr(acc4[t][j], 4), vr(wf[b][j], 4), vr(hr[n % DEPTH][t], 4), c))
                if k < len(L): a(L[k])
                if k >= 8 or not L or len(G) > 14:
                    for _ in range(2):
                        if G:
                            x = G.pop(0); emit(x)
                            if isinstance(x, tuple): break
                k += 1
        for x in G: emit(x)
    if stamps: stamps(8)
    XB = 3*G2_STAGE
    a("s_lshl_b32 s%d, s%d, 13" % (sA, S_WAVE))
    a("s_add_u32 s%d, s%d, %d" % (sA, sA, XB))
    a("v_add_u32 %s, s%d, %s" % (vr(t2), sA, vr(vH)))
    a("v_xor_b32 %s, %d, %s" % (vr(vHt[0]), 2 << 13, vr(vH)))
    a("s_lshl_b32 s%d, s%d, 13" % (sA, S_WAVE))
    a("v_xor_b32 %s, s%d, %s" % (vr(vHt[0]), sA, vr(vHt[0])))
    a("v_add_u32 %s, %d, %s" % (vr(vHt[0]), XB, vr(vHt[0])))
    acc = [[hr[0][0] + 16*t + 4*j for j in range(4)] for t in range(2)]
    k1 = a.newlabel("g2_k1"); kd = a.newlabel("g2_kd")
    a("s_cmp_lg_u32 s%d, 0" % sKH); a("s_cbranch_scc1 %s" % k1)
    for kh in range(2):
        if kh: a.label(k1)
        for t in range(2):
            for j in range(4):
                a("ds_write_b128 %s, %s offset:%d" % (vr(t2), vr(acc4[2*(1-kh)+t][j], 4), 4096*t + 1024*j))
        a("s_waitcnt lgkmcnt(0)")
        a("s_barrier")
        for t in range(2):
            for j in range(4):
                a("ds_read_b128 %s, %s offset:%d" % (vr(acc[t][j], 4), vr(vHt[0]), 4096*t + 1024*j))
        a("s_waitcnt vmcnt(0)")
        xa_poll.finish(vP, t3, lambda: [emit(x) for x in xaload()])
        for e in range(2):
            for j in range(4):
                a("v_mfma_f32_16x16x32_bf16 %s, %s, %s, %s" % (vr(acc4[2*kh+e][j], 4), vr(xa[j], 4), vr(SE[e], 4), vr(acc4[2*kh+e][j], 4)))
        for t in range(2):
            for j in range(4):
                a("s_waitcnt lgkmcnt(%d)" % (7 - 4*t - j))
                for k in range(2):
                    a("v_pk_add_f32 %s, %s, %s" % (vr(acc[t][j]+2*k, 2), vr(acc[t][j]+2*k, 2), vr(acc4[2*kh+t][j]+2*k, 2)))
        if kh == 0: a("s_branch %s" % kd)
    a.label(kd)
    a("v_mul_u32_u24 %s, 1280, %s" % (vr(t2), vr(t0)))
    a("v_lshl_add_u32 %s, %s, 4, %s" % (vr(t2), vr(t1), vr(t2)))
    a("s_lshl_b32 s%d, s%d, 2" % (sA, S_RB))
    a("s_add_u32 s%d, s%d, s%d" % (sA, sA, sWF))
    a("s_mul_i32 s%d, s%d, %d" % (sA, sA, 32*1280))
    a("s_lshl_b32 s%d, s%d, 7" % (sXA, S_DB))
    a("s_add_u32 s%d, s%d, s%d" % (sA, sA, sXA))
    T = [wf[0][0], wf[0][0]+2, wf[0][1], wf[0][1]+2]
    F = [[wf[1][2*t+jj] for jj in range(2)] for t in range(2)]
    for t in range(2):
        for jj in range(2):
            for e in range(2):
                for k in range(2):
                    a("v_cvt_pk_bf16_f32 %s, %s, %s" % (vr(F[t][jj]+2*e+k), vr(acc[t][2*jj+e]+2*k), vr(acc[t][2*jj+e]+2*k+1)))
    for op in ("v_permlane32_swap_b32", "v_permlane16_swap_b32"):
        a("s_nop 1")
        for t in range(2):
            for jj in range(2):
                for k in range(2): a("%s %s, %s" % (op, vr(F[t][jj]+k), vr(F[t][jj]+2+k)))
    a("s_nop 1")
    for t in range(2):
        for jj in range(2):
            a("buffer_store_dwordx4 %s, %s, s[%d:%d], s%d offen offset:%d" % (vr(F[t][jj], 4), vr(t2), SRD_O, SRD_O+3, sA, 64*jj))
        if t == 0: a("s_add_u32 s%d, s%d, %d" % (sA, sA, 16*1280))
    va.release(m)
```

```python
import sys
from gen_common import *
import role_g1, role_g2, role_conv
from role_g1 import S_RB, S_CB, S_ROT1
from role_g2 import S_DB, S_ROT2
from role_conv import *
KN = "parallel_sum__ssm_conv_s4d__dense_activation_relu__prompt"
hdr = open("cdna_kernels/%s.s.ref" % KN).read().split("; Override launch")[0]
a = Asm()
S = Stamps(a, STAMPS, 0)
S2 = Stamps(a, STAMPS, 1)
a("s_cmp_ge_u32 s2, 256"); a("s_cbranch_scc1 k_end")
S.clear(); S(0)
load_args(a); wave_id(a, 1)
a("s_cmp_ge_u32 s2, 80"); a("s_cbranch_scc1 role_g")
hi = 0
va = VAlloc()
a("s_and_b32 s%d, s2, 7" % (S_T+2)); a("s_lshr_b32 s%d, s2, 3" % (S_T+3))
a("s_mul_i32 s%d, s%d, 10" % (S_CW, S_T+2)); a("s_add_u32 s%d, s%d, s%d" % (S_CW, S_CW, S_T+3))
a("s_or_b32 s%d, s2, s%d" % (S_T, S_WAVE))
a("s_memrealtime s[64:65]")
a("s_waitcnt lgkmcnt(0)")
a("s_cmp_lg_u32 s%d, 0" % S_T); a("s_cbranch_scc1 no_pub")
a("s_or_b32 s64, s64, 1")
a("v_mov_b32 v1, s64"); a("v_mov_b32 v2, 0")
a("s_mov_b64 exec, 1")
a("global_store_dword v2, v1, s[%d:%d] sc1" % (P_DBG, P_DBG+1))
a("s_mov_b64 exec, -1")
a.label("no_pub")
if os.environ.get("TW"):
    for i, p in enumerate((P_U, P_LOGA, P_AIM, P_CRE, P_CIM, P_W1, P_W2)): a("s_load_dword s%d, s[%d:%d], 0" % (69, p, p+1))
    for off in (WS_ST, WS_UT, WS_UT + 0x200000, WS_FL, WS_AT + 0x100000): a("s_load_dword s%d, s[%d:%d], 0x%x" % (69, P_WS, P_WS+1, off & 0xfffff) if off < 0x100000 else "s_mov_b32 s70, 0x%x\ns_load_dword s69, s[%d:%d], s70" % (off, P_WS, P_WS+1))
srd(a, SRD_X, P_U, X_BYTES); srd(a, SRD_WS, P_WS, 32 << 20); srd(a, SRD_W, P_W1, W_BYTES); srd(a, SRD_W2, P_W2, W_BYTES)
vN, vZ, vP = va(), va(), va()
a("s_and_b32 s%d, s2, 7" % (S_T+2)); a("s_lshr_b32 s%d, s2, 3" % (S_T+3))
a("s_lshl_b32 s64, s%d, 3" % (S_T+2)); a("s_add_u32 s64, s64, s%d" % (S_T+3)); a("s_lshl_b32 s64, s64, 3"); a("s_add_u32 s64, s64, s%d" % S_WAVE); a("s_lshl_b32 s64, s64, 2")
a("s_cmp_ge_u32 s2, 64"); a("s_cselect_b32 s64, 4096, s64")
par = [va() for _ in range(5)]
csr = va.mark(); va(36)
m0 = va.mark()
p1, p2 = producer_issue(a, va, 64)
m1 = va.mark(); va.release(par[0])
R = conv_issue_loads(a, va)
va.release(m1)
a("s_lshr_b32 s65, s%d, 1" % (S_T+2)); a("s_mul_i32 s65, s65, 7"); a("s_add_u32 s65, s65, s%d" % (S_T+3)); a("s_sub_u32 s65, s65, 3")
a("s_cmp_lt_u32 s%d, 3" % (S_T+3)); a("s_cselect_b32 s65, 99, s65")
a("s_cmp_lt_u32 s65, 27"); a("s_cselect_b32 s68, 1, 0")
a("s_sub_u32 s%d, 53, s65" % (S_T+4)); a("s_bitcmp1_b32 s2, 0"); a("s_cselect_b32 s65, s%d, s65" % (S_T+4))
a("s_cmp_eq_u32 s68, 0"); a("s_cselect_b32 s65, 0x10000, s65")
z = va(2); a("v_mov_b32 v%d, %d" % (z, XO + 1024)); a("v_mov_b32 v%d, 0" % (z+1))
a("ds_write_b32 v%d, v%d" % (z, z+1))
a("s_waitcnt vmcnt(4)")
S(1)
nonce_issue(a, vN, vZ)
m1 = va.mark(); va.release(csr)
cs1 = colsum_issue(a, va, 65)
assert va.mark() <= m0
va.release(m1)
def ncb():
    a("s_waitcnt vmcnt(5)")
    nonce_finish(a, vN, vZ)
a("s_cmp_ge_u32 s2, 64"); a("s_cbranch_scc1 no_p1")
p1(ncb)
S(2)
a("s_waitcnt lgkmcnt(0)")
a("s_barrier")
p2()
S(3)
a("s_branch p1_done")
a.label("no_p1")
ncb()
a("s_waitcnt lgkmcnt(0)")
a("s_barrier")
a.label("p1_done")
va.release(m0)
S(4)
a("s_mul_i32 s69, s%d, %d" % (S_WAVE, USTR)); a("s_add_u32 s69, s69, %d" % UB)
a("v_lshlrev_b32 v%d, 3, v0" % vZ); a("v_add_u32 v%d, s69, v%d" % (vZ, vZ))
z = va(2); a("v_mov_b32 v%d, 0" % z); a("v_mov_b32 v%d, 0" % (z+1))
a("s_mov_b32 exec_hi, 0x0fffffff")
a("ds_write_b64 v%d, v[%d:%d]" % (vZ, z, z+1))
a("s_mov_b32 exec_hi, -1")
va.release(m0)
FQ = os.environ.get("FQ", "16"); PQ = os.environ.get("PQ", "start"); CQ = os.environ.get("CQ", "e8")
def hooks(ps, w, t0, t1):
    if ps == 0 and str(w) == FQ:
        a("s_waitcnt vmcnt(0)")
        a("s_cmp_ge_u32 s2, 64"); a("s_cbranch_scc1 no_uf")
        a("s_lshl_b32 s69, s%d, 3" % S_WAVE); a("s_and_b32 s70, s2, 7"); a("s_add_u32 s69, s69, s70"); a("s_lshl_b32 s69, s69, 7")
        a("s_lshr_b32 s70, s2, 3"); a("s_lshl_b32 s70, s70, 2")
        a("s_add_u32 s69, s69, s70"); a("s_add_u32 s69, s69, 0x%x" % WS_UF)
        flag_store(a, 69, t0, t1)
        a.label("no_uf")
        a("s_cmp_eq_u32 s68, 0"); a("s_cbranch_scc1 no_cs1")
        cs1()
        a.label("no_cs1")
        S(5)
    if ps == 1 and str(w) == PQ:
        a("s_and_b32 s69, s2, 7"); a("s_lshl_b32 s69, s69, 10"); a("s_add_u32 s69, s69, 0x%x" % WS_UF)
        a("v_lshrrev_b32 %s, 3, v0" % vr(t0)); a("v_and_b32 v%d, 7, v0" % vZ)
        a("v_lshlrev_b32 v%d, 2, v%d" % (vZ, vZ)); a("v_lshl_add_u32 v%d, %s, 7, v%d" % (vZ, vr(t0), vZ))
        a("buffer_load_dword v%d, v%d, s[%d:%d], s69 offen sc1" % (vP, vZ, SRD_WS, SRD_WS+3))
    if ps == 1 and str(w) == CQ:
        a("s_waitcnt vmcnt(0)")
        a("v_cmp_ne_u32 vcc, s%d, v%d" % (S_NONCE, vP))
        a("s_mov_b32 s71, 0")
        a("s_cbranch_vccnz u_later")
        u_dma(t0)
        a("s_mov_b32 s71, 1")
        a.label("u_later")
        if TCH == "cq": w2_touch(t0, t1)
TCH = os.environ.get("TCH", "main")
def w2_touch(t0, t1):
    sk = a.newlabel("no_tch")
    a("s_cmp_ge_u32 s%d, 4" % S_WAVE); a("s_cbranch_scc1 %s" % sk)
    a("s_lshr_b32 s63, s2, 3"); a("s_lshl_b32 s63, s63, 2"); a("s_add_u32 s63, s63, s%d" % S_WAVE); a("s_mul_i32 s63, s63, 216")
    if os.environ.get("XLOC"):
        a("s_lshl_b32 s63, s63, 8")
        a("v_lshlrev_b32 %s, 7, v0" % vr(t0))
        a("s_mov_b32 exec_hi, 0x003fffff")
        for i in range(8):
            a("buffer_load_dword v%d, %s, s[%d:%d], s63 offen" % (par[0], vr(t0), SRD_W2, SRD_W2+3))
            a("s_add_u32 s63, s63, %d" % (54*128))
    a("s_and_b32 s70, s2, 1"); a("s_mul_i32 s70, s70, 640")
    a("s_mov_b32 exec_hi, 0x003fffff")
    for i in range(0 if os.environ.get("XLOC") else 4):
        a("v_add_u32 %s, s63, v0" % vr(t0))
        if i: a("v_add_u32 %s, %d, %s" % (vr(t0), 54*i, vr(t0)))
        a("v_mul_u32_u24 %s, 52429, %s" % (vr(t1), vr(t0)))
        a("v_lshrrev_b32 %s, 18, %s" % (vr(t1), vr(t1)))
        a("v_mul_u32_u24 %s, 640, %s" % (vr(t1), vr(t1)))
        a("v_lshl_add_u32 %s, %s, 7, %s" % (vr(t0), vr(t0), vr(t1)))
        a("buffer_load_dword v%d, %s, s[%d:%d], s70 offen" % (par[0], vr(t0), SRD_W2, SRD_W2+3))
    a("s_mov_b32 exec_hi, -1")
    a.label(sk)
def u_dma(t0):
    a("s_mul_i32 s70, s%d, %d" % (S_WAVE, USTR)); a("s_add_u32 m0, s70, %d" % (UB + 480))
    a("s_lshl_b32 s70, s%d, 6" % R["sD"]); a("s_add_u32 s70, s70, 0x%x" % WS_UT)
    a("v_lshrrev_b32 %s, 2, v0" % vr(t0)); a("v_mul_u32_u24 %s, %d, %s" % (vr(t0), UT_PS, vr(t0)))
    a("v_and_b32 v%d, 3, v0" % vP); a("v_lshl_add_u32 %s, v%d, 4, %s" % (vr(t0), vP, vr(t0)))
    for i in range(4):
        a("buffer_load_dwordx4 %s, s[%d:%d], s70 offen offset:%d sc1 lds" % (vr(t0), SRD_WS, SRD_WS+3, 1024*i))
        if i < 3: a("s_add_u32 s70, s70, %d" % (16*UT_PS - 1024))
conv_kgen(a, va, R, None, hooks=hooks)
va.release(m0)
S(6)
a("s_cmp_eq_u32 s71, 1"); a("s_cbranch_scc1 u_done")
a.label("u_poll")
a("buffer_load_dword v%d, v%d, s[%d:%d], s69 offen sc1" % (vP, vZ, SRD_WS, SRD_WS+3))
a("s_waitcnt vmcnt(0)")
a("v_cmp_ne_u32 vcc, s%d, v%d" % (S_NONCE, vP))
a("s_cbranch_vccnz u_poll")
u_dma(vN)
a("s_waitcnt vmcnt(0)")
a.label("u_done")
def pre():
    if TCH == "cq":
        a("s_cmp_ge_u32 s%d, 4" % S_WAVE); a("s_cbranch_scc1 u_w0")
        a("s_waitcnt vmcnt(%d)" % (8 if os.environ.get("XLOC") else 4)); a("s_branch u_w1")
        a.label("u_w0"); a("s_waitcnt vmcnt(0)"); a.label("u_w1")
    else:
        a("s_waitcnt vmcnt(0)")
        if TCH == "main": w2_touch(vN, vZ)
conv_main(a, va, R, sc="sc1", stamps=S, pre=pre)
a("s_lshl_b32 s%d, s%d, 7" % (S_T, S_CW)); a("s_lshl_b32 s%d, s%d, 2" % (S_T+1, S_WAVE))
a("s_add_u32 s%d, s%d, s%d" % (S_T, S_T, S_T+1)); a("s_add_u32 s%d, s%d, 0x%x" % (S_T, S_T, WS_AF))
a("s_waitcnt vmcnt(0)")
flag_store(a, S_T, 1, 2)
S.flush({0:1, 4:3, 8:5, 9:6})
a("s_endpgm")
hi = max(hi, va.hi)
a.label("role_g")
sI = 64
a("s_sub_u32 s%d, s2, 80" % S_T)
a("s_lshr_b32 s%d, s%d, 3" % (sI, S_T))
if not os.environ.get('XLOC'):
    a("s_and_b32 s%d, s%d, 1" % (S_T+1, S_T))
    a("s_bfe_u32 s%d, s%d, 0x20001" % (S_T+2, S_T))
    a("s_lshl_b32 s%d, s%d, 2" % (S_T+2, S_T+2))
    a("s_lshr_b32 s%d, s%d, 2" % (S_T+3, sI))
    a("s_mul_i32 s%d, s%d, 6" % (S_CB, S_T+1)); a("s_add_u32 s%d, s%d, s%d" % (S_CB, S_CB, S_T+3))
    a("s_mul_i32 s%d, s%d, 5" % (S_DB, S_T+1)); a("s_add_u32 s%d, s%d, s%d" % (S_DB, S_DB, S_T+3))
    a("s_and_b32 s%d, s%d, 3" % (S_RB, sI))
    a("s_lshl_b32 s%d, s%d, 1" % (S_T+1, S_T+1)); a("s_add_u32 s%d, s%d, s%d" % (S_T+1, S_T+1, S_RB))
    a("s_cmp_ge_u32 s%d, 20" % sI)
    a("s_cselect_b32 s%d, 5, s%d" % (S_CB, S_CB))
    a("s_cselect_b32 s%d, s%d, s%d" % (S_RB, S_T+1, S_RB))
    a("s_mul_i32 s%d, s%d, 5" % (S_T+4, S_RB)); a("s_lshr_b32 s%d, s%d, 1" % (S_T+4, S_T+4))
    a("s_and_b32 s%d, s%d, 1" % (S_T+5, sI)); a("s_mul_i32 s%d, s%d, 5" % (S_T+5, S_T+5)); a("s_add_u32 s%d, s%d, %d" % (S_T+5, S_T+5, int(os.environ.get("XO5", "1"))))
    a("s_lshl_b32 s%d, s%d, 1" % (S_T+3, S_T+3)); a("s_add_u32 s%d, s%d, s%d" % (S_T+4, S_T+4, S_T+3))
    a("s_cmp_ge_u32 s%d, 20" % sI); a("s_cselect_b32 s%d, s%d, s%d" % (S_T+4, S_T+5, S_T+4))
    a("s_lshr_b32 s%d, s%d, 2" % (S_T+5, S_T+2)); a("s_add_u32 s%d, s%d, s%d" % (S_T+4, S_T+4, S_T+5))
    a("s_and_b32 s%d, s2, 1" % (S_T+5)); a("s_add_u32 s%d, s%d, s%d" % (S_T+4, S_T+4, S_T+5))
    if os.environ.get("NOROT"): a("s_mov_b32 s%d, 0" % (S_T+4))
    for dst, md in ((S_ROT1, 10), (S_ROT2, 9)):
        a("s_sub_u32 s%d, s%d, %d" % (S_T+3, S_T+4, md)); a("s_cselect_b32 s%d, s%d, s%d" % (dst, S_T+4, S_T+3))
        a("s_sub_u32 s%d, s%d, %d" % (S_T+3, dst, md)); a("s_cselect_b32 s%d, s%d, s%d" % (dst, dst, S_T+3))
    a("s_add_u32 s%d, s%d, s%d" % (S_RB, S_RB, S_T+2))
else:
    a("s_and_b32 s%d, s%d, 7" % (S_T+2, S_T))
    a("s_and_b32 s%d, s%d, 1" % (S_T+1, sI))
    a("s_lshl_b32 s%d, s%d, 1" % (S_RB, S_T+2)); a("s_add_u32 s%d, s%d, s%d" % (S_RB, S_RB, S_T+1))
    a("s_lshr_b32 s%d, s%d, 1" % (S_CB, sI)); a("s_mov_b32 s%d, s%d" % (S_DB, S_CB))
    a("s_mul_i32 s%d, s%d, 5" % (S_T+4, S_T+1)); a("s_add_u32 s%d, s%d, s%d" % (S_T+4, S_T+4, S_CB))
    a("s_mul_i32 s%d, s%d, %d" % (S_T+2, S_T+2, int(os.environ.get("XR", "1")))); a("s_add_u32 s%d, s%d, s%d" % (S_T+4, S_T+4, S_T+2))
    for dst, md in ((S_ROT1, 10), (S_ROT2, 9)):
        a("s_mov_b32 s%d, s%d" % (dst, S_T+4))
        for _ in range(4):
            a("s_sub_u32 s%d, s%d, %d" % (S_T+3, dst, md)); a("s_cselect_b32 s%d, s%d, s%d" % (dst, dst, S_T+3))
a("s_waitcnt lgkmcnt(0)")
srd(a, SRD_X, P_U, X_BYTES); srd(a, SRD_W, P_W1, W_BYTES); srd(a, SRD_WS, P_WS, 32 << 20)
srd(a, SRD_W2, P_W2, W_BYTES); srd(a, SRD_O, P_OUT, X_BYTES)
a("s_cmp_ge_u32 s%d, 4" % S_WAVE); a("s_cbranch_scc1 g_help")
va = VAlloc()
if os.environ.get("TWG"):
    a("v_mov_b32 v1, 0")
    a("s_mul_i32 s%d, s%d, %d" % (S_T, S_RB, 8*H_MT_STRIDE))
    a("buffer_load_dword v2, v1, s[%d:%d], s%d offen" % (SRD_WS, SRD_WS+3, S_T))
    a("s_add_u32 s%d, s%d, %d" % (S_T, S_T, 8*H_MT_STRIDE - 4))
    a("buffer_load_dword v2, v1, s[%d:%d], s%d offen" % (SRD_WS, SRD_WS+3, S_T))
    a("s_mov_b32 s%d, 0x%x" % (S_T, WS_FL + 0x50000))
    a("buffer_load_dword v2, v1, s[%d:%d], s%d offen" % (SRD_WS, SRD_WS+3, S_T))
    a("s_lshl_b32 s%d, s%d, 18" % (S_T, S_DB)); a("s_add_u32 s%d, s%d, 0x%x" % (S_T, S_T, WS_AT))
    a("buffer_load_dword v2, v1, s[%d:%d], s%d offen" % (SRD_WS, SRD_WS+3, S_T))
    a("s_mul_i32 s%d, s%d, %d" % (S_T, S_RB, 128*1280))
    a("buffer_load_dword v2, v1, s[%d:%d], s%d offen" % (SRD_O, SRD_O+3, S_T))
    a("buffer_load_dword v2, v1, s[%d:%d], 0 offen" % (SRD_W2, SRD_W2+3))

touch = role_g1.g1_compute(a, va, sc="sc1", stamps=S)
a("s_barrier")
a("s_waitcnt vmcnt(0)")
S(7)
a("s_barrier")
a("s_cmp_lg_u32 s%d, 0" % S_WAVE); a("s_cbranch_scc1 g_noflag")
a("s_lshl_b32 s%d, s%d, 11" % (S_T, S_RB)); a("s_lshl_b32 s%d, s%d, 7" % (S_T+1, S_CB))
a("s_add_u32 s%d, s%d, s%d" % (S_T, S_T, S_T+1)); a("s_add_u32 s%d, s%d, 0x%x" % (S_T, S_T, WS_FL))
flag_store(a, S_T, 1, 2)
a.label("g_noflag")
if STAMPS:
    S.flush({}); a("s_mov_b64 exec, -1"); S2.clear(); S2(0)
if role_g1.HST == "touch": touch()
a("s_cmp_ge_u32 s%d, 20" % sI); a("s_cbranch_scc1 k_wait")
sF = S_T+4
def h_issue(vP, t):
    a("v_min_u32 %s, 10, v0" % vr(t)); a("v_lshlrev_b32 %s, 7, %s" % (vr(t), vr(t)))
    a("s_lshl_b32 s%d, s%d, 11" % (sF, S_RB)); a("s_add_u32 s%d, s%d, 0x%x" % (sF, sF, WS_FL))
    a("buffer_load_dword %s, %s, s[%d:%d], s%d offen sc1" % (vr(vP), vr(t), SRD_WS, SRD_WS+3, sF))
def h_wait(vP, t):
    a("s_branch h_chk")
    a.label("h_poll")
    a("buffer_load_dword %s, %s, s[%d:%d], s%d offen sc1" % (vr(vP), vr(t), SRD_WS, SRD_WS+3, sF))
    a.label("h_chk")
    a("s_waitcnt vmcnt(0)")
    a("v_cmp_ne_u32 vcc, s%d, %s" % (S_NONCE, vr(vP)))
    a("s_cbranch_vccnz h_poll")
class XP:
    def issue(s, vP, t):
        return ["v_lshrrev_b32 %s, 3, v0" % vr(vP), "v_and_b32 %s, 7, v0" % vr(t), "v_lshlrev_b32 %s, 2, %s" % (vr(t), vr(t)),
                "v_lshl_add_u32 %s, %s, 7, %s" % (vr(t), vr(vP), vr(t)),
                "s_lshl_b32 s%d, s%d, 10" % (sF, S_DB), "s_add_u32 s%d, s%d, 0x%x" % (sF, sF, WS_AF),
                ("buffer_load_dword %s, %s, s[%d:%d], s%d offen sc1" % (vr(vP), vr(t), SRD_WS, SRD_WS+3, sF), ("poll",))]
    def finish(s, vP, t, reload):
        a("v_cmp_ne_u32 vcc, s%d, %s" % (S_NONCE, vr(vP)))
        ok = a.newlabel("xa_ok"); pl = a.newlabel("xa_poll")
        a("s_cbranch_vccz %s" % ok)
        a.label(pl)
        a("buffer_load_dword %s, %s, s[%d:%d], s%d offen sc1" % (vr(vP), vr(t), SRD_WS, SRD_WS+3, sF))
        a("s_waitcnt vmcnt(0)")
        a("v_cmp_ne_u32 vcc, s%d, %s" % (S_NONCE, vr(vP)))
        a("s_cbranch_vccnz %s" % pl)
        reload()
        a("s_waitcnt vmcnt(0)")
        a.label(ok)
role_g2.g2_compute(a, va, h_wait=(h_issue, h_wait), xa_poll=XP(), sc="sc1", stamps=S2)
S2.flush({0:11, 2:12, 5:13, 9:14})
a("s_endpgm")
hi = max(hi, va.hi)
a.label("g_help")
va = VAlloc()
issue2, put2 = role_g2.g2_helper_setup(a, va)
SCHED = eval(os.environ.get("W2S", "{8: [0], 9: [1], 11: [2, 3, 4]}"))
q2 = []
def hook(b):
    r = []
    for st in SCHED.get(b, []): issue2(st); r += [("w2", st)]*6
    q2.extend(r)
    return r
role_g1.g1_helper(a, va, stamps=S, hook=hook)
a("s_barrier"); hook(10)
a("s_barrier"); hook(11)
a("s_barrier")
if role_g1.HST == "htouch":
    tt = va(); td = va()
    a("s_lshl_b32 s%d, s%d, 2" % (S_T, S_RB)); a("s_add_u32 s%d, s%d, s%d" % (S_T, S_T, S_WAVE)); a("s_sub_u32 s%d, s%d, 4" % (S_T, S_T))
    a("s_mul_i32 s%d, s%d, %d" % (S_T, S_T, 2*H_MT_STRIDE)); a("s_mul_i32 s%d, s%d, 5120" % (S_T+1, S_CB)); a("s_add_u32 s%d, s%d, s%d" % (S_T, S_T, S_T+1))
    a("v_lshlrev_b32 v%d, 7, v0" % tt)
    a("s_mov_b32 exec_hi, 0xff")
    for i in range(2):
        a("buffer_load_dword v%d, v%d, s[%d:%d], s%d offen sc1" % (td, tt, SRD_WS, SRD_WS+3, S_T))
        a("s_add_u32 s%d, s%d, %d" % (S_T, S_T, H_MT_STRIDE))
    a("s_mov_b32 exec_hi, -1")
    q2.extend([("t",)]*2)
a("s_cmp_ge_u32 s%d, 20" % sI); a("s_cbranch_scc1 g_help_end")
for st in range(9):
    if ("w2", st) not in q2: issue2(st); q2.extend([("w2", st)]*6)
role_g2.g2_helper_loop(a, put2, q2)
a.label("g_help_end")
a("s_waitcnt vmcnt(0)")
S.flush()
a.label("k_wait"); a("s_waitcnt vmcnt(0)")
a.label("k_end"); a("s_endpgm")
hi = max(hi, va.hi)
out = hdr + "; @launch grid=(256,1,1) block=(512,1,1) lds=163840\n"
out += '.amdgcn_target "amdgcn-amd-amdhsa--gfx950"\n.text\n'
k = KN + "_kernel"
out += ".globl %s\n.p2align 8\n.type %s,@function\n%s:\n%s" % (k, k, k, a.text())
out += '.section .rodata,"a"\n.p2align 6\n' + kernel_desc(k, hi)
open(sys.argv[1], "w").write(out)
print("vgprs", hi, "lines", len(a.l))
```

```python
from gen_common import *
DBG = os.environ.get('DBG','').split(',')
G1_STAGE = 36864
G1_NB = 4
G1_MISC = G1_STAGE*G1_NB
S_RB, S_CB = 60, 61
S_ROT1 = 62
HST = os.environ.get('HST', 'none')

def g1_helper(a, va, stamps=False, hook=None, after_pre=None):
    m = va.mark()
    vXo = [va() for _ in range(4)]; vWo = [va() for _ in range(5)]; t0 = va(); t1 = va(); t2 = va()
    sH = S_T; sA = S_T+1; sXs = S_T+2; sWs = S_T+3; sM = S_T+4; sK = S_ROT1
    a("s_sub_u32 s%d, s%d, 4" % (sH, S_WAVE))
    a("s_lshl_b32 s%d, s%d, 7" % (sA, S_RB))
    a("s_lshl_b32 s%d, s%d, 5" % (sM, sH))
    a("s_add_u32 s%d, s%d, s%d" % (sA, sA, sM))
    a("v_lshrrev_b32 %s, 3, v0" % vr(t0))
    a("v_and_b32 %s, 7, v0" % vr(t1))
    for i in range(4):
        a("v_add_u32 %s, %d, %s" % (vr(t2), 8*i, vr(t0)))
        a("v_bfe_u32 %s, %s, 1, 3" % (vr(vXo[i]), vr(t2)))
        a("v_xor_b32 %s, %s, %s" % (vr(vXo[i]), vr(vXo[i]), vr(t1)))
        a("v_lshlrev_b32 %s, 4, %s" % (vr(vXo[i]), vr(vXo[i])))
        a("v_add_u32 %s, s%d, %s" % (vr(t2), sA, vr(t2)))
        a("v_mul_u32_u24 %s, 1280, %s" % (vr(t2), vr(t2)))
        a("v_add_u32 %s, %s, %s" % (vr(vXo[i]), vr(vXo[i]), vr(t2)))
        if i: a("v_subrev_u32 %s, %d, %s" % (vr(vXo[i]), 1024*i, vr(vXo[i])))
    a("s_mul_i32 s%d, s%d, 320" % (sA, sH))
    a("s_mul_i32 s%d, s%d, 320" % (sM, S_CB))
    for i in range(5):
        a("v_add_u32 %s, s%d, v0" % (vr(t0), sA))
        if i: a("v_add_u32 %s, %d, %s" % (vr(t0), 64*i, vr(t0)))
        a("v_mul_u32_u24 %s, 3277, %s" % (vr(t1), vr(t0)))
        a("v_lshrrev_b32 %s, 16, %s" % (vr(t1), vr(t1)))
        a("v_mul_u32_u24 %s, 20, %s" % (vr(t2), vr(t1)))
        a("v_sub_u32 %s, %s, %s" % (vr(t0), vr(t0), vr(t2)))
        a("v_bfe_u32 %s, %s, 3, 1" % (vr(t2), vr(t1)))
        a("v_lshlrev_b32 %s, 1, %s" % (vr(t2), vr(t2)))
        a("v_xor_b32 %s, %s, %s" % (vr(t0), vr(t0), vr(t2)))
        a("v_lshlrev_b32 %s, 4, %s" % (vr(t0), vr(t0)))
        a("v_mul_u32_u24 %s, 3456, %s" % (vr(t1), vr(t1)))
        a("v_add3_u32 %s, %s, %s, s%d" % (vr(vWo[i]), vr(t0), vr(t1), sM))
        if 0 < i < 4: a("v_subrev_u32 %s, %d, %s" % (vr(vWo[i]), 1024*i, vr(vWo[i])))
    a("s_lshl_b32 s%d, s%d, 12" % (sA, sH))
    a("s_mul_i32 s%d, s%d, 5120" % (sM, sH))
    a("s_add_u32 s%d, s%d, 16384" % (sM, sM))
    def issue(st):
        buf = (st % G1_NB)*G1_STAGE
        if st:
            a("s_add_u32 s%d, s%d, 1" % (sK, sK))
            a("s_cmp_eq_u32 s%d, 10" % sK)
            a("s_cselect_b32 s%d, 0, s%d" % (sK, sK))
        a("s_lshl_b32 s%d, s%d, 7" % (sXs, sK))
        a("s_mul_i32 s%d, s%d, %d" % (sWs, sK, 64*3456))
        a("s_add_u32 m0, s%d, %d" % (sA, buf))
        a("s_nop 0")
        for i in range(4):
            a("buffer_load_dwordx4 %s, s[%d:%d], s%d offen offset:%d lds" % (vr(vXo[i]), SRD_X, SRD_X+3, sXs, 1024*i))
        a("s_add_u32 m0, s%d, %d" % (sM, buf))
        a("s_nop 0")
        for i in range(4):
            a("buffer_load_dwordx4 %s, s[%d:%d], s%d offen offset:%d lds" % (vr(vWo[i]), SRD_W, SRD_W+3, sWs, 1024*i))
        a("s_add_u32 m0, s%d, %d" % (sM, buf+4096))
        a("s_nop 0")
        a("buffer_load_dwordx4 %s, s[%d:%d], s%d offen lds" % (vr(vWo[4]), SRD_W, SRD_W+3, sWs))
    if stamps: stamps(1)
    PRE = int(os.environ.get("G1PRE", "2"))
    AHEAD = int(os.environ.get("AHEAD", "3")); AH0 = int(os.environ.get("AH0", "4")); GRB = int(os.environ.get("GRB", "8"))
    q = []
    def iss(st): issue(st); q.extend([st]*9)
    for st in range(PRE): iss(st)
    nxt = PRE
    after_pre()
    for b in range(10):
        idx = max(i for i, t in enumerate(q) if t == b)
        a("s_waitcnt vmcnt(%d)" % (len(q) - 1 - idx))
        if stamps and b in (0, 1, 2, 3, 5, 7, 9): stamps({0:2, 1:3, 2:4, 3:5, 5:6, 7:7, 9:8}[b])
        a("s_barrier")
        while nxt <= min(9, b + (AHEAD if b >= AH0 else 2)): iss(nxt); nxt += 1
        if b == GRB:
            a("v_lshlrev_b32 %s, 4, v0" % vr(t0))
            a("s_lshl_b32 s%d, s%d, 10" % (sXs, S_RB)); a("s_add_u32 s%d, s%d, 0x%x" % (sXs, sXs, WS_ST))
            a("s_mul_i32 s%d, s%d, 1280" % (sWs, S_CB)); a("s_add_u32 s%d, s%d, 0x%x" % (sWs, sWs, WS_CS - 1024))
            a("s_lshl_b32 s%d, s%d, 10" % (S_T+5, sH)); a("s_add_u32 s%d, s%d, s%d" % (sWs, sWs, S_T+5))
            a("s_cmp_eq_u32 s%d, 0" % sH); a("s_cselect_b32 s%d, s%d, s%d" % (sWs, sXs, sWs))
            a("s_add_u32 m0, s%d, %d" % (S_T+5, G1_MISC))
            a("s_nop 0")
            a("buffer_load_dwordx4 %s, s[%d:%d], s%d offen sc1 lds" % (vr(t0), SRD_WS, SRD_WS+3, sWs))
            q.append("gr")
        if hook is not None: q.extend(hook(b))
    idx = q.index("gr")
    a("s_waitcnt vmcnt(%d)" % (len(q) - 1 - idx))
    a("s_barrier")

def g1_compute(a, va, stats_wait=None, sc="", stamps=False, vT=None):
    m = va.mark()
    acc = [[va(4, 4) for t in range(4)] for j in range(5)]
    xf = [[va(4, 4) for t in range(4)] for b in range(2)]
    wf = [[va(4, 4) for j in range(5)] for b in range(2)]
    cs = [[va(4, 4) for k in range(2)] for j in range(5)]
    vN = va()
    vX = [[va() for h in range(2)] for s in range(2)]
    vW = [[[va() for h in range(2)] for s in range(2)] for k in range(3)]
    st = [va(2) for t in range(4)]
    t0, t1, t2, t3 = va(), va(), va(), va()
    sMP, sFP, sOne, sA = S_T, S_T+1, S_T+2, S_T+3
    a("s_lshr_b32 s%d, s%d, 1" % (sMP, S_WAVE))
    a("s_and_b32 s%d, s%d, 1" % (sFP, S_WAVE))
    a("v_and_b32 %s, 15, v0" % vr(t0))
    a("v_lshrrev_b32 %s, 4, v0" % vr(t1))
    a("v_lshrrev_b32 %s, 1, %s" % (vr(t2), vr(t0)))
    a("v_xor_b32 %s, %s, %s" % (vr(t2), vr(t2), vr(t1)))
    a("v_lshlrev_b32 %s, 4, %s" % (vr(t2), vr(t2)))
    a("v_lshl_add_u32 %s, %s, 7, %s" % (vr(t2), vr(t0), vr(t2)))
    a("s_lshl_b32 s%d, s%d, 13" % (sA, sMP))
    a("v_add_u32 %s, s%d, %s" % (vr(t2), sA, vr(t2)))
    a("s_lshl_b32 s%d, s%d, 6" % (sA, sMP))
    a("v_xor_b32 %s, s%d, %s" % (vr(vX[0][0]), sA, vr(t2)))
    a("v_xor_b32 %s, 64, %s" % (vr(vX[0][1]), vr(vX[0][0])))
    for h in range(2): a("v_add_u32 %s, %d, %s" % (vr(vX[1][h]), 2*G1_STAGE, vr(vX[0][h])))
    a("v_lshrrev_b32 %s, 2, %s" % (vr(t2), vr(t0)))
    a("v_lshl_add_u32 %s, %s, 3, %s" % (vr(t2), vr(t1), vr(t2)))
    a("v_mul_u32_u24 %s, 320, %s" % (vr(t2), vr(t2)))
    a("v_and_b32 %s, 3, v0" % vr(t3))
    a("v_lshl_add_u32 %s, %s, 3, %s" % (vr(t2), vr(t3), vr(t2)))
    a("s_mul_i32 s%d, s%d, 10240" % (sA, sMP))
    a("s_add_u32 s%d, s%d, 16384" % (sA, sA))
    a("v_add_u32 %s, s%d, %s" % (vr(t2), sA, vr(t2)))
    a("v_and_b32 %s, 1, %s" % (vr(t3), vr(t1)))
    a("v_lshlrev_b32 %s, 5, %s" % (vr(t3), vr(t3)))
    a("s_mul_i32 s%d, s%d, 192" % (sA, sFP))
    a("v_add3_u32 %s, %s, s%d, %s" % (vr(vW[0][0][0]), vr(t2), sA, vr(t3)))
    a("v_sub_u32 %s, %s, %s" % (vr(vW[1][0][0]), vr(t2), vr(t3)))
    a("v_add_u32 %s, s%d, %s" % (vr(vW[1][0][0]), sA, vr(vW[1][0][0])))
    a("s_lshl_b32 s%d, s%d, 5" % (sA, sFP))
    a("v_xor_b32 %s, s%d, %s" % (vr(t3), sA, vr(t3)))
    a("v_add3_u32 %s, %s, %s, 64" % (vr(vW[2][0][0]), vr(t2), vr(t3)))
    a("v_add_u32 %s, 64, %s" % (vr(vW[2][0][0]), vr(vW[2][0][0])))
    a("s_mul_i32 s%d, s%d, -20480" % (sA, sMP))
    a("s_add_u32 s%d, s%d, 10240" % (sA, sA))
    for k in range(3):
        a("v_add_u32 %s, s%d, %s" % (vr(vW[k][0][1]), sA, vr(vW[k][0][0])))
        for h in range(2): a("v_add_u32 %s, %d, %s" % (vr(vW[k][1][h]), 2*G1_STAGE, vr(vW[k][0][h])))
    sSkip = S_T+6
    a("s_cmp_eq_u32 s%d, 10" % S_CB)
    a("s_cselect_b32 s%d, s%d, 0" % (sSkip, sFP))
    def stats_load():
        L = []
        L.append("s_lshl_b32 s%d, s%d, 1" % (sA, S_RB))
        L.append("s_add_u32 s%d, s%d, s%d" % (sA, sA, sMP))
        L.append("s_lshl_b32 s%d, s%d, 9" % (sA, sA))
        L.append("s_add_u32 s%d, s%d, 0x%x" % (sA, sA, WS_ST))
        L.append("v_lshlrev_b32 %s, 3, %s" % (vr(t2), vr(t0)))
        for t in range(4):
            L.append("buffer_load_dwordx2 %s, %s, s[%d:%d], s%d offen offset:%d sc1" % (vr(st[t], 2), vr(t2), SRD_WS, SRD_WS+3, sA, 128*t))
        L.append("s_mul_i32 s%d, s%d, 1280" % (sA, S_CB))
        L.append("s_add_u32 s%d, s%d, 0x%x" % (sA, sA, WS_CS))
        L.append("s_lshl_b32 s%d, s%d, 7" % (S_T+4, sFP))
        L.append("s_add_u32 s%d, s%d, s%d" % (S_T+4, S_T+4, sA))
        L.append("s_mul_i32 s%d, s%d, 768" % (S_T+5, sFP))
        L.append("s_add_u32 s%d, s%d, s%d" % (sA, sA, S_T+5))
        L.append("s_lshl_b32 s%d, s%d, 8" % (S_T+5, sSkip))
        L.append("s_sub_u32 s%d, s%d, s%d" % (S_T+5, sA, S_T+5))
        L.append("v_lshlrev_b32 %s, 5, %s" % (vr(t3), vr(t1)))
        for j in range(5):
            sb = S_T+4 if j == 4 else (sA if j < 2 else S_T+5)
            for k in range(2):
                L.append("buffer_load_dwordx4 %s, %s, s[%d:%d], s%d offen offset:%d sc1" % (vr(cs[j][k], 4), vr(t3), SRD_WS, SRD_WS+3, sb, 128*j + 16*k))
        return L
    def loads(n):
        s, h = n >> 1, n & 1
        b = n & 1
        buf = s % G1_NB; se = buf >> 1; off = (buf & 1)*G1_STAGE
        L = []
        for t in range(4):
            L.append("ds_read_b128 %s, %s offset:%d" % (vr(xf[b][t], 4), vr(vX[se][h]), off + 2048*t))
        for j in range(5):
            k = 2 if j == 4 else (j & 1)
            o = off + (0 if j == 4 else 32*j)
            for e in range(2):
                L.append("ds_read_b64_tr_b16 %s, %s offset:%d" % (vr(wf[b][j]+2*e, 2), vr(vW[k][se][h]), o + 1280*e))
        return L
    g0, g1, g2, g3 = va(), va(), va(), va()
    a("s_lshl_b32 s%d, s%d, 9" % (sA, sMP))
    a("v_lshlrev_b32 %s, 3, %s" % (vr(g3), vr(t0)))
    a("v_add_u32 %s, s%d, %s" % (vr(g3), sA, vr(g3)))
    a("v_add_u32 %s, %d, %s" % (vr(g3), G1_MISC, vr(g3)))
    a("v_lshlrev_b32 %s, 5, %s" % (vr(t3), vr(t1)))
    a("v_add_u32 %s, %d, %s" % (vr(t3), G1_MISC + 1024, vr(t3)))
    a("s_lshl_b32 s%d, s%d, 7" % (sA, sFP)); a("v_add_u32 %s, s%d, %s" % (vr(g0), sA, vr(t3)))
    a("s_mul_i32 s%d, s%d, 768" % (sA, sFP)); a("v_add_u32 %s, s%d, %s" % (vr(g1), sA, vr(t3)))
    a("s_lshl_b32 s%d, s%d, 8" % (sA, sSkip)); a("v_subrev_u32 %s, s%d, %s" % (vr(g2), sA, vr(g1)))
    GL = ["ds_read_b64 %s, %s offset:%d" % (vr(st[t], 2), vr(g3), 128*t) for t in range(4)]
    for j in (4, 0, 1, 2, 3):
        for k in range(2):
            GL.append("ds_read_b128 %s, %s offset:%d" % (vr(cs[j][k], 4), vr(g0 if j == 4 else (g1 if j < 2 else g2)), 128*j + 16*k))
    u0, u1, u2, e3 = va(), va(), va(), va()
    a("v_lshlrev_b32 %s, 4, v0" % vr(e3))
    sB = 68; sC = 69; sE = 71
    a("s_lshl_b32 s%d, s%d, 1" % (sA, S_RB))
    a("s_add_u32 s%d, s%d, s%d" % (sA, sA, sMP))
    a("s_mul_i32 s%d, s%d, %d" % (sA, sA, 4*H_MT_STRIDE))
    a("s_mul_i32 s%d, s%d, 5120" % (sB, S_CB))
    a("s_add_u32 s%d, s%d, s%d" % (sA, sA, sB))
    a("s_mul_i32 s%d, s%d, 3072" % (sB, sFP))
    a("s_add_u32 s%d, s%d, s%d" % (sB, sB, sA))
    a("s_mul_i32 s%d, s%d, %d" % (sC, sFP, 2*H_MT_STRIDE))
    a("s_add_u32 s%d, s%d, s%d" % (sC, sC, sA))
    a("s_lshl_b32 s%d, s%d, 12" % (S_T+7, sMP))
    a("s_add_u32 s%d, s%d, %d" % (S_T+7, S_T+7, G1_MISC + 4096))
    a("v_add_u32 %s, s%d, %s" % (vr(u0), S_T+7, vr(e3)))
    a("s_lshl_b32 s%d, s%d, 3" % (S_T+7, sFP)); a("v_add_u32 %s, s%d, %s" % (vr(u1), S_T+7, vr(u0)))
    a("s_lshl_b32 s%d, s%d, 11" % (S_T+7, sFP)); a("v_add_u32 %s, s%d, %s" % (vr(u0), S_T+7, vr(u0)))
    a("v_mov_b32 %s, %d" % (vr(u2), G1_MISC + 12288)); a("v_mov_b32 %s, 0" % vr(t2))
    a("ds_write_b32 %s, %s" % (vr(u2), vr(t2)))
    if stamps: stamps(1)
    a("s_barrier")
    if stamps: stamps(2)
    for x in loads(0): a(x)
    for n in range(20):
        if stamps and n == 10: stamps(3)
        s, h = n >> 1, n & 1; b = n & 1
        if h == 1 and s+1 <= 9:
            a("s_waitcnt lgkmcnt(0)")
            a("s_barrier")
        if n == 19: a("s_barrier")
        L = loads(n+1) if n+1 < 20 else GL
        if n == 10: nonce_issue(a, vN, t2)
        if 'nods' in DBG: L = []
        if 'notr' in DBG: L = L[:4]
        if 'nox' in DBG: L = L[4:]
        li = 0
        G = []
        a("s_waitcnt lgkmcnt(8)")
        for j in range(5):
            if j == 1: a("s_waitcnt lgkmcnt(%d)" % min(li, 15))
            for t in range(4):
                c = "0" if n == 0 else vr(acc[j][t], 4)
                if 'nomfma' not in DBG: a("v_mfma_f32_16x16x32_bf16 %s, %s, %s, %s" % (vr(acc[j][t], 4), vr(wf[b][j], 4), vr(xf[b][t], 4), c))
                if li < len(L): a(L[li]); li += 1
                for _ in range(2):
                    if G:
                        x = G.pop(0); a(x)
                        if x.startswith("buffer"): break
    if stamps: stamps(4)
    a("s_waitcnt vmcnt(0)")
    nonce_finish(a, vN, t2)
    a("s_waitcnt lgkmcnt(0)")
    retry = a.newlabel("g1_retry"); chk = a.newlabel("g1_chk"); ok = a.newlabel("g1_ok")
    a.label(chk)
    tags_check(a, [st[t]+1 for t in range(4)] + [cs[j][k]+2 for j in range(5) for k in range(2)], t2, t3, retry)
    a("s_branch %s" % ok)
    a.label(retry)
    for x in stats_load(): a(x)
    a("s_waitcnt vmcnt(0)")
    a("s_branch %s" % chk)
    a.label(ok)
    if stamps: stamps(5)
    for t in range(4):
        a("v_and_b32 %s, 0xffff0000, %s" % (vr(st[t]+1), vr(st[t])))
        a("v_rcp_f32 %s, %s" % (vr(st[t]+1), vr(st[t]+1)))
        a("v_lshlrev_b32 %s, 16, %s" % (vr(st[t]), vr(st[t])))
        a("v_mul_f32 %s, -%s, %s" % (vr(st[t]), vr(st[t]), vr(st[t]+1)))
    pk = [xf[0][0], xf[0][1], xf[0][2], xf[0][3], xf[1][0], xf[1][1]]
    tp = [xf[1][2], xf[1][2]+2, xf[1][3], xf[1][3]+2]
    skip = a.newlabel("g1_skip")
    cnt = [0]
    def cvt(j, t, dst):
        for k in range(2):
            T = tp[k + 2*(j & 1)]
            a("v_pk_mul_f32 %s, %s, %s op_sel_hi:[1,0]" % (vr(T, 2), vr(cs[j][k], 2), vr(st[t], 2)))
            a("v_pk_fma_f32 %s, %s, %s, %s op_sel:[0,1,0] op_sel_hi:[1,1,1]" % (vr(T, 2), vr(acc[j][t]+2*k, 2), vr(st[t], 2), vr(T, 2)))
            a("v_cvt_pk_bf16_f32 %s, %s, %s" % (vr(dst+k), vr(T), vr(T+1)))
            a("v_pk_max_i16 %s, %s, 0" % (vr(dst+k), vr(dst+k)))
    def pair(pr):
        for t in range(4):
            d = pk[cnt[0] % len(pk)]; cnt[0] += 1
            cvt(2*pr, t, d); cvt(2*pr+1, t, d+2)
            a("s_add_u32 s%d, s%d, %d" % (sA, sB, t*H_MT_STRIDE))
            a("buffer_store_dwordx4 %s, %s, s[%d:%d], s%d offen offset:%d %s" % (vr(d, 4), vr(e3), SRD_WS, SRD_WS+3, sA, 1024*pr, sc))
    pair(0)
    for t in range(4):
        d = wf[0][t]
        cvt(4, t, d)
        a("ds_write_b64 %s, %s offset:%d" % (vr(u1), vr(d, 2), 1024*t))
    a("s_cmp_lg_u32 s%d, 0" % (S_T+6))
    a("s_cbranch_scc1 %s" % skip)
    pair(1)
    a.label(skip)
    a("s_waitcnt lgkmcnt(0)")
    a("s_barrier")
    for k in range(2): a("ds_read_b128 %s, %s offset:%d" % (vr(wf[1][k], 4), vr(u0), 1024*k))
    for k in range(2):
        a("s_waitcnt lgkmcnt(%d)" % (1-k))
        a("buffer_store_dwordx4 %s, %s, s[%d:%d], s%d offen offset:2048 %s" % (vr(wf[1][k], 4), vr(e3), SRD_WS, SRD_WS+3, sC, sc))
        if k == 0: a("s_add_u32 s%d, s%d, %d" % (sC, sC, H_MT_STRIDE))
    if stamps: stamps(6)
    a("s_barrier")
    if HST == "htouch":
        a("v_mul_u32_u24 %s, %d, %s" % (vr(t2), H_MT_STRIDE, vr(t1)))
        a("v_lshl_add_u32 %s, %s, 7, %s" % (vr(t2), vr(t0), vr(t2)))
        a("v_lshrrev_b32 %s, 3, %s" % (vr(t3), vr(t0)))
        a("s_lshl_b32 s%d, s%d, 30" % (sA, sSkip))
        a("v_mul_lo_u32 %s, %s, s%d" % (vr(u0), vr(t3), sA))
        a("v_add3_u32 %s, %s, %s, s%d" % (vr(vT[0]), vr(t2), vr(u0), sB))
        a("v_mul_u32_u24 %s, %d, %s" % (vr(t3), H_MT_STRIDE, vr(t3)))
        a("v_and_b32 %s, 7, v0" % vr(t2))
        a("v_lshl_add_u32 %s, %s, 7, %s" % (vr(t2), vr(t2), vr(t3)))
        a("s_sub_u32 s%d, s%d, %d" % (sC, sC, H_MT_STRIDE - 2048))
        a("v_add_u32 %s, s%d, %s" % (vr(vT[1]), sC, vr(t2)))
    va.release(m)
```

```python
from gen_common import *
DBG = os.environ.get('DBG','').split(',')
G2_STAGE = 24576
G2_NB = 6
G2_OUT = G2_STAGE*G2_NB
S_RB, S_DB = 60, 63
S_ROT2 = 65
DEPTH = int(os.environ.get('DEPTH', '6'))
ROT = 3

def g2_helper_setup(a, va):
    vO = va(); t0 = va(); t1 = va()
    sH = 68; sG = 69; sL = 70; sX = 71
    a("s_sub_u32 s%d, s%d, 4" % (sH, S_WAVE))
    a("v_lshrrev_b32 %s, 3, v0" % vr(t0))
    a("v_bfe_u32 %s, v0, 4, 2" % vr(t1))
    a("v_lshlrev_b32 %s, 1, %s" % (vr(t1), vr(t1)))
    a("v_and_b32 %s, 7, v0" % vr(vO))
    a("v_xor_b32 %s, %s, %s" % (vr(vO), vr(vO), vr(t1)))
    a("v_lshlrev_b32 %s, 4, %s" % (vr(vO), vr(vO)))
    a("v_mul_u32_u24 %s, 1280, %s" % (vr(t0), vr(t0)))
    a("v_add_u32 %s, %s, %s" % (vr(vO), vr(vO), vr(t0)))
    a("s_mul_i32 s%d, s%d, %d" % (sG, sH, 48*1280))
    a("s_lshl_b32 s%d, s%d, 7" % (sX, S_DB))
    a("s_add_u32 s%d, s%d, s%d" % (sG, sG, sX))
    a("s_mul_i32 s%d, s%d, %d" % (sL, sH, 48*128))
    sK = 59
    a("s_mul_i32 s%d, s%d, %d" % (sK, S_ROT2, 192*1280))
    regs = [[va(4, 4) for i in range(6)] for k in range(3)]
    vL = va()
    a("v_lshlrev_b32 %s, 4, v0" % vr(vL))
    a("v_add_u32 %s, s%d, %s" % (vr(vL), sL, vr(vL)))
    def adv(st):
        a("s_add_u32 s%d, s%d, %d" % (sX, sK, st*192*1280))
        a("s_cmp_ge_u32 s%d, %d" % (sX, 1728*1280))
        a("s_cselect_b32 s%d, %d, 0" % (sH, 1728*1280))
        a("s_sub_u32 s%d, s%d, s%d" % (sX, sX, sH))
        a("s_add_u32 s%d, s%d, s%d" % (sX, sX, sG))
    def issue(st, lo=0, hi=6):
        buf = ((st + ROT) % G2_NB)*G2_STAGE
        adv(st)
        if lo: a("s_add_u32 s%d, s%d, %d" % (sX, sX, 10240*lo))
        for i in range(lo, hi):
            if st < 6:
                a("s_add_u32 m0, s%d, %d" % (sL, buf + 1024*i))
                a("s_nop 0")
                a("buffer_load_dwordx4 %s, s[%d:%d], s%d offen lds" % (vr(vO), SRD_W2, SRD_W2+3, sX))
            else:
                a("buffer_load_dwordx4 %s, %s, s[%d:%d], s%d offen" % (vr(regs[st-6][i], 4), vr(vO), SRD_W2, SRD_W2+3, sX))
            if i < hi-1: a("s_add_u32 s%d, s%d, 10240" % (sX, sX))
    def put(st):
        buf = ((st + ROT) % G2_NB)*G2_STAGE
        a("v_add_u32 %s, %d, %s" % (vr(t0), buf, vr(vL)))
        for i in range(6): a("ds_write_b128 %s, %s offset:%d" % (vr(t0), vr(regs[st-6][i], 4), 1024*i))
    return issue, put

def g2_helper_loop(a, put, q, late=None):
    def after(st): return len(q) - 1 - max(i for i, t in enumerate(q) if t == ("w2", st))
    PUT0 = int(os.environ.get("PUT0", "2"))
    for b in range(1, 9):
        if b < 6: a("s_waitcnt vmcnt(%d)" % after(b))
        else: a("s_waitcnt lgkmcnt(0)")
        a("s_barrier")
        if late: late(b)
        if PUT0 <= b < PUT0 + 3:
            a("s_waitcnt vmcnt(%d)" % after(b - PUT0 + 6))
            put(b - PUT0 + 6)
    a("s_barrier")

def g2_compute(a, va, h_wait=None, xa_poll=None, sc="", stamps=None, mid=None):
    m = va.mark()
    acc4 = [[va(4, 4) for j in range(4)] for t in range(4)]
    wf = [[va(4, 4) for j in range(4)] for b in range(2)]
    hr = [[va(4, 4) for t in range(4)] for d in range(DEPTH)]
    xa = [va(4, 4) for j in range(4)]
    SE = [va(4, 4) for e in range(2)]
    vW = [[va() for j in range(4)] for k in range(3)]
    vHt = [va() for t in range(4)]
    vH = va(); vXA = va(); t0, t1, t2, t3 = va(), va(), va(), va()
    vP = va()
    sMH, sKH = S_T, S_T+1; sA = S_T+2; sXA = S_T+3; sB0, sK, sHo, sWF = S_T+5, S_T+6, S_T+7, 68
    a("s_and_b32 s%d, s%d, 1" % (sMH, S_WAVE))
    a("s_lshr_b32 s%d, s%d, 1" % (sKH, S_WAVE))
    a("s_lshl_b32 s%d, s%d, 1" % (sWF, sMH)); a("s_add_u32 s%d, s%d, s%d" % (sWF, sWF, sKH))
    a("v_and_b32 %s, 15, v0" % vr(t0))
    a("v_lshrrev_b32 %s, 4, v0" % vr(t1))
    xf = [hr[DEPTH-1][t] for t in range(4)]
    a("v_mul_u32_u24 %s, 1280, %s" % (vr(t2), vr(t0)))
    a("v_lshl_add_u32 %s, %s, 4, %s" % (vr(t2), vr(t1), vr(t2)))
    a("s_lshl_b32 s%d, s%d, 1" % (sA, S_RB)); a("s_add_u32 s%d, s%d, s%d" % (sA, sA, sMH))
    a("s_mul_i32 s%d, s%d, %d" % (sXA, sA, 64*1280))
    a("s_lshl_b32 s%d, s%d, 1" % (sWF+1, S_DB)); a("s_add_u32 s%d, s%d, s%d" % (sWF+1, sWF+1, sKH)); a("s_lshl_b32 s%d, s%d, 6" % (sWF+1, sWF+1))
    a("s_add_u32 s%d, s%d, s%d" % (sXA, sXA, sWF+1))
    for t in range(4):
        a("buffer_load_dwordx4 %s, %s, s[%d:%d], s%d offen" % (vr(xf[t], 4), vr(t2), SRD_X, SRD_X+3, sXA))
        if t < 3: a("s_add_u32 s%d, s%d, %d" % (sXA, sXA, 16*1280))
    vQ = va()
    a("v_lshrrev_b32 %s, 2, %s" % (vr(t2), vr(t0)))
    a("v_lshl_add_u32 %s, %s, 2, %s" % (vr(t2), vr(t1), vr(t2)))
    a("v_bfe_u32 %s, %s, 1, 2" % (vr(t3), vr(t2)))
    a("v_lshlrev_b32 %s, 7, %s" % (vr(t2), vr(t2)))
    a("v_and_b32 %s, 3, v0" % vr(vH))
    a("v_lshl_add_u32 %s, %s, 3, %s" % (vr(t2), vr(vH), vr(t2)))
    a("s_lshl_b32 s%d, s%d, 12" % (sA, sKH))
    a("v_add_u32 %s, s%d, %s" % (vr(t2), sA, vr(t2)))
    for j in range(4):
        a("v_xor_b32 %s, %d, %s" % (vr(vH), j, vr(t3)))
        a("v_lshl_add_u32 %s, %s, 5, %s" % (vr(vW[0][j]), vr(vH), vr(t2)))
        for k in (1, 2): a("v_add_u32 %s, %d, %s" % (vr(vW[k][j]), 2*k*G2_STAGE, vr(vW[0][j])))
    a("v_lshlrev_b32 %s, 4, v0" % vr(vH))
    a("s_lshl_b32 s%d, s%d, 10" % (sA, sKH))
    a("v_add_u32 %s, s%d, %s" % (vr(vHt[0]), sA, vr(vH)))
    for t in range(1, 4): a("v_add_u32 %s, %d, %s" % (vr(vHt[t]), t*H_MT_STRIDE, vr(vHt[0])))
    a("s_lshl_b32 s%d, s%d, 1" % (sA, S_RB))
    a("s_add_u32 s%d, s%d, s%d" % (sA, sA, sMH))
    a("s_mul_i32 s%d, s%d, %d" % (sB0, sA, 4*H_MT_STRIDE))
    a("s_mul_i32 s%d, s%d, 6144" % (sK, S_ROT2))
    a("s_add_u32 s%d, s%d, s%d" % (sHo, sB0, sK))
    for e in range(2):
        a("v_lshlrev_b32 %s, 3, %s" % (vr(t2), vr(t1)))
        a("v_sub_u32 %s, %s, %s" % (vr(t2), vr(t0), vr(t2)))
        a("v_add_u32 %s, %d, %s" % (vr(t2), 16*e, vr(t2)))
        a("v_and_b32 %s, 1, %s" % (vr(t3), vr(t2)))
        a("v_lshlrev_b32 %s, 4, %s" % (vr(t3), vr(t3)))
        a("v_mov_b32 %s, 0x3f80" % vr(vXA))
        a("v_lshlrev_b32 %s, %s, %s" % (vr(t3), vr(t3), vr(vXA)))
        a("v_lshrrev_b32 %s, 1, %s" % (vr(t2), vr(t2)))
        for p in range(4):
            a("v_cmp_eq_u32 vcc, %d, %s" % (p, vr(t2)))
            a("s_nop 1")
            a("v_cndmask_b32 %s, 0, %s, vcc" % (vr(SE[e]+p), vr(t3)))
    a("v_lshlrev_b32 %s, 12, %s" % (vr(vXA), vr(t0)))
    a("v_lshl_add_u32 %s, %s, 4, %s" % (vr(vXA), vr(t1), vr(vXA)))
    a("s_lshl_b32 s%d, s%d, 2" % (sXA, S_RB)); a("s_add_u32 s%d, s%d, s%d" % (sXA, sXA, sWF)); a("s_lshl_b32 s%d, s%d, 6" % (sXA, sXA))
    a("s_lshl_b32 s%d, s%d, 18" % (sWF+1, S_DB)); a("s_add_u32 s%d, s%d, s%d" % (sXA, sXA, sWF+1))
    a("s_add_u32 s%d, s%d, 0x%x" % (sXA, sXA, WS_AT))
    q = []
    NS = 27
    def hload(n):
        L = []
        if n:
            L.append("s_add_u32 s%d, s%d, 2048" % (sK, sK))
            if n % 3 == 0:
                L.append("s_cmp_eq_u32 s%d, %d" % (sK, H_MT_STRIDE))
                L.append("s_cselect_b32 s%d, 0, s%d" % (sK, sK))
            L.append("s_add_u32 s%d, s%d, s%d" % (sHo, sB0, sK))
        for t in range(4):
            L.append(("buffer_load_dwordx4 %s, %s, s[%d:%d], s%d offen %s" % (vr(hr[n % DEPTH][t], 4), vr(vHt[t]), SRD_WS, SRD_WS+3, sHo, sc), ("h", n, t)))
        return L
    def emit(x):
        if isinstance(x, tuple): a(x[0]); q.append(x[1])
        else: a(x)
    def wait_for(tag):
        idx = max(i for i, tg in enumerate(q) if tg == tag)
        return len(q) - 1 - idx
    def xaload():
        L = []
        for j in range(4):
            L.append(("buffer_load_dwordx4 %s, %s, s[%d:%d], s%d offen %s" % (vr(xa[j], 4), vr(vXA), SRD_WS, SRD_WS+3, sXA, sc), ("xa",)))
            L.append("s_add_u32 s%d, s%d, 0x10000" % (sXA, sXA) if j < 3 else "s_sub_u32 s%d, s%d, 0x30000" % (sXA, sXA))
        return L
    def wloads(n):
        st, s = divmod(n, 3); buf = (st + ROT) % G2_NB
        L = []
        for j in range(4):
            for e in range(2):
                L.append("ds_read_b64_tr_b16 %s, %s offset:%d" % (vr(wf[n & 1][j]+2*e, 2), vr(vW[buf >> 1][j]), (buf & 1)*G2_STAGE + 8192*s + 2048*e))
        return L
    nm = mid(vP, vQ, t3)
    a("s_barrier")
    if stamps: stamps(13)
    nm += h_wait[0](vP, vQ)
    for x in wloads(0): a(x)
    i1_ = a.newlabel("g2_i1"); id_ = a.newlabel("g2_id")
    a("s_waitcnt vmcnt(%d)" % nm)
    a("s_cmp_lg_u32 s%d, 0" % sKH); a("s_cbranch_scc1 %s" % i1_)
    for kh in range(2):
        if kh: a.label(i1_)
        for e in range(2):
            for t in range(4):
                a("v_mfma_f32_16x16x32_bf16 %s, %s, %s, 0" % (vr(acc4[t][2*kh+e], 4), vr(SE[e], 4), vr(xf[t], 4)))
                for k in range(4): a("v_mov_b32 %s, 0" % vr(acc4[t][2*(1-kh)+e]+k))
        if kh == 0: a("s_branch %s" % id_)
    a.label(id_)
    if stamps: stamps(11)
    h_wait[1](vP, vQ)
    if stamps: stamps(1)
    RAMP = int(os.environ.get("RAMP", "4"))
    for n in range(RAMP):
        for x in hload(n): emit(x)
    nxt = RAMP
    N_XA = int(os.environ.get('NXA', '24')); N_POLL = int(os.environ.get('NPOLL', '21'))
    for n in range(NS):
        b = n & 1
        if stamps and n in (1, 4, 7, 10, 14, 20): stamps({1:2, 4:3, 7:4, 10:5, 14:6, 20:7}[n])
        a("s_waitcnt lgkmcnt(0)")
        if (n + 1) % 3 == 0 and n + 1 < NS: a("s_barrier")
        L = wloads(n+1) if n + 1 < NS else []
        G = []
        for _ in range(2):
            if nxt <= min(n - 1 + DEPTH, NS - 1): G += hload(nxt); nxt += 1
        if n == N_POLL: G = G + xa_poll.issue(vP, t3)
        if n == N_XA:
            assert not G
            a("s_waitcnt vmcnt(%d)" % wait_for(("poll",)))
            G = G + xaload()
        k = 0
        for j in range(4):
            for t in range(4):
                if j == 0: a("s_waitcnt vmcnt(%d)" % wait_for(("h", n, t)))
                c = vr(acc4[t][j], 4)
                a("v_mfma_f32_16x16x32_bf16 %s, %s, %s, %s" % (vr(acc4[t][j], 4), vr(wf[b][j], 4), vr(hr[n % DEPTH][t], 4), c))
                if k < len(L): a(L[k])
                if k >= 8 or not L or len(G) > 14:
                    for _ in range(2):
                        if G:
                            x = G.pop(0); emit(x)
                            if isinstance(x, tuple): break
                k += 1
        for x in G: emit(x)
    if stamps: stamps(8)
    XB = 3*G2_STAGE
    a("s_lshl_b32 s%d, s%d, 13" % (sA, S_WAVE))
    a("s_add_u32 s%d, s%d, %d" % (sA, sA, XB))
    a("v_add_u32 %s, s%d, %s" % (vr(t2), sA, vr(vH)))
    a("v_xor_b32 %s, %d, %s" % (vr(vHt[0]), 2 << 13, vr(vH)))
    a("s_lshl_b32 s%d, s%d, 13" % (sA, S_WAVE))
    a("v_xor_b32 %s, s%d, %s" % (vr(vHt[0]), sA, vr(vHt[0])))
    a("v_add_u32 %s, %d, %s" % (vr(vHt[0]), XB, vr(vHt[0])))
    acc = [[hr[0][0] + 16*t + 4*j for j in range(4)] for t in range(2)]
    k1 = a.newlabel("g2_k1"); kd = a.newlabel("g2_kd")
    a("s_cmp_lg_u32 s%d, 0" % sKH); a("s_cbranch_scc1 %s" % k1)
    for kh in range(2):
        if kh: a.label(k1)
        for t in range(2):
            for j in range(4):
                a("ds_write_b128 %s, %s offset:%d" % (vr(t2), vr(acc4[2*(1-kh)+t][j], 4), 4096*t + 1024*j))
        a("s_waitcnt lgkmcnt(0)")
        a("s_barrier")
        for t in range(2):
            for j in range(4):
                a("ds_read_b128 %s, %s offset:%d" % (vr(acc[t][j], 4), vr(vHt[0]), 4096*t + 1024*j))
        a("s_waitcnt vmcnt(0)")
        xa_poll.finish(vP, t3, lambda: [emit(x) for x in xaload()])
        for e in range(2):
            for j in range(4):
                a("v_mfma_f32_16x16x32_bf16 %s, %s, %s, %s" % (vr(acc4[2*kh+e][j], 4), vr(xa[j], 4), vr(SE[e], 4), vr(acc4[2*kh+e][j], 4)))
        for t in range(2):
            for j in range(4):
                a("s_waitcnt lgkmcnt(%d)" % (7 - 4*t - j))
                for k in range(2):
                    a("v_pk_add_f32 %s, %s, %s" % (vr(acc[t][j]+2*k, 2), vr(acc[t][j]+2*k, 2), vr(acc4[2*kh+t][j]+2*k, 2)))
        if kh == 0: a("s_branch %s" % kd)
    a.label(kd)
    a("v_mul_u32_u24 %s, 1280, %s" % (vr(t2), vr(t0)))
    a("v_lshl_add_u32 %s, %s, 4, %s" % (vr(t2), vr(t1), vr(t2)))
    a("s_lshl_b32 s%d, s%d, 2" % (sA, S_RB))
    a("s_add_u32 s%d, s%d, s%d" % (sA, sA, sWF))
    a("s_mul_i32 s%d, s%d, %d" % (sA, sA, 32*1280))
    a("s_lshl_b32 s%d, s%d, 7" % (sXA, S_DB))
    a("s_add_u32 s%d, s%d, s%d" % (sA, sA, sXA))
    T = [wf[0][0], wf[0][0]+2, wf[0][1], wf[0][1]+2]
    F = [[wf[1][2*t+jj] for jj in range(2)] for t in range(2)]
    for t in range(2):
        for jj in range(2):
            for e in range(2):
                for k in range(2):
                    a("v_cvt_pk_bf16_f32 %s, %s, %s" % (vr(F[t][jj]+2*e+k), vr(acc[t][2*jj+e]+2*k), vr(acc[t][2*jj+e]+2*k+1)))
    for op in ("v_permlane32_swap_b32", "v_permlane16_swap_b32"):
        a("s_nop 1")
        for t in range(2):
            for jj in range(2):
                for k in range(2): a("%s %s, %s" % (op, vr(F[t][jj]+k), vr(F[t][jj]+2+k)))
    a("s_nop 1")
    for t in range(2):
        for jj in range(2):
            a("buffer_store_dwordx4 %s, %s, s[%d:%d], s%d offen offset:%d" % (vr(F[t][jj], 4), vr(t2), SRD_O, SRD_O+3, sA, 64*jj))
        if t == 0: a("s_add_u32 s%d, s%d, %d" % (sA, sA, 16*1280))
    va.release(m)
```

```python
import sys
from gen_common import *
import role_g1, role_g2, role_conv
from role_g1 import S_RB, S_CB, S_ROT1
from role_g2 import S_DB, S_ROT2
from role_conv import *
KN = "parallel_sum__ssm_conv_s4d__dense_activation_relu__prompt"
hdr = open("cdna_kernels/%s.s.ref" % KN).read().split("; Override launch")[0]
a = Asm()
S = Stamps(a, STAMPS, 0)
S2 = Stamps(a, STAMPS, 1)
a("s_cmp_ge_u32 s2, 256"); a("s_cbranch_scc1 k_end")
S.clear(); S(0)
load_args(a); wave_id(a, 1)
a("s_cmp_ge_u32 s2, 80"); a("s_cbranch_scc1 role_g")
hi = 0
va = VAlloc()
a("s_and_b32 s%d, s2, 7" % (S_T+2)); a("s_lshr_b32 s%d, s2, 3" % (S_T+3))
a("s_mul_i32 s%d, s%d, 10" % (S_CW, S_T+2)); a("s_add_u32 s%d, s%d, s%d" % (S_CW, S_CW, S_T+3))
a("s_or_b32 s%d, s2, s%d" % (S_T, S_WAVE))
a("s_memrealtime s[64:65]")
a("s_waitcnt lgkmcnt(0)")
a("s_cmp_lg_u32 s%d, 0" % S_T); a("s_cbranch_scc1 no_pub")
a("s_or_b32 s64, s64, 1")
a("v_mov_b32 v1, s64"); a("v_mov_b32 v2, 0")
a("s_mov_b64 exec, 1")
a("global_store_dword v2, v1, s[%d:%d] sc1" % (P_DBG, P_DBG+1))
a("s_mov_b64 exec, -1")
a.label("no_pub")
if os.environ.get("TW"):
    for i, p in enumerate((P_U, P_LOGA, P_AIM, P_CRE, P_CIM, P_W1, P_W2)): a("s_load_dword s%d, s[%d:%d], 0" % (69, p, p+1))
    for off in (WS_ST, WS_UT, WS_UT + 0x200000, WS_FL, WS_AT + 0x100000): a("s_load_dword s%d, s[%d:%d], 0x%x" % (69, P_WS, P_WS+1, off & 0xfffff) if off < 0x100000 else "s_mov_b32 s70, 0x%x\ns_load_dword s69, s[%d:%d], s70" % (off, P_WS, P_WS+1))
srd(a, SRD_X, P_U, X_BYTES); srd(a, SRD_WS, P_WS, 32 << 20); srd(a, SRD_W, P_W1, W_BYTES); srd(a, SRD_W2, P_W2, W_BYTES)
vN, vZ, vP = va(), va(), va()
a("s_and_b32 s%d, s2, 7" % (S_T+2)); a("s_lshr_b32 s%d, s2, 3" % (S_T+3))
a("s_lshl_b32 s64, s%d, 3" % (S_T+2)); a("s_add_u32 s64, s64, s%d" % (S_T+3)); a("s_lshl_b32 s64, s64, 3"); a("s_add_u32 s64, s64, s%d" % S_WAVE); a("s_lshl_b32 s64, s64, 2")
a("s_cmp_ge_u32 s2, 64"); a("s_cselect_b32 s64, 4096, s64")
par = [va() for _ in range(5)]
csr = va.mark(); va(36)
m0 = va.mark()
p1, p2 = producer_issue(a, va, 64)
m1 = va.mark(); va.release(par[0])
R = conv_issue_loads(a, va)
va.release(m1)
a("s_lshr_b32 s65, s%d, 1" % (S_T+2)); a("s_mul_i32 s65, s65, 7"); a("s_add_u32 s65, s65, s%d" % (S_T+3)); a("s_sub_u32 s65, s65, 3")
a("s_cmp_lt_u32 s%d, 3" % (S_T+3)); a("s_cselect_b32 s65, 99, s65")
a("s_cmp_lt_u32 s65, 27"); a("s_cselect_b32 s68, 1, 0")
a("s_sub_u32 s%d, 53, s65" % (S_T+4)); a("s_bitcmp1_b32 s2, 0"); a("s_cselect_b32 s65, s%d, s65" % (S_T+4))
a("s_cmp_eq_u32 s68, 0"); a("s_cselect_b32 s65, 0x10000, s65")
z = va(2); a("v_mov_b32 v%d, %d" % (z, XO + 1024)); a("v_mov_b32 v%d, 0" % (z+1))
a("ds_write_b32 v%d, v%d" % (z, z+1))
a("s_waitcnt vmcnt(4)")
S(1)
nonce_issue(a, vN, vZ)
m1 = va.mark(); va.release(csr)
cs1 = colsum_issue(a, va, 65)
assert va.mark() <= m0
va.release(m1)
def ncb():
    a("s_waitcnt vmcnt(5)")
    nonce_finish(a, vN, vZ)
a("s_cmp_ge_u32 s2, 64"); a("s_cbranch_scc1 no_p1")
p1(ncb)
S(2)
a("s_waitcnt lgkmcnt(0)")
a("s_barrier")
p2()
S(3)
a("s_branch p1_done")
a.label("no_p1")
ncb()
a("s_waitcnt lgkmcnt(0)")
a("s_barrier")
a.label("p1_done")
va.release(m0)
S(4)
a("s_mul_i32 s69, s%d, %d" % (S_WAVE, USTR)); a("s_add_u32 s69, s69, %d" % UB)
a("v_lshlrev_b32 v%d, 3, v0" % vZ); a("v_add_u32 v%d, s69, v%d" % (vZ, vZ))
z = va(2); a("v_mov_b32 v%d, 0" % z); a("v_mov_b32 v%d, 0" % (z+1))
a("s_mov_b32 exec_hi, 0x0fffffff")
a("ds_write_b64 v%d, v[%d:%d]" % (vZ, z, z+1))
a("s_mov_b32 exec_hi, -1")
va.release(m0)
FQ = os.environ.get("FQ", "16"); PQ = os.environ.get("PQ", "start"); CQ = os.environ.get("CQ", "e8")
def hooks(ps, w, t0, t1):
    if ps == 0 and str(w) == FQ:
        a("s_waitcnt vmcnt(0)")
        a("s_cmp_ge_u32 s2, 64"); a("s_cbranch_scc1 no_uf")
        a("s_lshl_b32 s69, s%d, 3" % S_WAVE); a("s_and_b32 s70, s2, 7"); a("s_add_u32 s69, s69, s70"); a("s_lshl_b32 s69, s69, 7")
        a("s_lshr_b32 s70, s2, 3"); a("s_lshl_b32 s70, s70, 2")
        a("s_add_u32 s69, s69, s70"); a("s_add_u32 s69, s69, 0x%x" % WS_UF)
        flag_store(a, 69, t0, t1)
        a.label("no_uf")
        a("s_cmp_eq_u32 s68, 0"); a("s_cbranch_scc1 no_cs1")
        cs1()
        a.label("no_cs1")
        S(5)
    if ps == 1 and str(w) == PQ:
        a("s_and_b32 s69, s2, 7"); a("s_lshl_b32 s69, s69, 10"); a("s_add_u32 s69, s69, 0x%x" % WS_UF)
        a("v_lshrrev_b32 %s, 3, v0" % vr(t0)); a("v_and_b32 v%d, 7, v0" % vZ)
        a("v_lshlrev_b32 v%d, 2, v%d" % (vZ, vZ)); a("v_lshl_add_u32 v%d, %s, 7, v%d" % (vZ, vr(t0), vZ))
        a("buffer_load_dword v%d, v%d, s[%d:%d], s69 offen sc1" % (vP, vZ, SRD_WS, SRD_WS+3))
    if ps == 1 and str(w) == CQ:
        a("s_waitcnt vmcnt(0)")
        a("v_cmp_ne_u32 vcc, s%d, v%d" % (S_NONCE, vP))
        a("s_mov_b32 s71, 0")
        a("s_cbranch_vccnz u_later")
        u_dma(t0)
        a("s_mov_b32 s71, 1")
        a("s_branch u_l1")
        a.label("u_later")
        a("buffer_load_dword v%d, v%d, s[%d:%d], s69 offen sc1" % (vP, vZ, SRD_WS, SRD_WS+3))
        a.label("u_l1")
    if ps == 2:
        a("s_cmp_eq_u32 s71, 1"); a("s_cbranch_scc1 u_l2")
        a("s_waitcnt vmcnt(0)")
        a("v_cmp_ne_u32 vcc, s%d, v%d" % (S_NONCE, vP))
        a("s_cbranch_vccnz u_l2")
        u_dma(t0)
        a("s_mov_b32 s71, 1")
        a.label("u_l2")
TCH = os.environ.get("TCH", "none")
G2X = int(os.environ.get("G2X", "1"))
FULLT = G2X or os.environ.get("XLOC")
def w2_touch(t0, t1):
    sk = a.newlabel("no_tch")
    a("s_cmp_ge_u32 s%d, 4" % S_WAVE); a("s_cbranch_scc1 %s" % sk)
    a("s_lshr_b32 s63, s2, 3"); a("s_lshl_b32 s63, s63, 2"); a("s_add_u32 s63, s63, s%d" % S_WAVE); a("s_mul_i32 s63, s63, 216")
    if FULLT:
        a("s_lshl_b32 s63, s63, 8")
        a("v_lshlrev_b32 %s, 7, v0" % vr(t0))
        a("s_mov_b32 exec_hi, 0x003fffff")
        for i in range(8):
            a("buffer_load_dword v%d, %s, s[%d:%d], s63 offen" % (par[0], vr(t0), SRD_W2, SRD_W2+3))
            a("s_add_u32 s63, s63, %d" % (54*128))
    a("s_and_b32 s70, s2, 1"); a("s_mul_i32 s70, s70, 640")
    a("s_mov_b32 exec_hi, 0x003fffff")
    for i in range(0 if FULLT else 4):
        a("v_add_u32 %s, s63, v0" % vr(t0))
        if i: a("v_add_u32 %s, %d, %s" % (vr(t0), 54*i, vr(t0)))
        a("v_mul_u32_u24 %s, 52429, %s" % (vr(t1), vr(t0)))
        a("v_lshrrev_b32 %s, 18, %s" % (vr(t1), vr(t1)))
        a("v_mul_u32_u24 %s, 640, %s" % (vr(t1), vr(t1)))
        a("v_lshl_add_u32 %s, %s, 7, %s" % (vr(t0), vr(t0), vr(t1)))
        a("buffer_load_dword v%d, %s, s[%d:%d], s70 offen" % (par[0], vr(t0), SRD_W2, SRD_W2+3))
    a("s_mov_b32 exec_hi, -1")
    a.label(sk)
def u_dma(t0):
    a("s_mul_i32 s70, s%d, %d" % (S_WAVE, USTR)); a("s_add_u32 m0, s70, %d" % (UB + 480))
    a("s_lshl_b32 s70, s%d, 6" % R["sD"]); a("s_add_u32 s70, s70, 0x%x" % WS_UT)
    a("v_lshrrev_b32 %s, 2, v0" % vr(t0)); a("v_mul_u32_u24 %s, %d, %s" % (vr(t0), UT_PS, vr(t0)))
    a("v_and_b32 v%d, 3, v0" % vP); a("v_lshl_add_u32 %s, v%d, 4, %s" % (vr(t0), vP, vr(t0)))
    for i in range(4):
        a("buffer_load_dwordx4 %s, s[%d:%d], s70 offen offset:%d sc1 lds" % (vr(t0), SRD_WS, SRD_WS+3, 1024*i))
        if i < 3: a("s_add_u32 s70, s70, %d" % (16*UT_PS - 1024))
PRI = os.environ.get("PRI", "a")
if "k" in PRI:
    a("s_cmp_ge_u32 s%d, 4" % S_WAVE); a("s_cbranch_scc1 no_pri"); a("s_setprio 2"); a.label("no_pri")
if "a" in PRI: a("s_setprio 1")
conv_kgen(a, va, R, None, hooks=hooks)
va.release(m0)
S(6)
a("s_cmp_eq_u32 s71, 1"); a("s_cbranch_scc1 u_done")
a.label("u_poll")
a("buffer_load_dword v%d, v%d, s[%d:%d], s69 offen sc1" % (vP, vZ, SRD_WS, SRD_WS+3))
a("s_waitcnt vmcnt(0)")
a("v_cmp_ne_u32 vcc, s%d, v%d" % (S_NONCE, vP))
a("s_cbranch_vccnz u_poll")
u_dma(vN)
a("s_waitcnt vmcnt(0)")
a.label("u_done")
def pre():
    if "m" in PRI: a("s_setprio 3")
    if "a" in PRI: a("s_setprio 0")
    if TCH == "cq":
        a("s_cmp_ge_u32 s%d, 4" % S_WAVE); a("s_cbranch_scc1 u_w0")
        a("s_waitcnt vmcnt(%d)" % (8 if FULLT else 4)); a("s_branch u_w1")
        a.label("u_w0"); a("s_waitcnt vmcnt(0)"); a.label("u_w1")
    else:
        a("s_waitcnt vmcnt(0)")
        if TCH == "main": w2_touch(vN, vZ)
conv_main(a, va, R, sc="sc1", stamps=S, pre=pre)
a("s_lshl_b32 s%d, s%d, 7" % (S_T, S_CW)); a("s_lshl_b32 s%d, s%d, 2" % (S_T+1, S_WAVE))
a("s_add_u32 s%d, s%d, s%d" % (S_T, S_T, S_T+1)); a("s_add_u32 s%d, s%d, 0x%x" % (S_T, S_T, WS_AF))
a("s_waitcnt vmcnt(0)")
flag_store(a, S_T, 1, 2)
S.flush({0:1, 4:3, 8:5, 9:6})
a("s_endpgm")
hi = max(hi, va.hi)
a.label("role_g")
sI = 64
a("s_sub_u32 s%d, s2, 80" % S_T)
a("s_lshr_b32 s%d, s%d, 3" % (sI, S_T))
if not os.environ.get('XLOC'):
    a("s_and_b32 s%d, s%d, 1" % (S_T+1, S_T))
    a("s_bfe_u32 s%d, s%d, 0x20001" % (S_T+2, S_T))
    a("s_lshl_b32 s%d, s%d, 2" % (S_T+2, S_T+2))
    a("s_lshr_b32 s%d, s%d, 2" % (S_T+3, sI))
    a("s_mul_i32 s%d, s%d, 6" % (S_CB, S_T+1)); a("s_add_u32 s%d, s%d, s%d" % (S_CB, S_CB, S_T+3))
    a("s_mul_i32 s%d, s%d, 5" % (S_DB, S_T+1)); a("s_add_u32 s%d, s%d, s%d" % (S_DB, S_DB, S_T+3))
    a("s_and_b32 s%d, s%d, 3" % (S_RB, sI))
    a("s_lshl_b32 s%d, s%d, 1" % (S_T+1, S_T+1)); a("s_add_u32 s%d, s%d, s%d" % (S_T+1, S_T+1, S_RB))
    a("s_cmp_ge_u32 s%d, 20" % sI)
    a("s_cselect_b32 s%d, 5, s%d" % (S_CB, S_CB))
    a("s_cselect_b32 s%d, s%d, s%d" % (S_RB, S_T+1, S_RB))
    a("s_mul_i32 s%d, s%d, 5" % (S_T+4, S_RB)); a("s_lshr_b32 s%d, s%d, 1" % (S_T+4, S_T+4))
    a("s_and_b32 s%d, s%d, 1" % (S_T+5, sI)); a("s_mul_i32 s%d, s%d, 5" % (S_T+5, S_T+5)); a("s_add_u32 s%d, s%d, %d" % (S_T+5, S_T+5, int(os.environ.get("XO5", "1"))))
    a("s_lshl_b32 s%d, s%d, 1" % (S_T+3, S_T+3)); a("s_add_u32 s%d, s%d, s%d" % (S_T+4, S_T+4, S_T+3))
    a("s_cmp_ge_u32 s%d, 20" % sI); a("s_cselect_b32 s%d, s%d, s%d" % (S_T+4, S_T+5, S_T+4))
    a("s_lshr_b32 s%d, s%d, 2" % (S_T+5, S_T+2)); a("s_add_u32 s%d, s%d, s%d" % (S_T+4, S_T+4, S_T+5))
    a("s_and_b32 s%d, s2, 1" % (S_T+5)); a("s_add_u32 s%d, s%d, s%d" % (S_T+4, S_T+4, S_T+5))
    if os.environ.get("NOROT"): a("s_mov_b32 s%d, 0" % (S_T+4))
    for dst, md in ((S_ROT1, 10), (S_ROT2, 9)):
        a("s_sub_u32 s%d, s%d, %d" % (S_T+3, S_T+4, md)); a("s_cselect_b32 s%d, s%d, s%d" % (dst, S_T+4, S_T+3))
        a("s_sub_u32 s%d, s%d, %d" % (S_T+3, dst, md)); a("s_cselect_b32 s%d, s%d, s%d" % (dst, dst, S_T+3))
    a("s_add_u32 s%d, s%d, s%d" % (S_RB, S_RB, S_T+2))
    if G2X:
        a("s_and_b32 s%d, s2, 1" % (S_T+1)); a("s_lshl_b32 s%d, s%d, 1" % (S_T+1, S_T+1))
        a("s_and_b32 s%d, s%d, 1" % (S_T+3, sI))
        a("s_add_u32 s66, s%d, s%d" % (S_T+2, S_T+1)); a("s_add_u32 s66, s66, s%d" % (S_T+3))
        a("s_lshr_b32 s%d, s%d, 1" % (S_DB, sI))
        a("s_mul_i32 s%d, s%d, %d" % (S_T+3, S_T+3, int(os.environ.get("C2", "2"))))
        a("s_add_u32 s%d, s%d, s%d" % (S_ROT2, S_DB, S_T+3))
        a("s_and_b32 s%d, s2, 7" % (S_T+3)); a("s_mul_i32 s%d, s%d, %d" % (S_T+3, S_T+3, int(os.environ.get("XR2", "1"))))
        a("s_add_u32 s%d, s%d, s%d" % (S_ROT2, S_ROT2, S_T+3))
        for _ in range(4):
            a("s_sub_u32 s%d, s%d, 9" % (S_T+3, S_ROT2)); a("s_cselect_b32 s%d, s%d, s%d" % (S_ROT2, S_ROT2, S_T+3))
else:
    a("s_and_b32 s%d, s%d, 7" % (S_T+2, S_T))
    a("s_and_b32 s%d, s%d, 1" % (S_T+1, sI))
    a("s_lshl_b32 s%d, s%d, 1" % (S_RB, S_T+2)); a("s_add_u32 s%d, s%d, s%d" % (S_RB, S_RB, S_T+1))
    a("s_lshr_b32 s%d, s%d, 1" % (S_CB, sI)); a("s_mov_b32 s%d, s%d" % (S_DB, S_CB))
    a("s_mul_i32 s%d, s%d, 5" % (S_T+4, S_T+1)); a("s_add_u32 s%d, s%d, s%d" % (S_T+4, S_T+4, S_CB))
    a("s_mul_i32 s%d, s%d, %d" % (S_T+2, S_T+2, int(os.environ.get("XR", "1")))); a("s_add_u32 s%d, s%d, s%d" % (S_T+4, S_T+4, S_T+2))
    for dst, md in ((S_ROT1, 10), (S_ROT2, 9)):
        a("s_mov_b32 s%d, s%d" % (dst, S_T+4))
        for _ in range(4):
            a("s_sub_u32 s%d, s%d, %d" % (S_T+3, dst, md)); a("s_cselect_b32 s%d, s%d, s%d" % (dst, dst, S_T+3))
a("s_waitcnt lgkmcnt(0)")
srd(a, SRD_X, P_U, X_BYTES); srd(a, SRD_W, P_W1, W_BYTES); srd(a, SRD_WS, P_WS, 32 << 20)
srd(a, SRD_W2, P_W2, W_BYTES); srd(a, SRD_O, P_OUT, X_BYTES)
a("s_cmp_ge_u32 s%d, 4" % S_WAVE); a("s_cbranch_scc1 g_help")
va = VAlloc()
if os.environ.get("TWG"):
    a("v_mov_b32 v1, 0")
    a("s_mul_i32 s%d, s%d, %d" % (S_T, S_RB, 8*H_MT_STRIDE))
    a("buffer_load_dword v2, v1, s[%d:%d], s%d offen" % (SRD_WS, SRD_WS+3, S_T))
    a("s_add_u32 s%d, s%d, %d" % (S_T, S_T, 8*H_MT_STRIDE - 4))
    a("buffer_load_dword v2, v1, s[%d:%d], s%d offen" % (SRD_WS, SRD_WS+3, S_T))
    a("s_mov_b32 s%d, 0x%x" % (S_T, WS_FL + 0x50000))
    a("buffer_load_dword v2, v1, s[%d:%d], s%d offen" % (SRD_WS, SRD_WS+3, S_T))
    a("s_lshl_b32 s%d, s%d, 18" % (S_T, S_DB)); a("s_add_u32 s%d, s%d, 0x%x" % (S_T, S_T, WS_AT))
    a("buffer_load_dword v2, v1, s[%d:%d], s%d offen" % (SRD_WS, SRD_WS+3, S_T))
    a("s_mul_i32 s%d, s%d, %d" % (S_T, S_RB, 128*1280))
    a("buffer_load_dword v2, v1, s[%d:%d], s%d offen" % (SRD_O, SRD_O+3, S_T))
    a("buffer_load_dword v2, v1, s[%d:%d], 0 offen" % (SRD_W2, SRD_W2+3))

ONE = os.environ.get("ONE")
if ONE:
    M1 = {4:1, 6:2, 7:3}; M2 = eval(os.environ.get("M2", "{0:4, 11:5, 1:6, 3:7, 8:8}"))
    S1w = lambda k: S(M1[k]) if k in M1 else None
    S2w = lambda k: S(M2[k]) if k in M2 else None
else: S1w = S; S2w = lambda k: S2(k) if k < 10 else None
vT = [va(), va()]
role_g1.g1_compute(a, va, sc="sc1", stamps=S1w if STAMPS else None, vT=vT)
a("s_lshl_b32 s70, s%d, 11" % S_RB); a("s_lshl_b32 s71, s%d, 7" % S_CB)
a("s_add_u32 s70, s70, s71"); a("s_add_u32 s70, s70, 0x%x" % WS_FL)
if G2X:
    a("s_xor_b32 s71, s%d, s66" % S_RB); a("s_lshr_b32 s71, s71, 1"); a("s_lshl_b32 s71, s71, 30")
    if role_g1.HST == "htouch":
        for k in range(2): a("v_or_b32 %s, s71, %s" % (vr(vT[k]), vr(vT[k])))
    a("s_mov_b32 s%d, s66" % S_RB)
def mid(t0, t1, t2):
    a("v_mov_b32 %s, %d" % (vr(t0), role_g1.G1_MISC + 12288)); a("v_mov_b32 %s, 1" % vr(t1))
    a("s_mov_b64 exec, 1")
    a("s_waitcnt vmcnt(4)")
    S1w(7)
    a("ds_add_rtn_u32 %s, %s, %s" % (vr(t1), vr(t0), vr(t1)))
    a("v_mov_b32 %s, s%d" % (vr(t0), S_NONCE)); a("v_bfrev_b32 %s, 2" % vr(t2))
    a("s_waitcnt lgkmcnt(0)")
    a("v_cmp_eq_u32 vcc, 3, %s" % vr(t1))
    a("s_nop 1")
    a("v_cndmask_b32 %s, %s, 0, vcc" % (vr(t1), vr(t2)))
    a("buffer_store_dword %s, %s, s[%d:%d], s70 offen sc1" % (vr(t0), vr(t1), SRD_WS, SRD_WS+3))
    a("s_mov_b64 exec, -1")
    n = 1
    if role_g1.HST == "htouch":
        a("buffer_load_dword %s, %s, s[%d:%d], 0 offen sc1" % (vr(vT[0]), vr(vT[0]), SRD_WS, SRD_WS+3))
        a("s_mov_b64 exec, 0xffff")
        a("buffer_load_dword %s, %s, s[%d:%d], 0 offen sc1" % (vr(vT[1]), vr(vT[1]), SRD_WS, SRD_WS+3))
        a("s_mov_b64 exec, -1")
        n = 3
    if ONE: S2w(0)
    a("s_cmp_ge_u32 s%d, 20" % sI); a("s_cbranch_scc1 k_wait")
    return n
sF = S_T+4
def h_issue(vP, t):
    a("v_min_u32 %s, 10, v0" % vr(t)); a("v_lshlrev_b32 %s, 7, %s" % (vr(t), vr(t)))
    a("s_lshl_b32 s%d, s%d, 11" % (sF, S_RB)); a("s_add_u32 s%d, s%d, 0x%x" % (sF, sF, WS_FL))
    a("buffer_load_dword %s, %s, s[%d:%d], s%d offen sc1" % (vr(vP), vr(t), SRD_WS, SRD_WS+3, sF))
def h_wait(vP, t):
    a("s_branch h_chk")
    a.label("h_poll")
    a("buffer_load_dword %s, %s, s[%d:%d], s%d offen sc1" % (vr(vP), vr(t), SRD_WS, SRD_WS+3, sF))
    a.label("h_chk")
    a("s_waitcnt vmcnt(0)")
    a("v_cmp_ne_u32 vcc, s%d, %s" % (S_NONCE, vr(vP)))
    a("s_cbranch_vccnz h_poll")
class XP:
    def issue(s, vP, t):
        return ["v_lshrrev_b32 %s, 3, v0" % vr(vP), "v_and_b32 %s, 7, v0" % vr(t), "v_lshlrev_b32 %s, 2, %s" % (vr(t), vr(t)),
                "v_lshl_add_u32 %s, %s, 7, %s" % (vr(t), vr(vP), vr(t)),
                "s_lshl_b32 s%d, s%d, 10" % (sF, S_DB), "s_add_u32 s%d, s%d, 0x%x" % (sF, sF, WS_AF),
                ("buffer_load_dword %s, %s, s[%d:%d], s%d offen sc1" % (vr(vP), vr(t), SRD_WS, SRD_WS+3, sF), ("poll",))]
    def finish(s, vP, t, reload):
        a("v_cmp_ne_u32 vcc, s%d, %s" % (S_NONCE, vr(vP)))
        ok = a.newlabel("xa_ok"); pl = a.newlabel("xa_poll")
        a("s_cbranch_vccz %s" % ok)
        a.label(pl)
        a("buffer_load_dword %s, %s, s[%d:%d], s%d offen sc1" % (vr(vP), vr(t), SRD_WS, SRD_WS+3, sF))
        a("s_waitcnt vmcnt(0)")
        a("v_cmp_ne_u32 vcc, s%d, %s" % (S_NONCE, vr(vP)))
        a("s_cbranch_vccnz %s" % pl)
        reload()
        a("s_waitcnt vmcnt(0)")
        a.label(ok)
role_g2.g2_compute(a, va, h_wait=(h_issue, h_wait), xa_poll=XP(), sc="sc1", stamps=S2w if STAMPS else None, mid=mid)
(S if ONE else S2).flush({0:11, 2:12, 5:13, 9:14})
a("s_endpgm")
hi = max(hi, va.hi)
a.label("g_help")
va = VAlloc()
H2 = []
def after_pre(): H2.extend(role_g2.g2_helper_setup(a, va))
SCHED = eval(os.environ.get("W2S", "{7:[6], 8:[0], 9:[1], 11:[2,3,4,5,7,8]}"))
q2 = []
def hook(b):
    r = []
    for st in SCHED.get(b, []):
        st, lo, hi_ = st if isinstance(st, tuple) else (st, 0, 6)
        H2[0](st, lo, hi_); r += [("w2", st)]*(hi_ - lo)
        if ONE and b == 11: HS[0] += 1; S(HS[0])
    q2.extend(r)
    return r
HS = [1]
role_g1.g1_helper(a, va, stamps=None if ONE else S, hook=hook, after_pre=after_pre)
hook(100)
a("s_barrier"); hook(10)
a("s_barrier")
a("s_cmp_ge_u32 s%d, 20" % sI); a("s_cbranch_scc1 g_help_end")
if ONE: S(1)
hook(11)
if os.environ.get("HW"): a("s_waitcnt vmcnt(0)"); S(8)
a("s_waitcnt vmcnt(%d)" % (len(q2) - 1 - max(i for i, t in enumerate(q2) if t == ("w2", 0))))
a("s_barrier")
hook(12)
role_g2.g2_helper_loop(a, H2[1], q2, late=lambda b: hook(12+b))
assert all(q2.count(("w2", st)) == 6 for st in range(9))
a.label("g_help_end")
a("s_waitcnt vmcnt(0)")
S.flush()
a.label("k_wait"); a("s_waitcnt vmcnt(0)")
a.label("k_end"); a("s_endpgm")
hi = max(hi, va.hi)
out = hdr + "; @launch grid=(256,1,1) block=(512,1,1) lds=163840\n"
out += '.amdgcn_target "amdgcn-amd-amdhsa--gfx950"\n.text\n'
k = KN + "_kernel"
out += ".globl %s\n.p2align 8\n.type %s,@function\n%s:\n%s" % (k, k, k, a.text())
out += '.section .rodata,"a"\n.p2align 6\n' + kernel_desc(k, hi)
open(sys.argv[1], "w").write(out)
print("vgprs", hi, "lines", len(a.l))
```

```python
import sys
from gen_common import *
import role_g1, role_g2, role_conv
from role_g1 import S_RB, S_CB, S_ROT1
from role_g2 import S_DB, S_ROT2
from role_conv import *
KN = "parallel_sum__ssm_conv_s4d__dense_activation_relu__prompt"
hdr = open("cdna_kernels/%s.s.ref" % KN).read().split("; Override launch")[0]
a = Asm()
S = Stamps(a, STAMPS, 0)
S2 = Stamps(a, STAMPS, 1)
a("s_cmp_ge_u32 s2, 256"); a("s_cbranch_scc1 k_end")
S.clear(); S(0)
load_args(a); wave_id(a, 1)
a("s_cmp_ge_u32 s2, 80"); a("s_cbranch_scc1 role_g")
hi = 0
va = VAlloc()
a("s_and_b32 s%d, s2, 7" % (S_T+2)); a("s_lshr_b32 s%d, s2, 3" % (S_T+3))
a("s_mul_i32 s%d, s%d, 10" % (S_CW, S_T+2)); a("s_add_u32 s%d, s%d, s%d" % (S_CW, S_CW, S_T+3))
a("s_or_b32 s%d, s2, s%d" % (S_T, S_WAVE))
a("s_memrealtime s[64:65]")
a("s_waitcnt lgkmcnt(0)")
a("s_cmp_lg_u32 s%d, 0" % S_T); a("s_cbranch_scc1 no_pub")
a("s_or_b32 s64, s64, 1")
a("v_mov_b32 v1, s64"); a("v_mov_b32 v2, 0")
a("s_mov_b64 exec, 1")
a("global_store_dword v2, v1, s[%d:%d] sc1" % (P_DBG, P_DBG+1))
a("s_mov_b64 exec, -1")
a.label("no_pub")
if os.environ.get("TW"):
    for i, p in enumerate((P_U, P_LOGA, P_AIM, P_CRE, P_CIM, P_W1, P_W2)): a("s_load_dword s%d, s[%d:%d], 0" % (69, p, p+1))
    for off in (WS_ST, WS_UT, WS_UT + 0x200000, WS_FL, WS_AT + 0x100000): a("s_load_dword s%d, s[%d:%d], 0x%x" % (69, P_WS, P_WS+1, off & 0xfffff) if off < 0x100000 else "s_mov_b32 s70, 0x%x\ns_load_dword s69, s[%d:%d], s70" % (off, P_WS, P_WS+1))
srd(a, SRD_X, P_U, X_BYTES); srd(a, SRD_WS, P_WS, 32 << 20); srd(a, SRD_W, P_W1, W_BYTES); srd(a, SRD_W2, P_W2, W_BYTES)
vN, vZ, vP = va(), va(), va()
a("s_and_b32 s%d, s2, 7" % (S_T+2)); a("s_lshr_b32 s%d, s2, 3" % (S_T+3))
a("s_lshl_b32 s64, s%d, 3" % (S_T+2)); a("s_add_u32 s64, s64, s%d" % (S_T+3)); a("s_lshl_b32 s64, s64, 3"); a("s_add_u32 s64, s64, s%d" % S_WAVE); a("s_lshl_b32 s64, s64, 2")
a("s_cmp_ge_u32 s2, 64"); a("s_cselect_b32 s64, 4096, s64")
par = [va() for _ in range(5)]
csr = va.mark(); va(36)
m0 = va.mark()
p1, p2 = producer_issue(a, va, 64)
m1 = va.mark(); va.release(par[0])
R = conv_issue_loads(a, va)
va.release(m1)
a("s_lshr_b32 s65, s%d, 1" % (S_T+2)); a("s_mul_i32 s65, s65, 7"); a("s_add_u32 s65, s65, s%d" % (S_T+3)); a("s_sub_u32 s65, s65, 3")
a("s_cmp_lt_u32 s%d, 3" % (S_T+3)); a("s_cselect_b32 s65, 99, s65")
a("s_cmp_lt_u32 s65, 27"); a("s_cselect_b32 s68, 1, 0")
a("s_sub_u32 s%d, 53, s65" % (S_T+4)); a("s_bitcmp1_b32 s2, 0"); a("s_cselect_b32 s65, s%d, s65" % (S_T+4))
a("s_cmp_eq_u32 s68, 0"); a("s_cselect_b32 s65, 0x10000, s65")
z = va(2); a("v_mov_b32 v%d, %d" % (z, XO + 1024)); a("v_mov_b32 v%d, 0" % (z+1))
a("ds_write_b32 v%d, v%d" % (z, z+1))
a("s_waitcnt vmcnt(4)")
S(1)
nonce_issue(a, vN, vZ)
m1 = va.mark(); va.release(csr)
cs1 = colsum_issue(a, va, 65)
assert va.mark() <= m0
va.release(m1)
def ncb():
    a("s_waitcnt vmcnt(5)")
    nonce_finish(a, vN, vZ)
if "z" in os.environ.get("PRI", ""):
    a("s_cmp_lt_u32 s%d, 4" % S_WAVE); a("s_cbranch_scc1 no_prz"); a("s_setprio 2"); a.label("no_prz")
a("s_cmp_ge_u32 s2, 64"); a("s_cbranch_scc1 no_p1")
p1(ncb)
S(2)
a("s_waitcnt lgkmcnt(0)")
a("s_barrier")
p2()
S(3)
a("s_branch p1_done")
a.label("no_p1")
ncb()
a("s_waitcnt lgkmcnt(0)")
a("s_barrier")
a.label("p1_done")
va.release(m0)
S(4)
a("s_mul_i32 s69, s%d, %d" % (S_WAVE, USTR)); a("s_add_u32 s69, s69, %d" % UB)
a("v_lshlrev_b32 v%d, 3, v0" % vZ); a("v_add_u32 v%d, s69, v%d" % (vZ, vZ))
z = va(2); a("v_mov_b32 v%d, 0" % z); a("v_mov_b32 v%d, 0" % (z+1))
a("s_mov_b32 exec_hi, 0x0fffffff")
a("ds_write_b64 v%d, v[%d:%d]" % (vZ, z, z+1))
a("s_mov_b32 exec_hi, -1")
va.release(m0)
PRI = os.environ.get("PRI", "agy")
FQ = os.environ.get("FQ", "16"); PQ = os.environ.get("PQ", "start"); CQ = os.environ.get("CQ", "e8")
def hooks(ps, w, t0, t1):
    if ps == 0 and str(w) == FQ:
        a("s_waitcnt vmcnt(0)")
        a("s_cmp_ge_u32 s2, 64"); a("s_cbranch_scc1 no_uf")
        a("s_lshl_b32 s69, s%d, 3" % S_WAVE); a("s_and_b32 s70, s2, 7"); a("s_add_u32 s69, s69, s70"); a("s_lshl_b32 s69, s69, 7")
        a("s_lshr_b32 s70, s2, 3"); a("s_lshl_b32 s70, s70, 2")
        a("s_add_u32 s69, s69, s70"); a("s_add_u32 s69, s69, 0x%x" % WS_UF)
        flag_store(a, 69, t0, t1)
        a.label("no_uf")
        a("s_cmp_eq_u32 s68, 0"); a("s_cbranch_scc1 no_cs1")
        cs1()
        a.label("no_cs1")
        if "y" in PRI: a("s_setprio 1")
        S(5)
    if ps == 1 and str(w) == PQ:
        a("s_and_b32 s69, s2, 7"); a("s_lshl_b32 s69, s69, 10"); a("s_add_u32 s69, s69, 0x%x" % WS_UF)
        a("v_lshrrev_b32 %s, 3, v0" % vr(t0)); a("v_and_b32 v%d, 7, v0" % vZ)
        a("v_lshlrev_b32 v%d, 2, v%d" % (vZ, vZ)); a("v_lshl_add_u32 v%d, %s, 7, v%d" % (vZ, vr(t0), vZ))
        a("buffer_load_dword v%d, v%d, s[%d:%d], s69 offen sc1" % (vP, vZ, SRD_WS, SRD_WS+3))
    if ps == 1 and str(w) == CQ:
        a("s_waitcnt vmcnt(0)")
        a("v_cmp_ne_u32 vcc, s%d, v%d" % (S_NONCE, vP))
        a("s_mov_b32 s71, 0")
        a("s_cbranch_vccnz u_later")
        u_dma(t0)
        a("s_mov_b32 s71, 1")
        a("s_branch u_l1")
        a.label("u_later")
        a("buffer_load_dword v%d, v%d, s[%d:%d], s69 offen sc1" % (vP, vZ, SRD_WS, SRD_WS+3))
        a.label("u_l1")
    if ps == 2:
        a("s_cmp_eq_u32 s71, 1"); a("s_cbranch_scc1 u_l2")
        a("s_waitcnt vmcnt(0)")
        a("v_cmp_ne_u32 vcc, s%d, v%d" % (S_NONCE, vP))
        a("s_cbranch_vccnz u_l2")
        u_dma(t0)
        a("s_mov_b32 s71, 1")
        a.label("u_l2")
TCH = os.environ.get("TCH", "none")
G2X = int(os.environ.get("G2X", "1"))
FULLT = G2X or os.environ.get("XLOC")
def w2_touch(t0, t1):
    sk = a.newlabel("no_tch")
    a("s_cmp_ge_u32 s%d, 4" % S_WAVE); a("s_cbranch_scc1 %s" % sk)
    a("s_lshr_b32 s63, s2, 3"); a("s_lshl_b32 s63, s63, 2"); a("s_add_u32 s63, s63, s%d" % S_WAVE); a("s_mul_i32 s63, s63, 216")
    if FULLT:
        a("s_lshl_b32 s63, s63, 8")
        a("v_lshlrev_b32 %s, 7, v0" % vr(t0))
        a("s_mov_b32 exec_hi, 0x003fffff")
        for i in range(8):
            a("buffer_load_dword v%d, %s, s[%d:%d], s63 offen" % (par[0], vr(t0), SRD_W2, SRD_W2+3))
            a("s_add_u32 s63, s63, %d" % (54*128))
    a("s_and_b32 s70, s2, 1"); a("s_mul_i32 s70, s70, 640")
    a("s_mov_b32 exec_hi, 0x003fffff")
    for i in range(0 if FULLT else 4):
        a("v_add_u32 %s, s63, v0" % vr(t0))
        if i: a("v_add_u32 %s, %d, %s" % (vr(t0), 54*i, vr(t0)))
        a("v_mul_u32_u24 %s, 52429, %s" % (vr(t1), vr(t0)))
        a("v_lshrrev_b32 %s, 18, %s" % (vr(t1), vr(t1)))
        a("v_mul_u32_u24 %s, 640, %s" % (vr(t1), vr(t1)))
        a("v_lshl_add_u32 %s, %s, 7, %s" % (vr(t0), vr(t0), vr(t1)))
        a("buffer_load_dword v%d, %s, s[%d:%d], s70 offen" % (par[0], vr(t0), SRD_W2, SRD_W2+3))
    a("s_mov_b32 exec_hi, -1")
    a.label(sk)
def u_dma(t0):
    a("s_mul_i32 s70, s%d, %d" % (S_WAVE, USTR)); a("s_add_u32 m0, s70, %d" % (UB + 480))
    a("s_lshl_b32 s70, s%d, 6" % R["sD"]); a("s_add_u32 s70, s70, 0x%x" % WS_UT)
    a("v_lshrrev_b32 %s, 2, v0" % vr(t0)); a("v_mul_u32_u24 %s, %d, %s" % (vr(t0), UT_PS, vr(t0)))
    a("v_and_b32 v%d, 3, v0" % vP); a("v_lshl_add_u32 %s, v%d, 4, %s" % (vr(t0), vP, vr(t0)))
    for i in range(4):
        a("buffer_load_dwordx4 %s, s[%d:%d], s70 offen offset:%d sc1 lds" % (vr(t0), SRD_WS, SRD_WS+3, 1024*i))
        if i < 3: a("s_add_u32 s70, s70, %d" % (16*UT_PS - 1024))
if "k" in PRI:
    a("s_cmp_ge_u32 s%d, 4" % S_WAVE); a("s_cbranch_scc1 no_pri"); a("s_setprio 2"); a.label("no_pri")
if "a" in PRI: a("s_setprio 1")
if "y" in PRI:
    a("s_cmp_lt_u32 s%d, 4" % S_WAVE); a("s_cbranch_scc1 no_pry"); a("s_setprio 2"); a.label("no_pry")
conv_kgen(a, va, R, None, hooks=hooks)
va.release(m0)
S(6)
a("s_cmp_eq_u32 s71, 1"); a("s_cbranch_scc1 u_done")
a.label("u_poll")
a("buffer_load_dword v%d, v%d, s[%d:%d], s69 offen sc1" % (vP, vZ, SRD_WS, SRD_WS+3))
a("s_waitcnt vmcnt(0)")
a("v_cmp_ne_u32 vcc, s%d, v%d" % (S_NONCE, vP))
a("s_cbranch_vccnz u_poll")
u_dma(vN)
a("s_waitcnt vmcnt(0)")
a.label("u_done")
def pre():
    if "m" in PRI: a("s_setprio 3")
    if "a" in PRI: a("s_setprio 0")
    if TCH == "cq":
        a("s_cmp_ge_u32 s%d, 4" % S_WAVE); a("s_cbranch_scc1 u_w0")
        a("s_waitcnt vmcnt(%d)" % (8 if FULLT else 4)); a("s_branch u_w1")
        a.label("u_w0"); a("s_waitcnt vmcnt(0)"); a.label("u_w1")
    else:
        a("s_waitcnt vmcnt(0)")
        if TCH == "main": w2_touch(vN, vZ)
conv_main(a, va, R, sc="sc1", stamps=S, pre=pre)
a("s_lshl_b32 s%d, s%d, 7" % (S_T, S_CW)); a("s_lshl_b32 s%d, s%d, 2" % (S_T+1, S_WAVE))
a("s_add_u32 s%d, s%d, s%d" % (S_T, S_T, S_T+1)); a("s_add_u32 s%d, s%d, 0x%x" % (S_T, S_T, WS_AF))
a("s_waitcnt vmcnt(0)")
flag_store(a, S_T, 1, 2)
S.flush({0:1, 4:3, 8:5, 9:6})
a("s_endpgm")
hi = max(hi, va.hi)
a.label("role_g")
sI = 64
a("s_sub_u32 s%d, s2, 80" % S_T)
a("s_lshr_b32 s%d, s%d, 3" % (sI, S_T))
if not os.environ.get('XLOC'):
    a("s_and_b32 s%d, s%d, 1" % (S_T+1, S_T))
    a("s_bfe_u32 s%d, s%d, 0x20001" % (S_T+2, S_T))
    a("s_lshl_b32 s%d, s%d, 2" % (S_T+2, S_T+2))
    a("s_lshr_b32 s%d, s%d, 2" % (S_T+3, sI))
    a("s_mul_i32 s%d, s%d, 6" % (S_CB, S_T+1)); a("s_add_u32 s%d, s%d, s%d" % (S_CB, S_CB, S_T+3))
    a("s_mul_i32 s%d, s%d, 5" % (S_DB, S_T+1)); a("s_add_u32 s%d, s%d, s%d" % (S_DB, S_DB, S_T+3))
    a("s_and_b32 s%d, s%d, 3" % (S_RB, sI))
    a("s_lshl_b32 s%d, s%d, 1" % (S_T+1, S_T+1)); a("s_add_u32 s%d, s%d, s%d" % (S_T+1, S_T+1, S_RB))
    a("s_cmp_ge_u32 s%d, 20" % sI)
    a("s_cselect_b32 s%d, 5, s%d" % (S_CB, S_CB))
    a("s_cselect_b32 s%d, s%d, s%d" % (S_RB, S_T+1, S_RB))
    a("s_mul_i32 s%d, s%d, 5" % (S_T+4, S_RB)); a("s_lshr_b32 s%d, s%d, 1" % (S_T+4, S_T+4))
    a("s_and_b32 s%d, s%d, 1" % (S_T+5, sI)); a("s_mul_i32 s%d, s%d, 5" % (S_T+5, S_T+5)); a("s_add_u32 s%d, s%d, %d" % (S_T+5, S_T+5, int(os.environ.get("XO5", "1"))))
    a("s_lshl_b32 s%d, s%d, 1" % (S_T+3, S_T+3)); a("s_add_u32 s%d, s%d, s%d" % (S_T+4, S_T+4, S_T+3))
    a("s_cmp_ge_u32 s%d, 20" % sI); a("s_cselect_b32 s%d, s%d, s%d" % (S_T+4, S_T+5, S_T+4))
    a("s_lshr_b32 s%d, s%d, 2" % (S_T+5, S_T+2)); a("s_add_u32 s%d, s%d, s%d" % (S_T+4, S_T+4, S_T+5))
    a("s_and_b32 s%d, s2, 1" % (S_T+5)); a("s_add_u32 s%d, s%d, s%d" % (S_T+4, S_T+4, S_T+5))
    if os.environ.get("NOROT"): a("s_mov_b32 s%d, 0" % (S_T+4))
    for dst, md in ((S_ROT1, 10), (S_ROT2, 9)):
        a("s_sub_u32 s%d, s%d, %d" % (S_T+3, S_T+4, md)); a("s_cselect_b32 s%d, s%d, s%d" % (dst, S_T+4, S_T+3))
        a("s_sub_u32 s%d, s%d, %d" % (S_T+3, dst, md)); a("s_cselect_b32 s%d, s%d, s%d" % (dst, dst, S_T+3))
    a("s_add_u32 s%d, s%d, s%d" % (S_RB, S_RB, S_T+2))
    if G2X:
        a("s_and_b32 s%d, s2, 1" % (S_T+1)); a("s_lshl_b32 s%d, s%d, 1" % (S_T+1, S_T+1))
        a("s_and_b32 s%d, s%d, 1" % (S_T+3, sI))
        a("s_add_u32 s66, s%d, s%d" % (S_T+2, S_T+1)); a("s_add_u32 s66, s66, s%d" % (S_T+3))
        a("s_lshr_b32 s%d, s%d, 1" % (S_DB, sI))
        a("s_mul_i32 s%d, s%d, %d" % (S_T+3, S_T+3, int(os.environ.get("C2", "2"))))
        a("s_add_u32 s%d, s%d, s%d" % (S_ROT2, S_DB, S_T+3))
        a("s_and_b32 s%d, s2, 7" % (S_T+3)); a("s_mul_i32 s%d, s%d, %d" % (S_T+3, S_T+3, int(os.environ.get("XR2", "2"))))
        a("s_add_u32 s%d, s%d, s%d" % (S_ROT2, S_ROT2, S_T+3))
        for _ in range(4):
            a("s_sub_u32 s%d, s%d, 9" % (S_T+3, S_ROT2)); a("s_cselect_b32 s%d, s%d, s%d" % (S_ROT2, S_ROT2, S_T+3))
else:
    a("s_and_b32 s%d, s%d, 7" % (S_T+2, S_T))
    a("s_and_b32 s%d, s%d, 1" % (S_T+1, sI))
    a("s_lshl_b32 s%d, s%d, 1" % (S_RB, S_T+2)); a("s_add_u32 s%d, s%d, s%d" % (S_RB, S_RB, S_T+1))
    a("s_lshr_b32 s%d, s%d, 1" % (S_CB, sI)); a("s_mov_b32 s%d, s%d" % (S_DB, S_CB))
    a("s_mul_i32 s%d, s%d, 5" % (S_T+4, S_T+1)); a("s_add_u32 s%d, s%d, s%d" % (S_T+4, S_T+4, S_CB))
    a("s_mul_i32 s%d, s%d, %d" % (S_T+2, S_T+2, int(os.environ.get("XR", "1")))); a("s_add_u32 s%d, s%d, s%d" % (S_T+4, S_T+4, S_T+2))
    for dst, md in ((S_ROT1, 10), (S_ROT2, 9)):
        a("s_mov_b32 s%d, s%d" % (dst, S_T+4))
        for _ in range(4):
            a("s_sub_u32 s%d, s%d, %d" % (S_T+3, dst, md)); a("s_cselect_b32 s%d, s%d, s%d" % (dst, dst, S_T+3))
a("s_waitcnt lgkmcnt(0)")
srd(a, SRD_X, P_U, X_BYTES); srd(a, SRD_W, P_W1, W_BYTES); srd(a, SRD_WS, P_WS, 32 << 20)
srd(a, SRD_W2, P_W2, W_BYTES); srd(a, SRD_O, P_OUT, X_BYTES)
a("s_cmp_ge_u32 s%d, 4" % S_WAVE); a("s_cbranch_scc1 g_help")
va = VAlloc()
if os.environ.get("TWG"):
    a("v_mov_b32 v1, 0")
    a("s_mul_i32 s%d, s%d, %d" % (S_T, S_RB, 8*H_MT_STRIDE))
    a("buffer_load_dword v2, v1, s[%d:%d], s%d offen" % (SRD_WS, SRD_WS+3, S_T))
    a("s_add_u32 s%d, s%d, %d" % (S_T, S_T, 8*H_MT_STRIDE - 4))
    a("buffer_load_dword v2, v1, s[%d:%d], s%d offen" % (SRD_WS, SRD_WS+3, S_T))
    a("s_mov_b32 s%d, 0x%x" % (S_T, WS_FL + 0x50000))
    a("buffer_load_dword v2, v1, s[%d:%d], s%d offen" % (SRD_WS, SRD_WS+3, S_T))
    a("s_lshl_b32 s%d, s%d, 18" % (S_T, S_DB)); a("s_add_u32 s%d, s%d, 0x%x" % (S_T, S_T, WS_AT))
    a("buffer_load_dword v2, v1, s[%d:%d], s%d offen" % (SRD_WS, SRD_WS+3, S_T))
    a("s_mul_i32 s%d, s%d, %d" % (S_T, S_RB, 128*1280))
    a("buffer_load_dword v2, v1, s[%d:%d], s%d offen" % (SRD_O, SRD_O+3, S_T))
    a("buffer_load_dword v2, v1, s[%d:%d], 0 offen" % (SRD_W2, SRD_W2+3))

ONE = os.environ.get("ONE")
if ONE:
    M1 = {4:1, 6:2, 7:3}; M2 = eval(os.environ.get("M2", "{0:4, 11:5, 1:6, 3:7, 8:8}"))
    S1w = lambda k: S(M1[k]) if k in M1 else None
    S2w = lambda k: S(M2[k]) if k in M2 else None
else: S1w = S; S2w = lambda k: S2(k) if k < 10 else None
vT = [va(), va()]
if "g" in PRI: a("s_setprio 3")
role_g1.g1_compute(a, va, sc="sc1", stamps=S1w if STAMPS else None, vT=vT)
a("s_lshl_b32 s70, s%d, 11" % S_RB); a("s_lshl_b32 s71, s%d, 7" % S_CB)
a("s_add_u32 s70, s70, s71"); a("s_add_u32 s70, s70, 0x%x" % WS_FL)
if G2X:
    a("s_xor_b32 s71, s%d, s66" % S_RB); a("s_lshr_b32 s71, s71, 1"); a("s_lshl_b32 s71, s71, 30")
    if role_g1.HST == "htouch":
        for k in range(2): a("v_or_b32 %s, s71, %s" % (vr(vT[k]), vr(vT[k])))
    a("s_mov_b32 s%d, s66" % S_RB)
def mid(t0, t1, t2):
    a("v_mov_b32 %s, %d" % (vr(t0), role_g1.G1_MISC + 12288)); a("v_mov_b32 %s, 1" % vr(t1))
    a("s_mov_b64 exec, 1")
    a("s_waitcnt vmcnt(4)")
    S1w(7)
    a("ds_add_rtn_u32 %s, %s, %s" % (vr(t1), vr(t0), vr(t1)))
    a("v_mov_b32 %s, s%d" % (vr(t0), S_NONCE)); a("v_bfrev_b32 %s, 2" % vr(t2))
    a("s_waitcnt lgkmcnt(0)")
    a("v_cmp_eq_u32 vcc, 3, %s" % vr(t1))
    a("s_nop 1")
    a("v_cndmask_b32 %s, %s, 0, vcc" % (vr(t1), vr(t2)))
    a("buffer_store_dword %s, %s, s[%d:%d], s70 offen sc1" % (vr(t0), vr(t1), SRD_WS, SRD_WS+3))
    a("s_mov_b64 exec, -1")
    n = 1
    if role_g1.HST == "htouch":
        a("buffer_load_dword %s, %s, s[%d:%d], 0 offen sc1" % (vr(vT[0]), vr(vT[0]), SRD_WS, SRD_WS+3))
        a("s_mov_b64 exec, 0xffff")
        a("buffer_load_dword %s, %s, s[%d:%d], 0 offen sc1" % (vr(vT[1]), vr(vT[1]), SRD_WS, SRD_WS+3))
        a("s_mov_b64 exec, -1")
        n = 3
    if ONE: S2w(0)
    a("s_cmp_ge_u32 s%d, 20" % sI); a("s_cbranch_scc1 k_wait")
    return n
sF = S_T+4
def h_issue(vP, t):
    a("v_min_u32 %s, 10, v0" % vr(t)); a("v_lshlrev_b32 %s, 7, %s" % (vr(t), vr(t)))
    a("s_lshl_b32 s%d, s%d, 11" % (sF, S_RB)); a("s_add_u32 s%d, s%d, 0x%x" % (sF, sF, WS_FL))
    a("buffer_load_dword %s, %s, s[%d:%d], s%d offen sc1" % (vr(vP), vr(t), SRD_WS, SRD_WS+3, sF))
def h_wait(vP, t):
    a("s_branch h_chk")
    a.label("h_poll")
    a("buffer_load_dword %s, %s, s[%d:%d], s%d offen sc1" % (vr(vP), vr(t), SRD_WS, SRD_WS+3, sF))
    a.label("h_chk")
    a("s_waitcnt vmcnt(0)")
    a("v_cmp_ne_u32 vcc, s%d, %s" % (S_NONCE, vr(vP)))
    a("s_cbranch_vccnz h_poll")
class XP:
    def issue(s, vP, t):
        return ["v_lshrrev_b32 %s, 3, v0" % vr(vP), "v_and_b32 %s, 7, v0" % vr(t), "v_lshlrev_b32 %s, 2, %s" % (vr(t), vr(t)),
                "v_lshl_add_u32 %s, %s, 7, %s" % (vr(t), vr(vP), vr(t)),
                "s_lshl_b32 s%d, s%d, 10" % (sF, S_DB), "s_add_u32 s%d, s%d, 0x%x" % (sF, sF, WS_AF),
                ("buffer_load_dword %s, %s, s[%d:%d], s%d offen sc1" % (vr(vP), vr(t), SRD_WS, SRD_WS+3, sF), ("poll",))]
    def finish(s, vP, t, reload):
        a("v_cmp_ne_u32 vcc, s%d, %s" % (S_NONCE, vr(vP)))
        ok = a.newlabel("xa_ok"); pl = a.newlabel("xa_poll")
        a("s_cbranch_vccz %s" % ok)
        a.label(pl)
        a("buffer_load_dword %s, %s, s[%d:%d], s%d offen sc1" % (vr(vP), vr(t), SRD_WS, SRD_WS+3, sF))
        a("s_waitcnt vmcnt(0)")
        a("v_cmp_ne_u32 vcc, s%d, %s" % (S_NONCE, vr(vP)))
        a("s_cbranch_vccnz %s" % pl)
        reload()
        a("s_waitcnt vmcnt(0)")
        a.label(ok)
role_g2.g2_compute(a, va, h_wait=(h_issue, h_wait), xa_poll=XP(), sc="sc1", stamps=S2w if STAMPS else None, mid=mid)
(S if ONE else S2).flush({0:11, 2:12, 5:13, 9:14})
a("s_endpgm")
hi = max(hi, va.hi)
a.label("g_help")
if "h" in PRI: a("s_setprio 3")
va = VAlloc()
H2 = []
def after_pre(): H2.extend(role_g2.g2_helper_setup(a, va))
SCHED = eval(os.environ.get("W2S", "{7:[6], 8:[0], 9:[1], 11:[2,3,4,5,7,8]}"))
q2 = []
def hook(b):
    r = []
    for st in SCHED.get(b, []):
        st, lo, hi_ = st if isinstance(st, tuple) else (st, 0, 6)
        H2[0](st, lo, hi_); r += [("w2", st)]*(hi_ - lo)
        if ONE and b == 11: HS[0] += 1; S(HS[0])
    q2.extend(r)
    return r
HS = [1]
role_g1.g1_helper(a, va, stamps=None if ONE else S, hook=hook, after_pre=after_pre)
hook(100)
a("s_barrier"); hook(10)
a("s_barrier")
a("s_cmp_ge_u32 s%d, 20" % sI); a("s_cbranch_scc1 g_help_end")
if ONE: S(1)
hook(11)
if os.environ.get("HW"): a("s_waitcnt vmcnt(0)"); S(8)
a("s_waitcnt vmcnt(%d)" % (len(q2) - 1 - max(i for i, t in enumerate(q2) if t == ("w2", 0))))
a("s_barrier")
hook(12)
role_g2.g2_helper_loop(a, H2[1], q2, late=lambda b: hook(12+b))
assert all(q2.count(("w2", st)) == 6 for st in range(9))
a.label("g_help_end")
a("s_waitcnt vmcnt(0)")
S.flush()
a.label("k_wait"); a("s_waitcnt vmcnt(0)")
a.label("k_end"); a("s_endpgm")
hi = max(hi, va.hi)
out = hdr + "; @launch grid=(256,1,1) block=(512,1,1) lds=163840\n"
out += '.amdgcn_target "amdgcn-amd-amdhsa--gfx950"\n.text\n'
k = KN + "_kernel"
out += ".globl %s\n.p2align 8\n.type %s,@function\n%s:\n%s" % (k, k, k, a.text())
out += '.section .rodata,"a"\n.p2align 6\n' + kernel_desc(k, hi)
open(sys.argv[1], "w").write(out)
print("vgprs", hi, "lines", len(a.l))
```

```python
import sys
from gen_common import *
import role_g1, role_g2, role_conv
from role_g1 import S_RB, S_CB, S_ROT1
from role_g2 import S_DB, S_ROT2
from role_conv import *
KN = "parallel_sum__ssm_conv_s4d__dense_activation_relu__prompt"
hdr = open("cdna_kernels/%s.s.ref" % KN).read().split("; Override launch")[0]
a = Asm()
S = Stamps(a, STAMPS, 0)
S2 = Stamps(a, STAMPS, 1)
a("s_cmp_ge_u32 s2, 256"); a("s_cbranch_scc1 k_end")
S.clear(); S(0)
load_args(a); wave_id(a, 1)
a("s_cmp_ge_u32 s2, 80"); a("s_cbranch_scc1 role_g")
hi = 0
va = VAlloc()
a("s_and_b32 s%d, s2, 7" % (S_T+2)); a("s_lshr_b32 s%d, s2, 3" % (S_T+3))
a("s_mul_i32 s%d, s%d, 10" % (S_CW, S_T+2)); a("s_add_u32 s%d, s%d, s%d" % (S_CW, S_CW, S_T+3))
a("s_or_b32 s%d, s2, s%d" % (S_T, S_WAVE))
a("s_memrealtime s[64:65]")
a("s_waitcnt lgkmcnt(0)")
a("s_cmp_lg_u32 s%d, 0" % S_T); a("s_cbranch_scc1 no_pub")
a("s_or_b32 s64, s64, 1")
a("v_mov_b32 v1, s64"); a("v_mov_b32 v2, 0")
a("s_mov_b64 exec, 1")
a("global_store_dword v2, v1, s[%d:%d] sc1" % (P_DBG, P_DBG+1))
a("s_mov_b64 exec, -1")
a.label("no_pub")
if os.environ.get("TW"):
    for i, p in enumerate((P_U, P_LOGA, P_AIM, P_CRE, P_CIM, P_W1, P_W2)): a("s_load_dword s%d, s[%d:%d], 0" % (69, p, p+1))
    for off in (WS_ST, WS_UT, WS_UT + 0x200000, WS_FL, WS_AT + 0x100000): a("s_load_dword s%d, s[%d:%d], 0x%x" % (69, P_WS, P_WS+1, off & 0xfffff) if off < 0x100000 else "s_mov_b32 s70, 0x%x\ns_load_dword s69, s[%d:%d], s70" % (off, P_WS, P_WS+1))
srd(a, SRD_X, P_U, X_BYTES); srd(a, SRD_WS, P_WS, 32 << 20); srd(a, SRD_W, P_W1, W_BYTES); srd(a, SRD_W2, P_W2, W_BYTES)
vN, vZ, vP = va(), va(), va()
a("s_and_b32 s%d, s2, 7" % (S_T+2)); a("s_lshr_b32 s%d, s2, 3" % (S_T+3))
a("s_lshl_b32 s64, s%d, 3" % (S_T+2)); a("s_add_u32 s64, s64, s%d" % (S_T+3)); a("s_lshl_b32 s64, s64, 3"); a("s_add_u32 s64, s64, s%d" % S_WAVE); a("s_lshl_b32 s64, s64, 2")
a("s_cmp_ge_u32 s2, 64"); a("s_cselect_b32 s64, 4096, s64")
par = [va() for _ in range(5)]
csr = va.mark(); va(36)
m0 = va.mark()
p1, p2 = producer_issue(a, va, 64)
m1 = va.mark(); va.release(par[0])
R = conv_issue_loads(a, va)
va.release(m1)
a("s_lshr_b32 s65, s%d, 1" % (S_T+2)); a("s_mul_i32 s65, s65, 7"); a("s_add_u32 s65, s65, s%d" % (S_T+3)); a("s_sub_u32 s65, s65, 3")
a("s_cmp_lt_u32 s%d, 3" % (S_T+3)); a("s_cselect_b32 s65, 99, s65")
a("s_cmp_lt_u32 s65, 27"); a("s_cselect_b32 s68, 1, 0")
a("s_sub_u32 s%d, 53, s65" % (S_T+4)); a("s_bitcmp1_b32 s2, 0"); a("s_cselect_b32 s65, s%d, s65" % (S_T+4))
a("s_cmp_eq_u32 s68, 0"); a("s_cselect_b32 s65, 0x10000, s65")
z = va(2); a("v_mov_b32 v%d, %d" % (z, XO + 1024)); a("v_mov_b32 v%d, 0" % (z+1))
a("ds_write_b32 v%d, v%d" % (z, z+1))
a("s_waitcnt vmcnt(4)")
S(1)
nonce_issue(a, vN, vZ)
m1 = va.mark(); va.release(csr)
cs1 = colsum_issue(a, va, 65)
assert va.mark() <= m0
va.release(m1)
def ncb():
    a("s_waitcnt vmcnt(5)")
    nonce_finish(a, vN, vZ)
if "z" in os.environ.get("PRI", ""):
    a("s_cmp_lt_u32 s%d, 4" % S_WAVE); a("s_cbranch_scc1 no_prz"); a("s_setprio 2"); a.label("no_prz")
a("s_cmp_ge_u32 s2, 64"); a("s_cbranch_scc1 no_p1")
p1(ncb)
S(2)
a("s_waitcnt lgkmcnt(0)")
a("s_barrier")
p2()
S(3)
a("s_branch p1_done")
a.label("no_p1")
ncb()
a("s_waitcnt lgkmcnt(0)")
a("s_barrier")
a.label("p1_done")
va.release(m0)
S(4)
a("s_mul_i32 s69, s%d, %d" % (S_WAVE, USTR)); a("s_add_u32 s69, s69, %d" % UB)
a("v_lshlrev_b32 v%d, 3, v0" % vZ); a("v_add_u32 v%d, s69, v%d" % (vZ, vZ))
z = va(2); a("v_mov_b32 v%d, 0" % z); a("v_mov_b32 v%d, 0" % (z+1))
a("s_mov_b32 exec_hi, 0x0fffffff")
a("ds_write_b64 v%d, v[%d:%d]" % (vZ, z, z+1))
a("s_mov_b32 exec_hi, -1")
va.release(m0)
PRI = os.environ.get("PRI", "agy")
FQ = os.environ.get("FQ", "16"); PQ = os.environ.get("PQ", "start"); CQ = os.environ.get("CQ", "e8")
def hooks(ps, w, t0, t1):
    if ps == 0 and str(w) == FQ:
        a("s_waitcnt vmcnt(0)")
        a("s_cmp_ge_u32 s2, 64"); a("s_cbranch_scc1 no_uf")
        a("s_lshl_b32 s69, s%d, 3" % S_WAVE); a("s_and_b32 s70, s2, 7"); a("s_add_u32 s69, s69, s70"); a("s_lshl_b32 s69, s69, 7")
        a("s_lshr_b32 s70, s2, 3"); a("s_lshl_b32 s70, s70, 2")
        a("s_add_u32 s69, s69, s70"); a("s_add_u32 s69, s69, 0x%x" % WS_UF)
        flag_store(a, 69, t0, t1)
        a.label("no_uf")
        a("s_cmp_eq_u32 s68, 0"); a("s_cbranch_scc1 no_cs1")
        cs1()
        a.label("no_cs1")
        if "y" in PRI: a("s_setprio 1")
        S(5)
    if ps == 1 and str(w) == PQ:
        a("s_and_b32 s69, s2, 7"); a("s_lshl_b32 s69, s69, 10"); a("s_add_u32 s69, s69, 0x%x" % WS_UF)
        a("v_lshrrev_b32 %s, 3, v0" % vr(t0)); a("v_and_b32 v%d, 7, v0" % vZ)
        a("v_lshlrev_b32 v%d, 2, v%d" % (vZ, vZ)); a("v_lshl_add_u32 v%d, %s, 7, v%d" % (vZ, vr(t0), vZ))
        a("buffer_load_dword v%d, v%d, s[%d:%d], s69 offen sc1" % (vP, vZ, SRD_WS, SRD_WS+3))
    if ps == 1 and str(w) == CQ:
        a("s_waitcnt vmcnt(0)")
        a("v_cmp_ne_u32 vcc, s%d, v%d" % (S_NONCE, vP))
        a("s_mov_b32 s71, 0")
        a("s_cbranch_vccnz u_later")
        u_dma(t0)
        a("s_mov_b32 s71, 1")
        a("s_branch u_l1")
        a.label("u_later")
        a("buffer_load_dword v%d, v%d, s[%d:%d], s69 offen sc1" % (vP, vZ, SRD_WS, SRD_WS+3))
        a.label("u_l1")
    if ps == 2:
        a("s_cmp_eq_u32 s71, 1"); a("s_cbranch_scc1 u_l2")
        a("s_waitcnt vmcnt(0)")
        a("v_cmp_ne_u32 vcc, s%d, v%d" % (S_NONCE, vP))
        a("s_cbranch_vccnz u_l2")
        u_dma(t0)
        a("s_mov_b32 s71, 1")
        a.label("u_l2")
TCH = os.environ.get("TCH", "none")
G2X = int(os.environ.get("G2X", "1"))
FULLT = G2X or os.environ.get("XLOC")
def w2_touch(t0, t1):
    sk = a.newlabel("no_tch")
    a("s_cmp_ge_u32 s%d, 4" % S_WAVE); a("s_cbranch_scc1 %s" % sk)
    a("s_lshr_b32 s63, s2, 3"); a("s_lshl_b32 s63, s63, 2"); a("s_add_u32 s63, s63, s%d" % S_WAVE); a("s_mul_i32 s63, s63, 216")
    if FULLT:
        a("s_lshl_b32 s63, s63, 8")
        a("v_lshlrev_b32 %s, 7, v0" % vr(t0))
        a("s_mov_b32 exec_hi, 0x003fffff")
        for i in range(8):
            a("buffer_load_dword v%d, %s, s[%d:%d], s63 offen" % (par[0], vr(t0), SRD_W2, SRD_W2+3))
            a("s_add_u32 s63, s63, %d" % (54*128))
    a("s_and_b32 s70, s2, 1"); a("s_mul_i32 s70, s70, 640")
    a("s_mov_b32 exec_hi, 0x003fffff")
    for i in range(0 if FULLT else 4):
        a("v_add_u32 %s, s63, v0" % vr(t0))
        if i: a("v_add_u32 %s, %d, %s" % (vr(t0), 54*i, vr(t0)))
        a("v_mul_u32_u24 %s, 52429, %s" % (vr(t1), vr(t0)))
        a("v_lshrrev_b32 %s, 18, %s" % (vr(t1), vr(t1)))
        a("v_mul_u32_u24 %s, 640, %s" % (vr(t1), vr(t1)))
        a("v_lshl_add_u32 %s, %s, 7, %s" % (vr(t0), vr(t0), vr(t1)))
        a("buffer_load_dword v%d, %s, s[%d:%d], s70 offen" % (par[0], vr(t0), SRD_W2, SRD_W2+3))
    a("s_mov_b32 exec_hi, -1")
    a.label(sk)
def u_dma(t0):
    a("s_mul_i32 s70, s%d, %d" % (S_WAVE, USTR)); a("s_add_u32 m0, s70, %d" % (UB + 480))
    a("s_lshl_b32 s70, s%d, 6" % R["sD"]); a("s_add_u32 s70, s70, 0x%x" % WS_UT)
    a("v_lshrrev_b32 %s, 2, v0" % vr(t0)); a("v_mul_u32_u24 %s, %d, %s" % (vr(t0), UT_PS, vr(t0)))
    a("v_and_b32 v%d, 3, v0" % vP); a("v_lshl_add_u32 %s, v%d, 4, %s" % (vr(t0), vP, vr(t0)))
    for i in range(4):
        a("buffer_load_dwordx4 %s, s[%d:%d], s70 offen offset:%d sc1 lds" % (vr(t0), SRD_WS, SRD_WS+3, 1024*i))
        if i < 3: a("s_add_u32 s70, s70, %d" % (16*UT_PS - 1024))
if "k" in PRI:
    a("s_cmp_ge_u32 s%d, 4" % S_WAVE); a("s_cbranch_scc1 no_pri"); a("s_setprio 2"); a.label("no_pri")
if "a" in PRI: a("s_setprio 1")
if "y" in PRI:
    a("s_cmp_lt_u32 s%d, 4" % S_WAVE); a("s_cbranch_scc1 no_pry"); a("s_setprio 2"); a.label("no_pry")
conv_kgen(a, va, R, None, hooks=hooks)
va.release(m0)
S(6)
a("s_cmp_eq_u32 s71, 1"); a("s_cbranch_scc1 u_done")
a.label("u_poll")
a("buffer_load_dword v%d, v%d, s[%d:%d], s69 offen sc1" % (vP, vZ, SRD_WS, SRD_WS+3))
a("s_waitcnt vmcnt(0)")
a("v_cmp_ne_u32 vcc, s%d, v%d" % (S_NONCE, vP))
a("s_cbranch_vccnz u_poll")
u_dma(vN)
a("s_waitcnt vmcnt(0)")
a.label("u_done")
def pre():
    if "m" in PRI: a("s_setprio 3")
    if "a" in PRI: a("s_setprio 0")
    if TCH == "cq":
        a("s_cmp_ge_u32 s%d, 4" % S_WAVE); a("s_cbranch_scc1 u_w0")
        a("s_waitcnt vmcnt(%d)" % (8 if FULLT else 4)); a("s_branch u_w1")
        a.label("u_w0"); a("s_waitcnt vmcnt(0)"); a.label("u_w1")
    else:
        a("s_waitcnt vmcnt(0)")
        if TCH == "main": w2_touch(vN, vZ)
conv_main(a, va, R, sc="sc1", stamps=S, pre=pre)
a("s_lshl_b32 s%d, s%d, 7" % (S_T, S_CW)); a("s_lshl_b32 s%d, s%d, 2" % (S_T+1, S_WAVE))
a("s_add_u32 s%d, s%d, s%d" % (S_T, S_T, S_T+1)); a("s_add_u32 s%d, s%d, 0x%x" % (S_T, S_T, WS_AF))
a("s_waitcnt vmcnt(0)")
flag_store(a, S_T, 1, 2)
S.flush({0:1, 4:3, 8:5, 9:6})
a("s_endpgm")
hi = max(hi, va.hi)
a.label("role_g")
sI = 64
a("s_sub_u32 s%d, s2, 80" % S_T)
a("s_lshr_b32 s%d, s%d, 3" % (sI, S_T))
if not os.environ.get('XLOC'):
    a("s_and_b32 s%d, s%d, 1" % (S_T+1, S_T))
    a("s_bfe_u32 s%d, s%d, 0x20001" % (S_T+2, S_T))
    a("s_lshl_b32 s%d, s%d, 2" % (S_T+2, S_T+2))
    a("s_lshr_b32 s%d, s%d, 2" % (S_T+3, sI))
    a("s_mul_i32 s%d, s%d, 6" % (S_CB, S_T+1)); a("s_add_u32 s%d, s%d, s%d" % (S_CB, S_CB, S_T+3))
    a("s_mul_i32 s%d, s%d, 5" % (S_DB, S_T+1)); a("s_add_u32 s%d, s%d, s%d" % (S_DB, S_DB, S_T+3))
    a("s_and_b32 s%d, s%d, 3" % (S_RB, sI))
    a("s_lshl_b32 s%d, s%d, 1" % (S_T+1, S_T+1)); a("s_add_u32 s%d, s%d, s%d" % (S_T+1, S_T+1, S_RB))
    a("s_cmp_ge_u32 s%d, 20" % sI)
    a("s_cselect_b32 s%d, 5, s%d" % (S_CB, S_CB))
    a("s_cselect_b32 s%d, s%d, s%d" % (S_RB, S_T+1, S_RB))
    a("s_mul_i32 s%d, s%d, 5" % (S_T+4, S_RB)); a("s_lshr_b32 s%d, s%d, 1" % (S_T+4, S_T+4))
    a("s_and_b32 s%d, s%d, 1" % (S_T+5, sI)); a("s_mul_i32 s%d, s%d, 5" % (S_T+5, S_T+5)); a("s_add_u32 s%d, s%d, %d" % (S_T+5, S_T+5, int(os.environ.get("XO5", "1"))))
    a("s_lshl_b32 s%d, s%d, 1" % (S_T+3, S_T+3)); a("s_add_u32 s%d, s%d, s%d" % (S_T+4, S_T+4, S_T+3))
    a("s_cmp_ge_u32 s%d, 20" % sI); a("s_cselect_b32 s%d, s%d, s%d" % (S_T+4, S_T+5, S_T+4))
    a("s_lshr_b32 s%d, s%d, 2" % (S_T+5, S_T+2)); a("s_mul_i32 s%d, s%d, %d" % (S_T+5, S_T+5, int(os.environ.get("XP1", "0")))); a("s_add_u32 s%d, s%d, s%d" % (S_T+4, S_T+4, S_T+5))
    a("s_and_b32 s%d, s2, 1" % (S_T+5)); a("s_mul_i32 s%d, s%d, %d" % (S_T+5, S_T+5, int(os.environ.get("XO1", "1")))); a("s_add_u32 s%d, s%d, s%d" % (S_T+4, S_T+4, S_T+5))
    if os.environ.get("NOROT"): a("s_mov_b32 s%d, 0" % (S_T+4))
    for dst, md in ((S_ROT1, 10), (S_ROT2, 9)):
        a("s_sub_u32 s%d, s%d, %d" % (S_T+3, S_T+4, md)); a("s_cselect_b32 s%d, s%d, s%d" % (dst, S_T+4, S_T+3))
        if int(os.environ.get("XP1", "0")) > 1: a("s_sub_u32 s%d, s%d, %d" % (S_T+3, dst, md)); a("s_cselect_b32 s%d, s%d, s%d" % (dst, dst, S_T+3))
        a("s_sub_u32 s%d, s%d, %d" % (S_T+3, dst, md)); a("s_cselect_b32 s%d, s%d, s%d" % (dst, dst, S_T+3))
    a("s_add_u32 s%d, s%d, s%d" % (S_RB, S_RB, S_T+2))
    if G2X:
        a("s_and_b32 s%d, s2, 1" % (S_T+1)); a("s_lshl_b32 s%d, s%d, 1" % (S_T+1, S_T+1))
        a("s_and_b32 s%d, s%d, 1" % (S_T+3, sI))
        a("s_add_u32 s66, s%d, s%d" % (S_T+2, S_T+1)); a("s_add_u32 s66, s66, s%d" % (S_T+3))
        a("s_lshr_b32 s%d, s%d, 1" % (S_DB, sI))
        a("s_mul_i32 s%d, s%d, %d" % (S_T+3, S_T+3, int(os.environ.get("C2", "2"))))
        a("s_add_u32 s%d, s%d, s%d" % (S_ROT2, S_DB, S_T+3))
        a("s_and_b32 s%d, s2, 7" % (S_T+3)); a("s_mul_i32 s%d, s%d, %d" % (S_T+3, S_T+3, int(os.environ.get("XR2", "4"))))
        a("s_add_u32 s%d, s%d, s%d" % (S_ROT2, S_ROT2, S_T+3))
        for _ in range(4):
            a("s_sub_u32 s%d, s%d, 9" % (S_T+3, S_ROT2)); a("s_cselect_b32 s%d, s%d, s%d" % (S_ROT2, S_ROT2, S_T+3))
else:
    a("s_and_b32 s%d, s%d, 7" % (S_T+2, S_T))
    a("s_and_b32 s%d, s%d, 1" % (S_T+1, sI))
    a("s_lshl_b32 s%d, s%d, 1" % (S_RB, S_T+2)); a("s_add_u32 s%d, s%d, s%d" % (S_RB, S_RB, S_T+1))
    a("s_lshr_b32 s%d, s%d, 1" % (S_CB, sI)); a("s_mov_b32 s%d, s%d" % (S_DB, S_CB))
    a("s_mul_i32 s%d, s%d, 5" % (S_T+4, S_T+1)); a("s_add_u32 s%d, s%d, s%d" % (S_T+4, S_T+4, S_CB))
    a("s_mul_i32 s%d, s%d, %d" % (S_T+2, S_T+2, int(os.environ.get("XR", "1")))); a("s_add_u32 s%d, s%d, s%d" % (S_T+4, S_T+4, S_T+2))
    for dst, md in ((S_ROT1, 10), (S_ROT2, 9)):
        a("s_mov_b32 s%d, s%d" % (dst, S_T+4))
        for _ in range(4):
            a("s_sub_u32 s%d, s%d, %d" % (S_T+3, dst, md)); a("s_cselect_b32 s%d, s%d, s%d" % (dst, dst, S_T+3))
a("s_waitcnt lgkmcnt(0)")
srd(a, SRD_X, P_U, X_BYTES); srd(a, SRD_W, P_W1, W_BYTES); srd(a, SRD_WS, P_WS, 32 << 20)
srd(a, SRD_W2, P_W2, W_BYTES); srd(a, SRD_O, P_OUT, X_BYTES)
a("s_cmp_ge_u32 s%d, 4" % S_WAVE); a("s_cbranch_scc1 g_help")
va = VAlloc()
if os.environ.get("TWG"):
    a("v_mov_b32 v1, 0")
    a("s_mul_i32 s%d, s%d, %d" % (S_T, S_RB, 8*H_MT_STRIDE))
    a("buffer_load_dword v2, v1, s[%d:%d], s%d offen" % (SRD_WS, SRD_WS+3, S_T))
    a("s_add_u32 s%d, s%d, %d" % (S_T, S_T, 8*H_MT_STRIDE - 4))
    a("buffer_load_dword v2, v1, s[%d:%d], s%d offen" % (SRD_WS, SRD_WS+3, S_T))
    a("s_mov_b32 s%d, 0x%x" % (S_T, WS_FL + 0x50000))
    a("buffer_load_dword v2, v1, s[%d:%d], s%d offen" % (SRD_WS, SRD_WS+3, S_T))
    a("s_lshl_b32 s%d, s%d, 18" % (S_T, S_DB)); a("s_add_u32 s%d, s%d, 0x%x" % (S_T, S_T, WS_AT))
    a("buffer_load_dword v2, v1, s[%d:%d], s%d offen" % (SRD_WS, SRD_WS+3, S_T))
    a("s_mul_i32 s%d, s%d, %d" % (S_T, S_RB, 128*1280))
    a("buffer_load_dword v2, v1, s[%d:%d], s%d offen" % (SRD_O, SRD_O+3, S_T))
    a("buffer_load_dword v2, v1, s[%d:%d], 0 offen" % (SRD_W2, SRD_W2+3))

ONE = os.environ.get("ONE")
if ONE:
    M1 = {4:1, 6:2, 7:3}; M2 = eval(os.environ.get("M2", "{0:4, 11:5, 1:6, 3:7, 8:8}"))
    S1w = lambda k: S(M1[k]) if k in M1 else None
    S2w = lambda k: S(M2[k]) if k in M2 else None
else: S1w = S; S2w = lambda k: S2(k) if k < 10 else None
vT = [va(), va()]
if "g" in PRI: a("s_setprio 3")
role_g1.g1_compute(a, va, sc="sc1", stamps=S1w if STAMPS else None, vT=vT)
a("s_lshl_b32 s70, s%d, 11" % S_RB); a("s_lshl_b32 s71, s%d, 7" % S_CB)
a("s_add_u32 s70, s70, s71"); a("s_add_u32 s70, s70, 0x%x" % WS_FL)
if G2X:
    a("s_xor_b32 s71, s%d, s66" % S_RB); a("s_lshr_b32 s71, s71, 1"); a("s_lshl_b32 s71, s71, 30")
    if role_g1.HST == "htouch":
        for k in range(2): a("v_or_b32 %s, s71, %s" % (vr(vT[k]), vr(vT[k])))
    a("s_mov_b32 s%d, s66" % S_RB)
def mid(t0, t1, t2):
    a("v_mov_b32 %s, %d" % (vr(t0), role_g1.G1_MISC + 12288)); a("v_mov_b32 %s, 1" % vr(t1))
    a("s_mov_b64 exec, 1")
    a("s_waitcnt vmcnt(4)")
    S1w(7)
    a("ds_add_rtn_u32 %s, %s, %s" % (vr(t1), vr(t0), vr(t1)))
    a("v_mov_b32 %s, s%d" % (vr(t0), S_NONCE)); a("v_bfrev_b32 %s, 2" % vr(t2))
    a("s_waitcnt lgkmcnt(0)")
    a("v_cmp_eq_u32 vcc, 3, %s" % vr(t1))
    a("s_nop 1")
    a("v_cndmask_b32 %s, %s, 0, vcc" % (vr(t1), vr(t2)))
    a("buffer_store_dword %s, %s, s[%d:%d], s70 offen sc1" % (vr(t0), vr(t1), SRD_WS, SRD_WS+3))
    a("s_mov_b64 exec, -1")
    n = 1
    if role_g1.HST == "htouch":
        a("buffer_load_dword %s, %s, s[%d:%d], 0 offen sc1" % (vr(vT[0]), vr(vT[0]), SRD_WS, SRD_WS+3))
        a("s_mov_b64 exec, 0xffff")
        a("buffer_load_dword %s, %s, s[%d:%d], 0 offen sc1" % (vr(vT[1]), vr(vT[1]), SRD_WS, SRD_WS+3))
        a("s_mov_b64 exec, -1")
        n = 3
    if ONE: S2w(0)
    a("s_cmp_ge_u32 s%d, 20" % sI); a("s_cbranch_scc1 k_wait")
    return n
sF = S_T+4
PP = int(os.environ.get("PP", "5"))
assert G2X or not PP
def h_issue(vP, t):
    a("v_min_u32 %s, 10, v0" % vr(t)); a("v_lshlrev_b32 %s, 7, %s" % (vr(t), vr(t)))
    a("s_lshl_b32 s%d, s%d, 11" % (sF, S_RB)); a("s_add_u32 s%d, s%d, 0x%x" % (sF, sF, WS_FL))
    if PP:
        a("s_lshl_b32 s71, s%d, 8" % S_WAVE); a("s_add_u32 s71, s71, %d" % (role_g1.G1_MISC + 12544))
        a("v_lshl_add_u32 %s, v0, 2, s71" % vr(vP))
        a("ds_read_b32 %s, %s" % (vr(vP), vr(vP)))
    else: a("buffer_load_dword %s, %s, s[%d:%d], s%d offen sc1" % (vr(vP), vr(t), SRD_WS, SRD_WS+3, sF))
    return 0 if PP else 1
def h_wait(vP, t):
    if PP: a("s_waitcnt lgkmcnt(8)")
    a("s_branch h_chk")
    a.label("h_poll")
    a("buffer_load_dword %s, %s, s[%d:%d], s%d offen sc1" % (vr(vP), vr(t), SRD_WS, SRD_WS+3, sF))
    a.label("h_chk")
    a("s_waitcnt vmcnt(0)")
    a("v_cmp_ne_u32 vcc, s%d, %s" % (S_NONCE, vr(vP)))
    a("s_cbranch_vccnz h_poll")
class XP:
    def issue(s, vP, t):
        return ["v_lshrrev_b32 %s, 3, v0" % vr(vP), "v_and_b32 %s, 7, v0" % vr(t), "v_lshlrev_b32 %s, 2, %s" % (vr(t), vr(t)),
                "v_lshl_add_u32 %s, %s, 7, %s" % (vr(t), vr(vP), vr(t)),
                "s_lshl_b32 s%d, s%d, 10" % (sF, S_DB), "s_add_u32 s%d, s%d, 0x%x" % (sF, sF, WS_AF),
                ("buffer_load_dword %s, %s, s[%d:%d], s%d offen sc1" % (vr(vP), vr(t), SRD_WS, SRD_WS+3, sF), ("poll",))]
    def finish(s, vP, t, reload):
        a("v_cmp_ne_u32 vcc, s%d, %s" % (S_NONCE, vr(vP)))
        ok = a.newlabel("xa_ok"); pl = a.newlabel("xa_poll")
        a("s_cbranch_vccz %s" % ok)
        a.label(pl)
        a("buffer_load_dword %s, %s, s[%d:%d], s%d offen sc1" % (vr(vP), vr(t), SRD_WS, SRD_WS+3, sF))
        a("s_waitcnt vmcnt(0)")
        a("v_cmp_ne_u32 vcc, s%d, %s" % (S_NONCE, vr(vP)))
        a("s_cbranch_vccnz %s" % pl)
        reload()
        a("s_waitcnt vmcnt(0)")
        a.label(ok)
role_g2.g2_compute(a, va, h_wait=(h_issue, h_wait), xa_poll=XP(), sc="sc1", stamps=S2w if STAMPS else None, mid=mid)
(S if ONE else S2).flush({0:11, 2:12, 5:13, 9:14})
a("s_endpgm")
hi = max(hi, va.hi)
a.label("g_help")
if "h" in PRI: a("s_setprio 3")
va = VAlloc()
H2 = []
def after_pre(): H2.extend(role_g2.g2_helper_setup(a, va))
SCHED = eval(os.environ.get("W2S", "{7:[6], 8:[0], 9:[1], 11:[2,3,4,5,7,8]}"))
q2 = []
def hook(b):
    r = []
    for st in SCHED.get(b, []):
        st, lo, hi_ = st if isinstance(st, tuple) else (st, 0, 6)
        H2[0](st, lo, hi_); r += [("w2", st)]*(hi_ - lo)
        if ONE and b == 11: HS[0] += 1; S(HS[0])
        if b == 11:
            HP[0] += 1
            if HP[0] == PP:
                vF = va()
                a("v_min_u32 v%d, 10, v0" % vF); a("v_lshlrev_b32 v%d, 7, v%d" % (vF, vF))
                a("s_lshl_b32 s%d, s66, 11" % (S_T+2)); a("s_add_u32 s%d, s%d, 0x%x" % (S_T+2, S_T+2, WS_FL))
                a("s_lshl_b32 s%d, s%d, 8" % (S_T+3, S_WAVE)); a("s_add_u32 m0, s%d, %d" % (S_T+3, role_g1.G1_MISC + 12544 - 1024))
                a("s_nop 0")
                a("buffer_load_dword v%d, s[%d:%d], s%d offen sc1 lds" % (vF, SRD_WS, SRD_WS+3, S_T+2))
                r.append(("pf",))
    q2.extend(r)
    return r
HS = [1]; HP = [0]
role_g1.g1_helper(a, va, stamps=None if ONE else S, hook=hook, after_pre=after_pre)
hook(100)
a("s_barrier"); hook(10)
a("s_barrier")
a("s_cmp_ge_u32 s%d, 20" % sI); a("s_cbranch_scc1 g_help_end")
if ONE: S(1)
hook(11)
if os.environ.get("HW"): a("s_waitcnt vmcnt(0)"); S(8)
a("s_waitcnt vmcnt(%d)" % (len(q2) - 1 - max(i for i, t in enumerate(q2) if t == (("pf",) if PP else ("w2", 0)))))
a("s_barrier")
hook(12)
role_g2.g2_helper_loop(a, H2[1], q2, late=lambda b: hook(12+b))
assert all(q2.count(("w2", st)) == 6 for st in range(9))
a.label("g_help_end")
a("s_waitcnt vmcnt(0)")
S.flush()
a.label("k_wait"); a("s_waitcnt vmcnt(0)")
a.label("k_end"); a("s_endpgm")
hi = max(hi, va.hi)
out = hdr + "; @launch grid=(256,1,1) block=(512,1,1) lds=163840\n"
out += '.amdgcn_target "amdgcn-amd-amdhsa--gfx950"\n.text\n'
k = KN + "_kernel"
out += ".globl %s\n.p2align 8\n.type %s,@function\n%s:\n%s" % (k, k, k, a.text())
out += '.section .rodata,"a"\n.p2align 6\n' + kernel_desc(k, hi)
open(sys.argv[1], "w").write(out)
print("vgprs", hi, "lines", len(a.l))
```
